```python
import torch

def _softmax(x, axis=-1):
    return torch.softmax(x, dim=axis)
def _gelu(x):
    return torch.nn.functional.gelu(x, approximate="tanh")
def _silu(x):
    return torch.nn.functional.silu(x)
def _sigmoid(x):
    return torch.sigmoid(x)
def _layernorm(x, axis=-1, eps=1e-5):
    m = x.mean(dim=axis, keepdim=True)
    v = x.var(dim=axis, keepdim=True, unbiased=False)
    return (x - m) / torch.sqrt(v + eps)
def _scatter_add(tgt, idx, src, axis=0):
    return tgt.clone().index_add_(axis, idx, src)
def _segment_sum(src, seg, n):
    out = torch.zeros((n,) + src.shape[1:], dtype=src.dtype)
    return out.index_add_(0, seg, src)
def _pad(x, pw):
    flat = tuple(v for pair in reversed(pw) for v in pair)
    return torch.nn.functional.pad(x, flat)

kernel_name = 'recurrent_scan__grouped_kv_mqa__mixer_s_mlp__prompt'

def setup_inputs():

    _w = (lambda a: (lambda t: t.to(torch.bfloat16) if t.is_floating_point() else t)(torch.as_tensor(a)))
    def _A_setup():
        B, S, D, H = 1, 2048, 448, 16
        Dh = D // H
        return {
            "x": _w((lambda *s: torch.randn(*s, dtype=torch.bfloat16) * 0.05)(B, S, D)),
            "wq": _w((lambda *s: torch.randn(*s, dtype=torch.bfloat16) * 0.05)(D, H * Dh)),
            "wk": _w((lambda *s: torch.randn(*s, dtype=torch.bfloat16) * 0.05)(D, Dh)),
            "wv": _w((lambda *s: torch.randn(*s, dtype=torch.bfloat16) * 0.05)(D, Dh)),
            "wo": _w((lambda *s: torch.randn(*s, dtype=torch.bfloat16) * 0.05)(H * Dh, D)),
        }
    _A_in = _A_setup()

    def _B_setup():
        B, S, D, F = 1, 2048, 448, 1792
        return {
            "x":  _w((lambda *s: torch.randn(*s, dtype=torch.bfloat16) * 0.05)(B, S, D)),
            "w1": _w((lambda *s: torch.randn(*s, dtype=torch.bfloat16) * 3.2)(D, D) * (D ** -0.5)),
            "w2": _w((lambda *s: torch.randn(*s, dtype=torch.bfloat16) * 3.2)(D, D) * (D ** -0.5)),
            "w3": _w((lambda *s: torch.randn(*s, dtype=torch.bfloat16) * 3.2)(D, F) * (D ** -0.5)),
            "w4": _w((lambda *s: torch.randn(*s, dtype=torch.bfloat16) * 3.2)(F, D) * (F ** -0.5)),
        }
    _B_in = _B_setup()

    return {
        "A_x": _A_in["x"],
        "A_wq": _A_in["wq"],
        "A_wk": _A_in["wk"],
        "A_wv": _A_in["wv"],
        "A_wo": _A_in["wo"],
        "B_x": _B_in["x"],
        "B_w1": _B_in["w1"],
        "B_w2": _B_in["w2"],
        "B_w3": _B_in["w3"],
        "B_w4": _B_in["w4"],
    }

def reference(A_x, A_wq, A_wk, A_wv, A_wo, B_x, B_w1, B_w2, B_w3, B_w4):
    def _A_ref(x, wq, wk, wv, wo):
        B, S, D = x.shape
        H = 16
        Dh = D // H
        q = (lambda x, *d: x.permute(*d))((x @ wq).reshape(B, S, H, Dh), 0, 2, 1, 3)
        k = x @ wk
        v = x @ wv
        scores = torch.einsum("bhqd,bkd->bhqk", q, k) * (Dh ** -0.5)
        p = _softmax(scores, axis=-1)
        o = torch.einsum("bhqk,bkd->bhqd", p, v)
        return (lambda x, *d: x.permute(*d))(o, 0, 2, 1, 3).reshape(B, S, H * Dh) @ wo

    def _B_ref(x, w1, w2, w3, w4):
        B, S, D = x.shape
        h = _gelu(_layernorm(x, axis=-1) @ w1)
        c = D // 4
        g0 = _pad(h[:, :, 0*c:1*c], ((0, 0), (1, 0), (0, 0)))[:, :S, :]
        g1 = _pad(h[:, :, 1*c:2*c], ((0, 0), (0, 1), (0, 0)))[:, 1:, :]
        g2 = _pad(h[:, :, 2*c:3*c], ((0, 0), (2, 0), (0, 0)))[:, :S, :]
        g3 = _pad(h[:, :, 3*c:   ], ((0, 0), (0, 2), (0, 0)))[:, 2:, :]
        hs = torch.concatenate([g0, g1, g2, g3], axis=-1) @ w2
        x1 = x + hs
        h2 = _gelu(_layernorm(x1, axis=-1) @ w3) @ w4
        return x1 + h2

    x = A_x
    xn = _layernorm(x, axis=-1)
    s = _A_ref(xn, A_wq, A_wk, A_wv, A_wo)
    g = _silu(_B_ref(xn, B_w1, B_w2, B_w3, B_w4))
    return x + s * g
```

```python
import re

TRANS = ("v_exp_f32", "v_log_f32", "v_rcp_f32", "v_rsq_f32", "v_sqrt_f32", "v_sin_f32", "v_cos_f32")
REG = re.compile(r"^(-|abs\()?([vsa])(\d+)\)?$")
RNG = re.compile(r"^(-)?([vsa])\[(\d+):(\d+)\]$")

def regs_of(tok):
    tok = tok.strip()
    m = REG.match(tok)
    if m:
        return [(m.group(2), int(m.group(3)))]
    m = RNG.match(tok)
    if m:
        return [(m.group(2), i) for i in range(int(m.group(3)), int(m.group(4)) + 1)]
    if tok == "vcc":
        return [("s", "vcc")]
    if tok in ("exec", "exec_lo", "exec_hi"):
        return [("s", "exec")]
    if tok == "m0":
        return [("s", "m0")]
    return []

class Ins:
    def __init__(self, text):
        self.text = text
        t = text.split(";")[0].strip()
        self.label = t[:-1] if t.endswith(":") else None
        self.is_dir = t.startswith(".") and self.label is None
        self.op = None; self.w = []; self.r = []; self.ops = []
        if not t or self.label or self.is_dir:
            return
        parts = t.split(None, 1)
        self.op = op = parts[0]
        rest = parts[1] if len(parts) > 1 else ""
        toks = [x.strip() for x in re.split(r",(?![^\[]*\])", rest)] if rest else []
        if toks:
            last = toks[-1].split()
            self.mods = last[1:]
            toks[-1] = last[0] if last else ""
        else:
            self.mods = []
        self.ops = toks
        R = lambda xs: [r for x in xs for r in regs_of(x)]
        self.valu = op.startswith("v_")
        self.mfma = op.startswith("v_mfma")
        self.trans = op in TRANS
        self.dot = op.startswith("v_dot")
        self.vmem = op.startswith(("buffer_", "global_"))
        self.ds = op.startswith("ds_")
        self.salu = op.startswith("s_")
        self.dpp = any(m.startswith(("row_", "quad_perm", "wave_")) for m in self.mods)
        self.lds_dma = self.vmem and ("lds" in self.mods or "_lds_" in op)
        self.srcC = []; self.srcAB = []; self.store_data = []
        if self.mfma:
            self.w = R(toks[:1]); self.srcAB = R(toks[1:3]); self.srcC = R(toks[3:4]); self.r = self.srcAB + self.srcC
            self.passes = 8 if "32x32" in op else 4
        elif op.startswith("v_cmp"):
            self.w = R(toks[:1]); self.r = R(toks[1:])
        elif op.startswith("v_permlane"):
            self.w = R(toks[:2]); self.r = R(toks[:2])
        elif op in ("v_add_co_u32", "v_sub_co_u32", "v_addc_co_u32", "v_subb_co_u32"):
            self.w = R(toks[:2]); self.r = R(toks[2:])
        elif op.startswith(("v_fmac", "v_dot2c", "v_pk_fmac")) or self.dpp:
            self.w = R(toks[:1]); self.r = R(toks)
        elif self.valu:
            self.w = R(toks[:1]); self.r = R(toks[1:])
        elif self.vmem:
            if self.lds_dma:
                self.r = R(toks) + [("s", "m0")]
            elif "store" in op:
                self.r = R(toks)
                data = toks[0] if op.startswith("buffer_") else toks[1]
                if op.endswith(("x3", "x4")):
                    self.store_data = regs_of(data)
            elif "atomic" in op:
                self.r = R(toks)
                if "sc0" in self.mods:
                    self.w = R(toks[:1])
            else:
                self.w = R(toks[:1]); self.r = R(toks[1:])
        elif self.ds:
            if op.startswith(("ds_read", "ds_bpermute", "ds_swizzle")) or "_rtn_" in op:
                self.w = R(toks[:1]); self.r = R(toks[1:])
            else:
                self.r = R(toks)
        elif self.salu:
            if op.startswith(("s_cmp", "s_cbranch", "s_branch", "s_waitcnt", "s_barrier", "s_nop", "s_sleep", "s_setprio", "s_endpgm")):
                self.r = R(toks)
            else:
                self.w = R(toks[:1]); self.r = R(toks[1:])
                if "saveexec" in op:
                    self.w += [("s", "exec")]
    def states(self):
        if self.op is None:
            return 0
        if self.op == "s_nop":
            return int(self.ops[0], 0) + 1
        return 1

def need(prod, cons):
    n = 0
    pw = set(prod.w)
    if prod.mfma:
        big = prod.passes == 8
        if cons.mfma:
            if pw & set(cons.srcAB):
                n = max(n, 12 if big else 8)
            if pw & set(cons.srcC):
                same = cons.srcC == prod.w and cons.passes == prod.passes
                n = max(n, 0 if same else (10 if big else 6))
            if (pw & set(cons.w)) and not (cons.srcC == prod.w and cons.passes == prod.passes) and not (pw & set(cons.srcC)):
                n = max(n, 10 if big else 6)
        elif (cons.valu or cons.vmem or cons.ds) and (pw & (set(cons.r) | set(cons.w))):
            n = max(n, 12 if big else 8)
        if cons.valu and not cons.mfma and set(prod.srcC) & set(cons.w):
            n = max(n, 7 if big else 3)
        return n
    if prod.valu:
        vw = {x for x in pw if x[0] in "va"}
        sw = {x for x in pw if x[0] == "s"}
        cr = set(cons.r)
        if cons.mfma and vw & cr:
            n = max(n, 2)
        if cons.op.startswith("v_permlane") and vw & cr:
            n = max(n, 2)
        if cons.valu and cons.dpp and vw & cr:
            n = max(n, 2)
        if cons.op.startswith(("v_readfirstlane", "v_readlane")) and vw & cr:
            n = max(n, 1)
        if prod.trans and cons.valu and not cons.trans and vw & cr:
            n = max(n, 1)
        if prod.trans and (cons.vmem or cons.ds) and vw & cr:
            n = max(n, 1)
        if prod.dot and cons.valu and vw & (cr | set(cons.w)):
            same_c = cons.op == prod.op and not (vw & {r for t in cons.ops[1:3] for r in regs_of(t)})
            n = max(n, 0 if same_c else 3)
        if prod.dot and (cons.vmem or cons.ds) and vw & cr:
            n = max(n, 3)
        if sw & cr:
            if cons.valu:
                n = max(n, 2)
            if cons.vmem:
                n = max(n, 5)
            if cons.salu:
                n = max(n, 2)
        if any("op_sel" in m or "dst_sel" in m for m in prod.mods) and cons.valu and vw & (cr | set(cons.w)):
            n = max(n, 1)
    if prod.salu and ("s", "m0") in pw and cons.vmem and cons.lds_dma:
        n = max(n, 1)
    if prod.vmem and prod.store_data and set(prod.store_data) & set(cons.w):
        n = max(n, 2)
    return n

WINDOW = 14

class Asm:
    def __init__(self):
        self.lines = []
    def __call__(self, text):
        for ln in text.split("\n"):
            ln = ln.strip()
            if ln:
                self.lines.append(ln)
    def finalize(self):
        out = []
        for ln in self.lines:
            ins = Ins(ln)
            if ins.op:
                pad = self._short(out, ins)
                while pad > 0:
                    k = min(pad, 16)
                    out.append(Ins(f"s_nop {k-1}"))
                    pad -= k
            out.append(ins)
        self._check_branches(out)
        return "\n".join(("    " + i.text) if i.op else i.text for i in out)
    @staticmethod
    def _short(hist, ins):
        dist = 0; pad = 0
        for p in reversed(hist):
            if p.op is None:
                continue
            if p.op in ("s_branch", "s_endpgm"):
                break
            pad = max(pad, need(p, ins) - dist)
            dist += p.states()
            if dist >= WINDOW:
                break
        return pad
    def _check_branches(self, out):
        lab = {i.label: k for k, i in enumerate(out) if i.label}
        for k, i in enumerate(out):
            if i.op and i.op.startswith(("s_cbranch", "s_branch")):
                tgt = lab[i.ops[0]]
                hist = [x for x in out[max(0, k - 60):k] ]
                fake = Ins("s_nop 0")
                hist = hist + [fake]
                cnt = 0
                for c in out[tgt:]:
                    if c.op is None:
                        continue
                    if self._short(hist, c) > 0:
                        raise RuntimeError(f"hazard across branch '{i.text}' at consumer '{c.text}'")
                    hist.append(c)
                    cnt += c.states()
                    if cnt >= WINDOW or c.op in ("s_branch", "s_endpgm"):
                        break

def v(a, n=1):
    return f"v{a}" if n == 1 else f"v[{a}:{a+n-1}]"
def s(a, n=1):
    return f"s{a}" if n == 1 else f"s[{a}:{a+n-1}]"
```

```python
import sys, struct
from asmlib import Asm, v, s

OPT = dict(stamp=0, force_slow=0, noG=0, noA=0, prio=2)
for a_ in sys.argv[2:]:
    k_, x_ = a_.split("="); OPT[k_] = int(x_)

KNAME = "recurrent_scan__grouped_kv_mqa__mixer_s_mlp__prompt_kernel"
def f2u(x): return struct.unpack("<I", struct.pack("<f", x))[0]
def fh(x): return hex(f2u(x))
LOG2E = 1.4426950408889634
ONES = 0x3F803F80
OOB = 0x40000000
SPIN = 400000

F_H, F_X1, F_P, F_O, F_KV = 0x0, 0x8000, 0x10000, 0x18000, 0x20000
NFLAG = 4 * 256 + 64
W_KV = 0x30000
W_GB0, W_GBS = 0x80000, 0xA0000
G_H, G_X1, G_O, G_ST, G_P = 0x0, 0xE000, 0x1C000, 0x2A000, 0x2C000
W_STAMP = 0x1500000
WS_USED = 0x1600000

L_X = 0
L_RING = 58368
L_W1R, L_WQR, L_WKVR = L_RING, L_RING + 28672, L_RING + 57344
L_HREG = L_RING + 57344
L_MISC = 144384
L_STATP = L_MISC
L_VST = L_MISC + 2048
L_SYNC = L_VST + 256
L_CS = L_SYNC + 128
L_QN = L_CS + 8 * 128
L_QX = L_QN + 512
L_MX = L_QX + 8192
L_END = L_MX + 2048
assert L_END <= 163840
SY_GBAR, SY_ABAR, SY_CX1, SY_CP, SY_CO, SY_BAD, SY_PF = 0, 4, 8, 12, 16, 20, 32

S_WAVE, S_G, S_J, S_XCD = 3, 4, 5, 6
R_X, R_WQ, R_WO, R_W1, R_W2, R_W3, R_W4, R_OUT, R_DBG, R_WS, R_WK, R_WV, R_STR = 8, 12, 16, 20, 24, 28, 32, 36, 40, 44, 48, 52, 56
S_GB = 60
S_W4 = 61
S_HI, S_LO = 62, 63
S_T0, S_T1, S_T2, S_T3, S_T4, S_T5 = 64, 65, 66, 67, 68, 69
S_SPIN = 70
S_KMAX = 71
S_SOFF, S_STRIDE, S_RING = 72, 73, 74
S_CNT, S_PASS, S_NF, S_NN, S_N0 = 75, 76, 77, 78, 79
S_EX = 80
S_KVJOB = 82
S_TS = 84
S_C0, S_C1 = 86, 87
srd = lambda r: s(r, 4)

V_LANE, V_L16, V_T, V_H = 1, 2, 3, 4
V_M, V_R, V_RR = 5, 6, 7
V_XB, V_WA, V_WA2, V_PAT, V_TRB = 8, 9, 10, 11, 12
V_A, V_B, V_C, V_D = 13, 14, 15, 16
V_ONE, V_SY = 17, 18
V_SEL = 20

A = Asm()
uid = [0]
def lab(p):
    uid[0] += 1
    return f"L_{p}_{uid[0]}"

nstamp = [0]
STAMPS = []
def stamp(name, last=False):
    if not OPT["stamp"]:
        return
    i = nstamp[0]; nstamp[0] += 1
    STAMPS.append(name)
    A(f"""s_memtime {s(S_TS,2)}
    s_waitcnt lgkmcnt(0)
    v_writelane_b32 v253, {s(S_TS)}, {i}""")
    if last:
        A(f"""s_memrealtime {s(S_TS,2)}
        s_lshl_b32 {s(S_T5)}, s2, 3
        s_add_u32 {s(S_T5)}, {s(S_T5)}, {s(S_WAVE)}
        s_lshl_b32 {s(S_T5)}, {s(S_T5)}, 8
        s_add_u32 {s(S_T5)}, {s(S_T5)}, {W_STAMP}
        s_waitcnt lgkmcnt(0)
        v_writelane_b32 v253, {s(S_TS)}, 63
        v_lshlrev_b32 v254, 2, {v(V_LANE)}
        buffer_store_dword v253, v254, {srd(R_WS)}, {s(S_T5)} offen""")
def stamp_rt0():
    if OPT["stamp"]:
        A(f"v_mov_b32 v253, 0\ns_memrealtime {s(S_TS,2)}\ns_waitcnt lgkmcnt(0)\nv_writelane_b32 v253, {s(S_TS)}, 62")

def exec_lo(): A("s_mov_b32 exec_lo, -1\ns_mov_b32 exec_hi, 0")
def exec_hi(): A("s_mov_b32 exec_lo, 0\ns_mov_b32 exec_hi, -1")
def exec_all(): A("s_mov_b64 exec, -1")

def poll_flags(vaddr, soff, nlanes, vdst):
    l0, l1 = lab("poll"), lab("polled")
    A(f"""s_mov_b64 exec, {hex((1 << nlanes) - 1)}
    s_mov_b32 {s(S_SPIN)}, 0
    {l0}:
    buffer_load_dword {v(vdst)}, {v(vaddr)}, {srd(R_WS)}, {soff} offen sc1
    s_add_u32 {s(S_SPIN)}, {s(S_SPIN)}, 1
    s_cmp_gt_u32 {s(S_SPIN)}, {SPIN}
    s_cbranch_scc1 L_END
    s_waitcnt vmcnt(0)
    v_cmp_ne_u32 vcc, 0, {v(vdst)}
    s_cmp_eq_u64 vcc, exec
    s_cbranch_scc0 {l0}
    s_mov_b64 exec, -1""")

def lds_arrive(word):
    A(f"""s_mov_b64 exec, 1
    ds_add_u32 {v(V_SY)}, {v(V_ONE)} offset:{word}
    s_mov_b64 exec, -1""")

def lds_wait(word, target, vtmp, vaddr=V_SY):
    l0 = lab("lw")
    A(f"""s_mov_b32 {s(S_SPIN)}, 0
    {l0}:
    ds_read_b32 {v(vtmp)}, {v(vaddr)} offset:{word}
    s_add_u32 {s(S_SPIN)}, {s(S_SPIN)}, 1
    s_cmp_gt_u32 {s(S_SPIN)}, {SPIN*8}
    s_cbranch_scc1 L_END
    s_waitcnt lgkmcnt(0)
    v_readfirstlane_b32 {s(S_T4)}, {v(vtmp)}
    s_cmp_ge_u32 {s(S_T4)}, {target}
    s_cbranch_scc0 {l0}""")

def signal_last(word, flagbase, vtmp):
    l0 = lab("sig")
    A(f"""s_waitcnt vmcnt(0)
    s_mov_b64 exec, 1
    ds_add_rtn_u32 {v(vtmp)}, {v(V_SY)}, {v(V_ONE)} offset:{word}
    s_waitcnt lgkmcnt(0)
    v_readfirstlane_b32 {s(S_T4)}, {v(vtmp)}
    s_cmp_eq_u32 {s(S_T4)}, 3
    s_cbranch_scc0 {l0}
    s_lshl_b32 {s(S_T4)}, {s(S_G)}, 3
    s_add_u32 {s(S_T4)}, {s(S_T4)}, {s(S_J)}
    s_lshl_b32 {s(S_T4)}, {s(S_T4)}, 7
    s_add_u32 {s(S_T4)}, {s(S_T4)}, {flagbase}
    v_mov_b32 {v(vtmp)}, 0
    buffer_store_dword {v(V_ONE)}, {v(vtmp)}, {srd(R_WS)}, {s(S_T4)} offen sc1
    {l0}:
    s_mov_b64 exec, -1""")

def poll_group(flagbase, vtmp, vtmp2):
    A(f"""s_lshl_b32 {s(S_T3)}, {s(S_G)}, 10
    s_add_u32 {s(S_T3)}, {s(S_T3)}, {flagbase}
    v_lshlrev_b32 {v(vtmp)}, 7, {v(V_LANE)}""")
    poll_flags(vtmp, s(S_T3), 8, vtmp2)

def mfma(d, a, b, c=None):
    A(f"v_mfma_f32_32x32x16_bf16 {v(d,16)}, {v(a,4)}, {v(b,4)}, {v(d,16) if c is None else c}")
def mfma16(d, a, b, c=None):
    A(f"v_mfma_f32_16x16x32_bf16 {v(d,4)}, {v(a,4)}, {v(b,4)}, {v(d,4) if c is None else c}")
def trread(d, addr, off):
    A(f"ds_read_b64_tr_b16 {v(d,2)}, {v(addr)} offset:{off}")

def gelu16(src, n, t0, t1):
    for i in range(n): A(f"v_mul_f32 {v(t0+i)}, {v(src+i)}, {v(src+i)}")
    for i in range(n): A(f"v_fma_f32 {v(t0+i)}, {v(t0+i)}, {s(S_C1)}, {v(V_D)}")
    for i in range(n): A(f"v_mul_f32 {v(t0+i)}, {v(t0+i)}, {v(src+i)}")
    for i in range(n): A(f"v_exp_f32 {v(t0+i)}, {v(t0+i)}")
    for i in range(n): A(f"v_add_f32 {v(t0+i)}, 1.0, {v(t0+i)}")
    for i in range(n): A(f"v_rcp_f32 {v(t0+i)}, {v(t0+i)}")
    for i in range(n): A(f"v_mul_f32 {v(src+i)}, {v(src+i)}, {v(t0+i)}")

def colsum_spread(cs4, dst16, vtmp):
    A(f"""s_lshl_b32 {s(S_T4)}, {s(S_WAVE)}, 7
    s_add_u32 {s(S_T4)}, {s(S_T4)}, {L_CS}
    v_and_b32 {v(vtmp)}, 15, {v(V_LANE)}
    v_cmp_gt_u32 vcc, 2, {v(vtmp)}
    v_lshlrev_b32 {v(vtmp)}, 6, {v(vtmp)}
    v_and_b32 {v(vtmp+1)}, 48, {v(V_LANE)}
    v_add3_u32 {v(vtmp)}, {v(vtmp)}, {v(vtmp+1)}, {s(S_T4)}
    s_mov_b64 exec, vcc
    ds_write_b128 {v(vtmp)}, {v(cs4,4)}
    s_mov_b64 exec, -1
    v_lshl_add_u32 {v(vtmp)}, {v(V_H)}, 4, {s(S_T4)}""")
    for jj in range(4):
        A(f"ds_read_b128 {v(dst16+4*jj,4)}, {v(vtmp)} offset:{32*jj}")
    A("s_waitcnt lgkmcnt(0)")

def swap_sum2(a, b):
    A(f"v_permlane32_swap_b32 {v(a)}, {v(b)}\nv_add_f32 {v(a)}, {v(a)}, {v(b)}")

def both_halves_sum(a, t):
    A(f"v_mov_b32 {v(t)}, {v(a)}\nv_permlane32_swap_b32 {v(a)}, {v(t)}\nv_add_f32 {v(a)}, {v(a)}, {v(t)}")

A(f"""s_cmp_ge_u32 s2, 256
s_cbranch_scc1 L_END
s_load_dwordx16 s[64:79], s[0:1], 0
s_load_dwordx8 s[80:87], s[0:1], 64
s_load_dwordx2 s[88:89], s[0:1], 96
v_and_b32 {v(V_LANE)}, 63, v0
v_lshrrev_b32 {v(V_A)}, 6, v0
v_lshlrev_b32 {v(V_L16)}, 4, {v(V_LANE)}
v_readfirstlane_b32 {s(S_WAVE)}, {v(V_A)}
v_and_b32 {v(V_T)}, 31, {v(V_LANE)}
v_lshrrev_b32 {v(V_H)}, 5, {v(V_LANE)}
s_and_b32 {s(S_XCD)}, s2, 7
s_lshr_b32 s7, s2, 3
s_and_b32 {s(S_J)}, s7, 7
s_lshr_b32 s7, s7, 3
s_lshl_b32 {s(S_G)}, {s(S_XCD)}, 2
s_add_u32 {s(S_G)}, {s(S_G)}, s7
s_mul_i32 {s(S_GB)}, {s(S_G)}, {W_GBS}
s_add_u32 {s(S_GB)}, {s(S_GB)}, {W_GB0}
s_and_b32 {s(S_W4)}, {s(S_WAVE)}, 3
s_lshr_b32 {s(S_HI)}, {s(S_W4)}, 1
s_and_b32 {s(S_LO)}, {s(S_W4)}, 1""")
sizes = {R_X: 1835008, R_WQ: 401408, R_WO: 401408, R_W1: 401408, R_W2: 401408, R_W3: 1605632, R_W4: 1605632,
         R_OUT: 1835008, R_DBG: 256, R_WS: WS_USED, R_WK: 25088, R_WV: 25088}
for r_, n_ in sizes.items():
    A(f"s_mov_b32 {s(r_+2)}, {n_}\ns_mov_b32 {s(r_+3)}, 0x20000")
A(f"s_mov_b32 {s(R_STR+3)}, 0x20000")
A(f"""v_mul_u32_u24 {v(V_A)}, 9363, v0
v_lshrrev_b32 {v(V_A)}, 16, {v(V_A)}
v_mul_u32_u24 {v(V_B)}, 7, {v(V_A)}
v_sub_u32 {v(V_B)}, v0, {v(V_B)}
v_and_b32 {v(V_C)}, 3, {v(V_A)}
v_bfe_u32 {v(V_D)}, {v(V_A)}, 2, 2
v_and_b32 {v(V_A)}, 48, {v(V_A)}
v_lshl_add_u32 {v(V_A)}, {v(V_C)}, 2, {v(V_A)}
v_add_u32 {v(V_A)}, {v(V_A)}, {v(V_D)}
v_mul_u32_u24 {v(V_A)}, 896, {v(V_A)}
v_lshl_add_u32 {v(V_PAT)}, {v(V_B)}, 4, {v(V_A)}
s_mul_i32 s7, {s(S_J)}, 112
v_add_u32 {v(V_PAT)}, s7, {v(V_PAT)}
v_mov_b32 {v(V_ONE)}, 1
v_mov_b32 {v(V_SY)}, {L_SYNC}
s_waitcnt lgkmcnt(0)""")
kmap = {R_X: 64, R_WQ: 66, R_WK: 68, R_WV: 70, R_WO: 72, R_W1: 76, R_W2: 78, R_W3: 80, R_W4: 82, R_OUT: 84, R_DBG: 86, R_WS: 88}
for r_, k_ in kmap.items():
    A(f"s_mov_b64 {s(r_,2)}, {s(k_,2)}")
A(f"s_mov_b64 {s(R_STR,2)}, {s(R_W3,2)}\ns_mov_b32 {s(R_STR+2)}, 1605632")
stamp_rt0()
stamp("start")
A(f"""s_or_b32 {s(S_T0)}, {s(S_G)}, {s(S_J)}
s_cmp_eq_u32 {s(S_WAVE)}, 7
s_cselect_b32 {s(S_T0)}, {s(S_T0)}, 1
s_cmp_lg_u32 {s(S_T0)}, 0
s_cbranch_scc1 L_noclear
v_lshlrev_b32 {v(V_A)}, 7, {v(V_LANE)}
v_mov_b32 {v(V_B)}, 0
s_mov_b32 {s(S_T1)}, 0
L_clear:
buffer_store_dword {v(V_B)}, {v(V_A)}, {srd(R_WS)}, {s(S_T1)} offen sc1
s_add_u32 {s(S_T1)}, {s(S_T1)}, 8192
s_cmp_lt_u32 {s(S_T1)}, {NFLAG*128}
s_cbranch_scc1 L_clear
L_noclear:""")
A(f"""s_lshl_b32 {s(S_T1)}, {s(S_G)}, 3
s_add_u32 {s(S_T1)}, {s(S_T1)}, {s(S_WAVE)}
s_mul_i32 {s(S_T1)}, {s(S_T1)}, {8*896}
s_mul_i32 m0, {s(S_WAVE)}, {8*912}
s_mov_b32 exec_hi, 0x00ffffff""")
for i in range(8):
    A(f"buffer_load_dwordx4 {v(V_L16)}, {srd(R_X)}, {s(S_T1)} offen lds")
    if i < 7:
        A(f"s_add_u32 m0, m0, 912\ns_add_u32 {s(S_T1)}, {s(S_T1)}, 896")
exec_all()

def dma_chunk_w(u):
    A(f"""s_lshl_b32 {s(S_T1)}, {s(S_WAVE)}, 10
    s_add_u32 m0, {s(S_T1)}, {L_W1R + (u % 4) * 7168}
    s_mov_b32 {s(S_T2)}, {u * 57344}
    buffer_load_dwordx4 {v(V_PAT)}, {srd(R_W1)}, {s(S_T2)} offen lds
    s_add_u32 m0, {s(S_T1)}, {L_WQR + (u % 4) * 7168}
    s_nop 0
    buffer_load_dwordx4 {v(V_PAT)}, {srd(R_WQ)}, {s(S_T2)} offen lds""")
def dma_chunk_kv(u):
    A(f"s_mov_b32 {s(S_T2)}, {u * 3584}")
    for h_, r_ in enumerate((R_WK, R_WV)):
        A(f"s_mov_b32 m0, {L_WKVR + (u % 4) * 7168 + h_ * 3584}")
        for i in range(4):
            if i == 3: exec_lo()
            A(f"buffer_load_dwordx4 {v(V_L16)}, {srd(r_)}, {s(S_T2)} offen offset:{1024*i} lds")
        exec_all()

A(f"""s_cmp_lt_u32 {s(S_J)}, 2
s_cselect_b32 {s(S_KVJOB)}, 1, 0
s_cmp_eq_u32 {s(S_WAVE)}, 7
s_cbranch_scc1 L_w7_issue""")
for u in range(4):
    dma_chunk_w(u)
A(f"""v_mov_b32 {v(V_A)}, 0
v_lshl_add_u32 {v(V_B)}, {v(V_T)}, 2, {v(V_SY)}
ds_write_b32 {v(V_B)}, {v(V_A)}
s_waitcnt vmcnt(8)
s_branch L_b1
L_w7_issue:
s_cmp_eq_u32 {s(S_KVJOB)}, 0
s_cbranch_scc1 L_w7_nokv""")
for u in range(4):
    dma_chunk_kv(u)
A(f"""s_waitcnt vmcnt(32)
s_cmp_lg_u32 {s(S_T0)}, 0
s_cbranch_scc1 L_b1
v_mov_b32 {v(V_A)}, 0
s_mov_b64 exec, 1
buffer_store_dword {v(V_ONE)}, {v(V_A)}, {srd(R_DBG)}, 0 offen sc1
s_mov_b64 exec, -1
s_branch L_b1
L_w7_nokv:
s_waitcnt vmcnt(0)
L_b1:
s_waitcnt lgkmcnt(0)""")
A(f"""s_and_b32 {s(S_T1)}, {s(S_WAVE)}, 1
s_lshr_b32 {s(S_T2)}, {s(S_WAVE)}, 1
v_lshl_add_u32 {v(V_A)}, {s(S_T1)}, 5, {v(V_T)}
v_mul_u32_u24 {v(V_A)}, 912, {v(V_A)}
v_lshl_add_u32 {v(V_A)}, {v(V_H)}, 4, {v(V_A)}
s_mul_i32 {s(S_T3)}, {s(S_T2)}, 224
v_add_u32 {v(V_A)}, {s(S_T3)}, {v(V_A)}
s_barrier""")
stamp("x_landed")
SB = 32
for i in range(7):
    A(f"ds_read_b128 {v(SB+4*i,4)}, {v(V_A)} offset:{32*i}")
A(f"""s_mov_b32 {s(S_T3)}, {ONES}
v_mov_b32 v24, 0
v_mov_b32 v25, 0
v_mov_b32 v26, 0
v_mov_b32 v27, 0""")
for i in range(7):
    A(f"s_waitcnt lgkmcnt({6-i})")
    for d in range(4):
        r_ = SB + 4*i + d
        A(f"v_dot2_f32_bf16 {v(24+(d&1))}, {v(r_)}, {s(S_T3)}, {v(24+(d&1))}")
        A(f"v_dot2_f32_bf16 {v(26+(d&1))}, {v(r_)}, {v(r_)}, {v(26+(d&1))}")
A(f"""v_lshl_add_u32 {v(V_B)}, {s(S_T1)}, 5, {v(V_T)}
v_lshlrev_b32 {v(V_B)}, 3, {v(V_B)}
v_lshl_add_u32 {v(V_B)}, {v(V_H)}, 2, {v(V_B)}
s_lshl_b32 {s(S_T2)}, {s(S_T2)}, 9
s_add_u32 {s(S_T2)}, {s(S_T2)}, {L_STATP}
v_add_u32 {v(V_B)}, {s(S_T2)}, {v(V_B)}
v_add_f32 v24, v24, v25
v_add_f32 v26, v26, v27""")
swap_sum2(24, 26)
A(f"ds_write_b32 {v(V_B)}, v24")
A(f"""v_lshl_add_u32 {v(V_XB)}, {s(S_HI)}, 5, {v(V_T)}
v_mul_u32_u24 {v(V_XB)}, 912, {v(V_XB)}
v_lshl_add_u32 {v(V_XB)}, {v(V_H)}, 4, {v(V_XB)}
v_bfe_u32 {v(V_A)}, {v(V_LANE)}, 2, 2
v_and_b32 {v(V_B)}, 3, {v(V_LANE)}
v_bfe_u32 {v(V_C)}, {v(V_LANE)}, 4, 1
v_lshlrev_b32 {v(V_B)}, 3, {v(V_B)}
v_lshl_add_u32 {v(V_B)}, {v(V_C)}, 5, {v(V_B)}
v_lshlrev_b32 {v(V_D)}, 1, {v(V_H)}
v_lshl_add_u32 {v(V_D)}, {v(V_A)}, 2, {v(V_D)}
v_mul_u32_u24 {v(V_WA)}, 112, {v(V_D)}
v_add_u32 {v(V_WA)}, {v(V_WA)}, {v(V_B)}
v_lshl_add_u32 {v(V_D)}, {v(V_H)}, 3, {v(V_A)}
v_mul_u32_u24 {v(V_WA2)}, 56, {v(V_D)}
v_add_u32 {v(V_WA2)}, {v(V_WA2)}, {v(V_B)}
v_lshl_add_u32 {v(V_TRB)}, {v(V_D)}, 6, {v(V_B)}
v_and_b32 {v(V_D)}, 1, {v(V_LANE)}
v_cmp_eq_u32 vcc, {v(V_D)}, {v(V_C)}
v_mov_b32 {v(V_D)}, {ONES}""")
for i in range(4):
    A(f"v_cndmask_b32 {v(V_SEL+i)}, 0, {v(V_D)}, vcc")
A(f"""s_mov_b32 {s(S_C0)}, {fh(-2*0.7978845608028654*LOG2E)}
s_mov_b32 {s(S_C1)}, {fh(-2*0.7978845608028654*LOG2E*0.044715)}
s_cmp_ge_u32 {s(S_WAVE)}, 4
s_cbranch_scc1 L_role_A""")

BF, AF, ACC, CS4, AF2, ACC2, CS24 = 32, 48, 64, 80, 84, 100, 116
CSX = 120
TMP = 136
VMW = [6, 4, 4, 4, 4, 2, 0]

def stats_final():
    A(f"""v_lshl_add_u32 {v(V_A)}, {s(S_HI)}, 5, {v(V_T)}
    v_lshlrev_b32 {v(V_A)}, 3, {v(V_A)}
    v_add_u32 {v(V_A)}, {L_STATP}, {v(V_A)}""")
    for q in range(4):
        A(f"ds_read_b64 {v(TMP+2*q,2)}, {v(V_A)} offset:{512*q}")
    A(f"""s_waitcnt lgkmcnt(0)
    v_add_f32 {v(TMP)}, {v(TMP)}, {v(TMP+2)}
    v_add_f32 {v(TMP+1)}, {v(TMP+1)}, {v(TMP+3)}
    v_add_f32 {v(TMP+4)}, {v(TMP+4)}, {v(TMP+6)}
    v_add_f32 {v(TMP+5)}, {v(TMP+5)}, {v(TMP+7)}
    v_add_f32 {v(TMP)}, {v(TMP)}, {v(TMP+4)}
    v_add_f32 {v(TMP+1)}, {v(TMP+1)}, {v(TMP+5)}
    v_mul_f32 {v(V_M)}, {fh(1/448)}, {v(TMP)}
    v_mul_f32 {v(TMP+1)}, {fh(1/448)}, {v(TMP+1)}
    v_fma_f32 {v(TMP+1)}, -{v(V_M)}, {v(V_M)}, {v(TMP+1)}
    v_max_f32 {v(TMP+1)}, 0, {v(TMP+1)}
    v_add_f32 {v(TMP+2)}, {fh(1e-5)}, {v(TMP+1)}
    v_rsq_f32 {v(V_R)}, {v(TMP+2)}
    v_mul_f32 {v(TMP+1)}, {v(TMP+1)}, {v(V_R)}
    v_fmaak_f32 {v(TMP+1)}, {v(TMP+1)}, {v(V_R)}, {fh(1e-5)}
    v_rsq_f32 {v(TMP+1)}, {v(TMP+1)}
    v_mul_f32 {v(V_RR)}, {v(V_R)}, {v(TMP+1)}""")

def phaseA_loop(role, job):
    for u in range(7):
        for i in range(4):
            A(f"ds_read_b128 {v(BF+4*i,4)}, {v(V_XB)} offset:{128*u + 32*i}")
        if role == "G":
            A(f"s_waitcnt vmcnt({VMW[u]})")
        else:
            l0, l1 = lab("w7"), lab("w7e")
            A(f"""s_cmp_eq_u32 {s(S_WAVE)}, 7
            s_cbranch_scc1 {l0}
            s_waitcnt vmcnt({VMW[u]})
            s_branch {l1}
            {l0}:
            s_waitcnt vmcnt({4*VMW[u]})
            {l1}:""")
        if u == 0:
            A("s_waitcnt lgkmcnt(0)")
        A("s_barrier")
        if 1 <= u <= 3:
            if role == "G":
                dma_chunk_w(u + 3)
            else:
                l0, l1 = lab("r7"), lab("r7e")
                A(f"s_cmp_eq_u32 {s(S_WAVE)}, 7\ns_cbranch_scc1 {l0}")
                dma_chunk_w(u + 3)
                A(f"s_branch {l1}\n{l0}:\ns_cmp_eq_u32 {s(S_KVJOB)}, 0\ns_cbranch_scc1 {l1}")
                dma_chunk_kv(u + 3)
                A(f"{l1}:")
        if u == 0:
            stats_final()
        per = 4 if job else 2
        for i in range(4):
            for ii in range(2):
                trread(AF + 4*i + 2*ii, V_WA, (u % 4) * 7168 + (16*i + ii) * 112)
            if job:
                for ii in range(2):
                    trread(AF2 + 4*i + 2*ii, V_WA2, (u % 4) * 7168 + (16*i + 4*ii) * 56)
        for i in range(4):
            A(f"s_waitcnt lgkmcnt({per*(3-i)})")
            z = "0" if (u == 0 and i == 0) else None
            if job == "K":
                mfma(ACC2, AF2 + 4*i, BF + 4*i, z); mfma16(CS24, AF2 + 4*i, V_SEL, z)
            if job == "V":
                mfma(ACC2, BF + 4*i, AF2 + 4*i, z); mfma16(CS24, V_SEL, AF2 + 4*i, z)
            mfma(ACC, AF + 4*i, BF + 4*i, z); mfma16(CS4, AF + 4*i, V_SEL, z)

def center_scale(acc, csx, vscale):
    for i in range(16): A(f"v_fma_f32 {v(acc+i)}, -{v(V_M)}, {v(csx+i)}, {v(acc+i)}")
    for i in range(16): A(f"v_mul_f32 {v(acc+i)}, {v(acc+i)}, {v(vscale)}")
def pack16(src, dst):
    for k in range(8): A(f"v_cvt_pk_bf16_f32 {v(dst+k)}, {v(src+2*k)}, {v(src+2*k+1)}")

XC = 176
X1 = 184
def redirect(vaddr, first_bad, only_lo1):
    A(f"""v_and_b32 {v(V_A)}, 63, {v(V_TRB)}
    v_cmp_le_u32 vcc, {first_bad}, {v(V_A)}""")
    A(f"s_lshl_b32 {s(S_T2)}, {s(S_LO)}, 5\nv_mov_b32 {v(V_A)}, {s(S_T2)}" if only_lo1 else f"v_mov_b32 {v(V_A)}, 32")
    A(f"v_cndmask_b32 {v(V_A)}, 0, {v(V_A)}, vcc\nv_sub_u32 {v(vaddr)}, {v(vaddr)}, {v(V_A)}")
A(f"""s_lshl_b32 {s(S_T1)}, {s(S_LO)}, 6
s_add_u32 {s(S_T1)}, {s(S_T1)}, {L_W1R}
v_add_u32 {v(V_WA)}, {s(S_T1)}, {v(V_WA)}""")
redirect(V_WA, 48, True)
phaseA_loop("G", None)
stamp("G_gemm1")
A(f"""s_mul_i32 {s(S_T1)}, {s(S_J)}, 7
s_lshl_b32 {s(S_T2)}, {s(S_LO)}, 2
s_add_u32 {s(S_T1)}, {s(S_T1)}, {s(S_T2)}
s_lshl_b32 {s(S_T2)}, {s(S_T1)}, 4
v_add_u32 {v(V_A)}, {s(S_T2)}, {v(V_XB)}
ds_read_b128 {v(XC,4)}, {v(V_A)}
ds_read_b128 {v(XC+4,4)}, {v(V_A)} offset:32""")
colsum_spread(CS4, CSX, V_A)
center_scale(ACC, CSX, V_RR)
A(f"v_mov_b32 {v(V_D)}, {s(S_C0)}")
gelu16(ACC, 16, TMP, None)
pack16(ACC, TMP)
V_CH = V_PAT
A(f"""v_lshlrev_b32 {v(V_CH)}, 4, {v(V_T)}
v_lshl_add_u32 {v(V_CH)}, {v(V_H)}, 10, {v(V_CH)}
s_lshl_b32 {s(S_T1)}, {s(S_T1)}, 10
s_lshl_b32 {s(S_T2)}, {s(S_HI)}, 9
s_add_u32 {s(S_T1)}, {s(S_T1)}, {s(S_T2)}
s_add_u32 {s(S_N0)}, {s(S_T1)}, {s(S_GB)}""")
def store_chunks(src8, region):
    A(f"""s_add_u32 {s(S_T1)}, {s(S_N0)}, {region}
    buffer_store_dwordx4 {v(src8,4)}, {v(V_CH)}, {srd(R_WS)}, {s(S_T1)} offen sc1
    s_cmp_eq_u32 {s(S_LO)}, 1
    s_cselect_b32 exec_hi, 0, -1
    buffer_store_dwordx4 {v(src8+4,4)}, {v(V_CH)}, {srd(R_WS)}, {s(S_T1)} offen offset:2048 sc1
    s_mov_b32 exec_hi, -1""")
for a_ in range(2):
    for d in range(2):
        A(f"v_permlane32_swap_b32 {v(TMP+4*a_+d)}, {v(TMP+4*a_+2+d)}")
store_chunks(TMP, G_H)
A("s_waitcnt vmcnt(0) lgkmcnt(0)\ns_barrier")
stamp("G_b3")
A(f"s_setprio {OPT['prio']}")
l0 = lab("fh")
A(f"""s_cmp_lg_u32 {s(S_WAVE)}, 0
s_cbranch_scc1 {l0}
s_lshl_b32 {s(S_T4)}, {s(S_G)}, 3
s_add_u32 {s(S_T4)}, {s(S_T4)}, {s(S_J)}
s_lshl_b32 {s(S_T4)}, {s(S_T4)}, 7
v_mov_b32 {v(V_A)}, 0
s_mov_b64 exec, 1
buffer_store_dword {v(V_ONE)}, {v(V_A)}, {srd(R_WS)}, {s(S_T4)} offen sc1
s_mov_b64 exec, -1
{l0}:""")
if OPT["noG"]:
    for _ in range(3): lds_arrive(SY_GBAR)
    stamp("G_end", True)
    A("s_endpgm")
V_B896, V_B3584, V_STR, V_BB = V_WA, V_WA2, V_XB, 19
A(f"""v_lshrrev_b32 {v(V_A)}, 2, {v(V_LANE)}
v_and_b32 {v(V_B)}, 3, {v(V_LANE)}
v_lshlrev_b32 {v(V_B)}, 4, {v(V_B)}
v_mul_u32_u24 {v(V_B896)}, 896, {v(V_A)}
v_add_u32 {v(V_B896)}, {v(V_B896)}, {v(V_B)}
v_mul_u32_u24 {v(V_B3584)}, 3584, {v(V_A)}
v_add_u32 {v(V_B3584)}, {v(V_B3584)}, {v(V_B)}
s_mul_i32 {s(S_RING)}, {s(S_W4)}, 14336
s_add_u32 {s(S_RING)}, {s(S_RING)}, {L_RING}""")
def slice_block_base(dst):
    A(f"""s_mul_i32 {s(dst)}, {s(S_LO)}, {224*896}
    s_mul_i32 {s(S_T2)}, {s(S_J)}, 112
    s_add_u32 {s(dst)}, {s(dst)}, {s(S_T2)}
    s_lshl_b32 {s(S_T2)}, {s(S_HI)}, 6
    s_add_u32 {s(dst)}, {s(dst)}, {s(S_T2)}""")
slice_block_base(S_T1)
A(f"s_mul_i32 m0, {s(S_W4)}, 14336")
for i in range(14):
    A(f"buffer_load_dwordx4 {v(V_B896)}, {srd(R_W2)}, {s(S_T1)} offen lds")
    if i < 13:
        A(f"s_add_u32 m0, m0, 1024\ns_add_u32 {s(S_T1)}, {s(S_T1)}, {16*896}")
A(f"""v_and_b32 {v(V_A)}, 7, {v(V_LANE)}
v_and_b32 {v(V_B)}, 2, {v(V_LANE)}
v_add_u32 {v(V_B)}, {s(S_G)}, {v(V_B)}
v_add_u32 {v(V_B)}, -1, {v(V_B)}
v_mov_b32 {v(V_C)}, {s(S_G)}
v_cmp_gt_u32 vcc, 32, {v(V_B)}
v_cndmask_b32 {v(V_B)}, {v(V_C)}, {v(V_B)}, vcc
v_cmp_gt_u32 vcc, 8, {v(V_LANE)}
v_cndmask_b32 {v(V_B)}, {v(V_B)}, {v(V_C)}, vcc
v_lshl_add_u32 {v(V_A)}, {v(V_B)}, 3, {v(V_A)}
v_lshlrev_b32 {v(V_A)}, 7, {v(V_A)}""")
HA, HB_ = 24, 25
A(f"""s_lshl_b32 {s(S_T1)}, {s(S_G)}, 6
s_lshl_b32 {s(S_T2)}, {s(S_HI)}, 5
s_add_u32 {s(S_T1)}, {s(S_T1)}, {s(S_T2)}
s_add_u32 {s(S_T2)}, {s(S_LO)}, 1
s_sub_u32 {s(S_T3)}, {s(S_T1)}, {s(S_T2)}
s_add_u32 {s(S_T1)}, {s(S_T1)}, {s(S_T2)}
s_mov_b32 {s(S_T2)}, {W_GBS}""")
for dst, sb in ((HA, S_T3), (HB_, S_T1)):
    A(f"""v_add_u32 {v(V_B)}, {s(sb)}, {v(V_T)}
    v_cmp_gt_u32 vcc, 2048, {v(V_B)}
    v_lshrrev_b32 {v(V_C)}, 6, {v(V_B)}
    v_and_b32 {v(V_B)}, 63, {v(V_B)}
    v_mul_lo_u32 {v(V_C)}, {v(V_C)}, {s(S_T2)}
    v_lshl_add_u32 {v(V_C)}, {v(V_B)}, 4, {v(V_C)}
    v_lshl_add_u32 {v(V_C)}, {v(V_H)}, 10, {v(V_C)}
    v_mov_b32 {v(V_B)}, {OOB}
    v_cndmask_b32 {v(dst)}, {v(V_B)}, {v(V_C)}, vcc""")
poll_flags(V_A, "0", 16, V_B)
stamp("G_hflags")
lds_arrive(SY_GBAR)
KB = 32
AM, AO, KA = 88, 104, 120
def ksplit_loads(addr_lo, addr_hi, sbase):
    for i in range(14):
        if i % 2 == 0:
            A(f"s_add_u32 {s(S_T2)}, {s(sbase)}, {2048*i}")
        A(f"buffer_load_dwordx4 {v(KB+4*i,4)}, {v(addr_lo if i < 7 else addr_hi)}, {srd(R_WS)}, {s(S_T2)} offen offset:{2048*(i%2)} sc1")
def ksplit_gemm(ldsbase, younger, epoch):
    A(f"""s_mul_i32 {s(S_T1)}, {s(S_LO)}, {3*14336}
    s_add_u32 {s(S_T1)}, {s(S_T1)}, {ldsbase}
    v_add_u32 {v(V_A)}, {s(S_T1)}, {v(V_TRB)}
    s_mul_i32 {s(S_T1)}, {s(S_LO)}, {-14336}
    s_add_u32 {s(S_T1)}, {s(S_T1)}, {ldsbase + 2*14336}
    v_add_u32 {v(V_B)}, {s(S_T1)}, {v(V_TRB)}""")
    def rd(i):
        b = KA + 8 * (i % 2)
        trread(b, V_A, 1024*i); trread(b + 2, V_A, 1024*i + 256)
        trread(b + 4, V_B, 1024*i); trread(b + 6, V_B, 1024*i + 256)
    rd(0)
    for i in range(14):
        if i < 13: rd(i + 1)
        A(f"s_waitcnt vmcnt({13 - i + younger}) lgkmcnt({4 if i < 13 else 0})")
        z = "0" if i == 0 else None
        b = KA + 8 * (i % 2)
        mfma(AO, b + 4, KB + 4*i, z); mfma(AM, b, KB + 4*i, z)
    A(f"""s_lshl_b32 {s(S_T1)}, {s(S_W4)}, 12
    s_add_u32 {s(S_T1)}, {s(S_T1)}, {L_HREG}
    v_add_u32 {v(V_A)}, {s(S_T1)}, {v(V_L16)}
    s_xor_b32 {s(S_T1)}, {s(S_W4)}, 1
    s_lshl_b32 {s(S_T2)}, {s(S_T1)}, 12
    s_add_u32 {s(S_T2)}, {s(S_T2)}, {L_HREG}
    v_add_u32 {v(V_B)}, {s(S_T2)}, {v(V_L16)}
    v_lshl_add_u32 {v(V_C)}, {s(S_W4)}, 2, {v(V_SY)}
    v_lshl_add_u32 {v(V_D)}, {s(S_T1)}, 2, {v(V_SY)}""")
    for q in range(4):
        A(f"ds_write_b128 {v(V_A)}, {v(AO+4*q,4)} offset:{1024*q}")
    A(f"""s_mov_b64 exec, 1
    ds_add_u32 {v(V_C)}, {v(V_ONE)} offset:{SY_PF}
    s_mov_b64 exec, -1""")
    lds_wait(SY_PF, epoch, V_C, V_D)
    for q in range(4):
        A(f"ds_read_b128 {v(AO+4*q,4)}, {v(V_B)} offset:{1024*q}")
    for q in range(4):
        A(f"s_waitcnt lgkmcnt({3-q})")
        for i in range(4): A(f"v_add_f32 {v(AM+4*q+i)}, {v(AM+4*q+i)}, {v(AO+4*q+i)}")
    for a_ in range(2):
        for i in range(4): A(f"v_permlane32_swap_b32 {v(AM+8*a_+i)}, {v(AM+8*a_+4+i)}")

A(f"s_mul_i32 {s(S_T1)}, {s(S_LO)}, {28*1024}\ns_add_u32 {s(S_T1)}, {s(S_T1)}, {W_GB0 + G_H}")
ksplit_loads(HA, HB_, S_T1)
A(f"""s_mul_i32 {s(S_SOFF)}, {s(S_J)}, 448
s_lshl_b32 {s(S_T1)}, {s(S_W4)}, 6
s_add_u32 {s(S_SOFF)}, {s(S_SOFF)}, {s(S_T1)}
s_mov_b32 {s(S_STRIDE)}, {16*3584}
v_mov_b32 {v(V_STR)}, {v(V_B3584)}
s_mov_b32 m0, {s(S_RING)}""")
for i in range(14):
    A(f"buffer_load_dwordx4 {v(V_STR)}, {srd(R_STR)}, {s(S_SOFF)} offen lds")
    A(f"s_add_u32 {s(S_SOFF)}, {s(S_SOFF)}, {s(S_STRIDE)}")
    if i < 13: A("s_add_u32 m0, m0, 1024")
lds_wait(SY_GBAR, 4, V_C)
ksplit_gemm(L_X, 14, 1)
stamp("G_gemm2")
A(f"v_mul_f32 {v(V_A)}, {v(V_M)}, {v(V_R)}")
for i in range(16): A(f"v_sub_f32 {v(AM+i)}, {v(AM+i)}, {v(V_A)}")
for k in range(8):
    A(f"v_lshlrev_b32 {v(TMP+2*k)}, 16, {v(XC+k)}\nv_and_b32 {v(TMP+2*k+1)}, 0xffff0000, {v(XC+k)}")
for i in range(16): A(f"v_fma_f32 {v(X1+i)}, {v(TMP+i)}, {v(V_R)}, {v(AM+i)}")
l0 = lab("z")
A(f"s_cmp_eq_u32 {s(S_LO)}, 0\ns_cbranch_scc1 {l0}")
exec_hi()
for i in range(8): A(f"v_mov_b32 {v(X1+8+i)}, 0")
exec_all()
A(f"{l0}:")
pack16(X1, TMP)
store_chunks(TMP, G_X1)
A(f"v_add_f32 {v(V_A)}, {v(X1)}, {v(X1+1)}\nv_mul_f32 {v(V_B)}, {v(X1)}, {v(X1)}\nv_mul_f32 {v(V_C)}, {v(X1+1)}, {v(X1+1)}\nv_add_f32 {v(V_D)}, {v(X1+2)}, {v(X1+3)}")
for i in range(2, 16):
    if i >= 4:
        A(f"v_add_f32 {v(V_A if i % 2 == 0 else V_D)}, {v(V_A if i % 2 == 0 else V_D)}, {v(X1+i)}")
    A(f"v_fmac_f32 {v(V_B if i % 2 == 0 else V_C)}, {v(X1+i)}, {v(X1+i)}")
A(f"v_add_f32 {v(V_A)}, {v(V_A)}, {v(V_D)}\nv_add_f32 {v(V_B)}, {v(V_B)}, {v(V_C)}")
swap_sum2(V_A, V_B)
V_STA = 26
A(f"""v_lshlrev_b32 {v(V_STA)}, 4, {v(V_T)}
v_lshl_add_u32 {v(V_STA)}, {v(V_H)}, 11, {v(V_STA)}
s_lshr_b32 {s(S_T1)}, {s(S_J)}, 1
s_lshl_b32 {s(S_T1)}, {s(S_T1)}, 9
s_and_b32 {s(S_T2)}, {s(S_J)}, 1
s_lshl_b32 {s(S_T2)}, {s(S_T2)}, 1
s_add_u32 {s(S_T2)}, {s(S_T2)}, {s(S_LO)}
s_lshl_b32 {s(S_T2)}, {s(S_T2)}, 2
s_add_u32 {s(S_T1)}, {s(S_T1)}, {s(S_T2)}
s_lshl_b32 {s(S_T2)}, {s(S_HI)}, 12
s_add_u32 {s(S_T1)}, {s(S_T1)}, {s(S_T2)}
s_add_u32 {s(S_T1)}, {s(S_T1)}, {s(S_GB)}
s_add_u32 {s(S_T1)}, {s(S_T1)}, {G_ST}
buffer_store_dword {v(V_A)}, {v(V_STA)}, {srd(R_WS)}, {s(S_T1)} offen sc1""")
signal_last(SY_CX1, F_X1, V_A)
stamp("G_x1pub")
poll_group(F_X1, V_A, V_B)
stamp("G_x1flags")
A(f"""s_mul_i32 {s(S_T1)}, {s(S_W4)}, 14336
s_mov_b32 m0, {s(S_T1)}
s_add_u32 {s(S_T1)}, {s(S_T1)}, {s(S_GB)}
s_add_u32 {s(S_T1)}, {s(S_T1)}, {G_X1}""")
for i in range(14):
    A(f"buffer_load_dwordx4 {v(V_L16)}, {srd(R_WS)}, {s(S_T1)} offen offset:{1024*(i%4)} sc1 lds")
    if i % 4 == 3:
        A(f"s_add_u32 m0, m0, 4096\ns_add_u32 {s(S_T1)}, {s(S_T1)}, 4096")
STL = 32
A(f"s_add_u32 {s(S_T1)}, {s(S_GB)}, {G_ST}\ns_add_u32 {s(S_T2)}, {s(S_GB)}, {G_ST + 4096}")
for tt in range(2):
    for q in range(4):
        A(f"buffer_load_dwordx4 {v(STL+16*tt+4*q,4)}, {v(V_STA)}, {srd(R_WS)}, {s(S_T1 + tt)} offen offset:{512*q} sc1")
A("s_waitcnt vmcnt(8)")
lds_arrive(SY_GBAR)
A("s_waitcnt vmcnt(0)")
M1, R1 = 24, 28
for tt in range(2):
    b = STL + 16*tt
    for w_ in (8, 4, 2, 1):
        for i in range(w_): A(f"v_add_f32 {v(b+i)}, {v(b+i)}, {v(b+w_+i)}")
    A(f"""v_mul_f32 {v(b)}, {fh(1/448)}, {v(b)}
    v_mov_b32 {v(b+1)}, {v(b)}
    v_permlane32_swap_b32 {v(b)}, {v(b+1)}
    v_mov_b32 {v(M1+tt)}, {v(b)}
    v_fma_f32 {v(b+1)}, -{v(b)}, {v(b)}, {v(b+1)}
    v_max_f32 {v(b+1)}, 0, {v(b+1)}
    v_add_f32 {v(b+1)}, {fh(1e-5)}, {v(b+1)}
    v_rsq_f32 {v(R1+tt)}, {v(b+1)}""")
V_TR = 27
GA, GBf, GACC, GCS = 32, 40, 64, 96
A(f"""v_add_u32 {v(V_TR)}, {s(S_RING)}, {v(V_TRB)}
v_mov_b32 {v(V_BB)}, {v(V_CH)}
s_cmp_eq_u32 {s(S_W4)}, 3
s_cselect_b32 {s(S_NF)}, 2, 4
s_mov_b32 {s(S_PASS)}, 0
v_mov_b32 {v(V_D)}, {s(S_C0)}""")
lds_wait(SY_GBAR, 8, V_C)
stamp("G_x1landed")
def refill(slot):
    A(f"""s_add_u32 m0, {s(S_RING)}, {1024*slot}
    s_nop 0
    buffer_load_dwordx4 {v(V_STR)}, {srd(R_STR)}, {s(S_SOFF)} offen lds
    s_add_u32 {s(S_SOFF)}, {s(S_SOFF)}, {s(S_STRIDE)}""")
A("L_g3_pass:")
l_t, l_w4, l_go = lab("tileb"), lab("tow4"), lab("go")
A(f"""s_add_u32 {s(S_T1)}, {s(S_PASS)}, 1
s_cmp_eq_u32 {s(S_T1)}, {s(S_NF)}
s_cbranch_scc1 {l_w4}
s_cmp_eq_u32 {s(S_T1)}, 2
s_cbranch_scc0 {l_go}
s_sub_u32 {s(S_SOFF)}, {s(S_SOFF)}, {448*3584 - 256}
s_branch {l_go}
{l_w4}:
s_mov_b64 {s(R_STR,2)}, {s(R_W4,2)}
v_mov_b32 {v(V_STR)}, {v(V_B896)}
s_mov_b32 {s(S_STRIDE)}, {16*896}
s_mul_i32 {s(S_T1)}, {s(S_W4)}, 3
s_cmp_eq_u32 {s(S_W4)}, 3
s_cselect_b32 {s(S_T1)}, 10, {s(S_T1)}
s_add_u32 {s(S_NN)}, {s(S_HI)}, 3
s_mov_b32 {s(S_CNT)}, {s(S_T1)}
s_lshl_b32 {s(S_T1)}, {s(S_T1)}, 6
s_mul_i32 {s(S_SOFF)}, {s(S_J)}, {224*896}
s_add_u32 {s(S_SOFF)}, {s(S_SOFF)}, {s(S_T1)}
{l_go}:""")
l_z = lab("nz")
A(f"s_bitcmp1_b32 {s(S_PASS)}, 0\ns_cbranch_scc1 {l_z}")
for i in range(36): A(f"v_mov_b32 {v(GACC+i)}, 0")
A(f"{l_z}:")
def g3_reads(i):
    a = GA + 4*(i % 2); b = GBf + 8*(i % 2)
    trread(a, V_TR, 1024*i); trread(a + 2, V_TR, 1024*i + 256)
    A(f"ds_read_b128 {v(b,4)}, {v(V_BB)} offset:{2048*i}\nds_read_b128 {v(b+4,4)}, {v(V_BB)} offset:{2048*i + 512}")
A("s_waitcnt vmcnt(13)")
g3_reads(0)
for i in range(14):
    if i < 13:
        A("s_waitcnt vmcnt(12)")
        g3_reads(i + 1)
    A(f"s_waitcnt lgkmcnt({4 if i < 13 else 0})")
    a = GA + 4*(i % 2); b = GBf + 8*(i % 2)
    mfma(GACC, a, b)
    refill(i)
    mfma(GACC + 16, a, b + 4)
    mfma16(GCS, a, V_SEL)
l_ep = lab("ep")
A(f"""s_add_u32 {s(S_PASS)}, {s(S_PASS)}, 1
s_bitcmp1_b32 {s(S_PASS)}, 0
s_cbranch_scc0 {l_ep}
v_add_u32 {v(V_BB)}, 28672, {v(V_BB)}
s_branch L_g3_pass
{l_ep}:
v_mov_b32 {v(V_BB)}, {v(V_CH)}""")
colsum_spread(GCS, CSX, V_A)
A(f"""s_sub_u32 {s(S_T1)}, {s(S_PASS)}, 2
s_lshl_b32 {s(S_T1)}, {s(S_T1)}, 1
s_add_u32 {s(S_T1)}, {s(S_T1)}, {s(S_W4)}
s_lshl_b32 {s(S_T1)}, {s(S_T1)}, 12
s_add_u32 {s(S_T1)}, {s(S_T1)}, {L_HREG}
v_add_u32 {v(V_A)}, {s(S_T1)}, {v(V_CH)}""")
for tt in range(2):
    acc = GACC + 16*tt
    for i in range(16): A(f"v_fma_f32 {v(acc+i)}, -{v(M1+tt)}, {v(CSX+i)}, {v(acc+i)}")
    for i in range(16): A(f"v_mul_f32 {v(acc+i)}, {v(acc+i)}, {v(R1+tt)}")
    gelu16(acc, 16, TMP, None)
    pack16(acc, TMP + 16)
    A(f"ds_write_b128 {v(V_A)}, {v(TMP+16,4)} offset:{512*tt}\nds_write_b128 {v(V_A)}, {v(TMP+20,4)} offset:{2048 + 512*tt}")
A(f"""s_cmp_lt_u32 {s(S_PASS)}, {s(S_NF)}
s_cbranch_scc1 L_g3_pass
s_waitcnt lgkmcnt(0)""")
lds_arrive(SY_GBAR)
stamp("G_gemm3")
A(f"""v_bfe_u32 {v(V_A)}, {v(V_LANE)}, 2, 2
v_lshl_add_u32 {v(V_A)}, {v(V_H)}, 2, {v(V_A)}
v_lshlrev_b32 {v(V_A)}, 6, {v(V_A)}
v_and_b32 {v(V_B)}, 63, {v(V_TRB)}
v_add3_u32 {v(V_TR)}, {v(V_A)}, {v(V_B)}, {s(S_RING)}
v_add_u32 {v(V_A)}, {L_HREG}, {v(V_CH)}""")
lds_wait(SY_GBAR, 12, V_C)
HF = 64
G4A, G4ACC, G4T = 32, 200, 40
for i in range(14):
    A(f"ds_read_b128 {v(HF+8*i,4)}, {v(V_A)} offset:{2048*i}\nds_read_b128 {v(HF+8*i+4,4)}, {v(V_A)} offset:{2048*i + 512}")
    if i in (6, 13): A("s_waitcnt lgkmcnt(0)")
lds_arrive(SY_GBAR)
A(f"""s_mul_i32 {s(S_T1)}, {s(S_J)}, 57344
s_add_u32 {s(S_T1)}, {s(S_T1)}, {s(S_GB)}
s_lshl_b32 {s(S_CNT)}, {s(S_CNT)}, 12
s_add_u32 {s(S_CNT)}, {s(S_CNT)}, {s(S_T1)}
s_add_u32 {s(S_CNT)}, {s(S_CNT)}, {G_P}
s_mov_b32 {s(S_PASS)}, 0
L_g4_pass:""")
l_wo, l_go = lab("towo"), lab("go4")
A(f"""s_add_u32 {s(S_PASS)}, {s(S_PASS)}, 1
s_cmp_eq_u32 {s(S_PASS)}, {s(S_NN)}
s_cbranch_scc1 {l_wo}
s_sub_u32 {s(S_SOFF)}, {s(S_SOFF)}, {224*896 - 64}
s_branch {l_go}
{l_wo}:
s_mov_b64 {s(R_STR,2)}, {s(R_WO,2)}
s_mov_b32 {s(R_STR+2)}, 401408""")
slice_block_base(S_SOFF)
A(f"{l_go}:")
def g4_reads(i):
    a = G4A + 4*(i % 2)
    trread(a, V_TR, 1024*i); trread(a + 2, V_TR, 1024*i + 512)
A("s_waitcnt vmcnt(13)")
g4_reads(0)
for i in range(14):
    if i < 13:
        A("s_waitcnt vmcnt(12)")
        g4_reads(i + 1)
    A(f"s_waitcnt lgkmcnt({2 if i < 13 else 0})")
    a = G4A + 4*(i % 2)
    z = "0" if i == 0 else None
    mfma(G4ACC, a, HF + 8*i, z)
    refill(i)
    mfma(G4ACC + 16, a, HF + 8*i + 4, z)
for tt in range(2):
    t_ = G4T + 8*tt
    pack16(G4ACC + 16*tt, t_)
    for a_ in range(2):
        for d in range(2):
            A(f"v_permlane32_swap_b32 {v(t_+4*a_+d)}, {v(t_+4*a_+2+d)}")
    for a_ in range(2):
        A(f"buffer_store_dwordx4 {v(t_+4*a_,4)}, {v(V_CH)}, {srd(R_WS)}, {s(S_CNT)} offen offset:{2048*a_ + 512*tt} sc1")
A(f"""s_add_u32 {s(S_CNT)}, {s(S_CNT)}, 4096
s_cmp_lt_u32 {s(S_PASS)}, {s(S_NN)}
s_cbranch_scc1 L_g4_pass""")
signal_last(SY_CP, F_P, V_A)
lds_arrive(SY_GBAR)
stamp("G_gemm4")
poll_group(F_O, V_A, V_B)
stamp("G_oflags")
A(f"""s_mul_i32 {s(S_T1)}, {s(S_LO)}, {28*1024}
s_lshl_b32 {s(S_T2)}, {s(S_HI)}, 9
s_add_u32 {s(S_T1)}, {s(S_T1)}, {s(S_T2)}
s_add_u32 {s(S_T1)}, {s(S_T1)}, {s(S_GB)}
s_add_u32 {s(S_T1)}, {s(S_T1)}, {G_O}""")
ksplit_loads(V_CH, V_CH, S_T1)
lds_wait(SY_GBAR, 20, V_C)
ksplit_gemm(L_RING, 0, 2)
stamp("G_gemmo")
poll_group(F_P, V_A, V_B)
stamp("G_pflags")
A(f"""s_add_u32 {s(S_T1)}, {s(S_N0)}, {G_P}
s_mov_b32 {s(S_T2)}, 0x3f80
s_mov_b32 {s(S_T3)}, 0x3f800000""")
regs = list(range(32, 88, 4)) + [104, 108]
for p_ in range(8):
    for a_ in range(2):
        A(f"buffer_load_dwordx4 {v(regs[2*p_+a_],4)}, {v(V_CH)}, {srd(R_WS)}, {s(S_T1)} offen offset:{2048*a_} sc1")
    if p_ < 7: A(f"s_add_u32 {s(S_T1)}, {s(S_T1)}, 57344")
for p_ in range(8):
    for a_ in range(2):
        A(f"s_waitcnt vmcnt({15 - (2*p_+a_)})")
        for d in range(4):
            r_ = regs[2*p_+a_] + d
            A(f"v_dot2_f32_bf16 {v(X1+8*a_+2*d)}, {v(r_)}, {s(S_T2)}, {v(X1+8*a_+2*d)}")
            A(f"v_dot2_f32_bf16 {v(X1+8*a_+2*d+1)}, {v(r_)}, {s(S_T3)}, {v(X1+8*a_+2*d+1)}")
for i in range(16): A(f"v_mul_f32 {v(TMP+i)}, {fh(-LOG2E)}, {v(X1+i)}")
for i in range(16): A(f"v_exp_f32 {v(TMP+i)}, {v(TMP+i)}")
for i in range(16): A(f"v_add_f32 {v(TMP+i)}, 1.0, {v(TMP+i)}")
for i in range(16): A(f"v_rcp_f32 {v(TMP+i)}, {v(TMP+i)}")
for i in range(16): A(f"v_mul_f32 {v(X1+i)}, {v(X1+i)}, {v(AM+i)}")
for k in range(8):
    A(f"v_lshlrev_b32 {v(TMP+16+2*k)}, 16, {v(XC+k)}\nv_and_b32 {v(TMP+16+2*k+1)}, 0xffff0000, {v(XC+k)}")
for i in range(16): A(f"v_fma_f32 {v(X1+i)}, {v(X1+i)}, {v(TMP+i)}, {v(TMP+16+i)}")
pack16(X1, TMP)
A(f"""v_mul_u32_u24 {v(V_A)}, 896, {v(V_T)}
v_lshl_add_u32 {v(V_A)}, {v(V_H)}, 4, {v(V_A)}
s_lshl_b32 {s(S_T1)}, {s(S_G)}, 1
s_add_u32 {s(S_T1)}, {s(S_T1)}, {s(S_HI)}
s_mul_i32 {s(S_T1)}, {s(S_T1)}, {32*896}
s_mul_i32 {s(S_T2)}, {s(S_J)}, 112
s_add_u32 {s(S_T1)}, {s(S_T1)}, {s(S_T2)}
s_lshl_b32 {s(S_T2)}, {s(S_LO)}, 6
s_add_u32 {s(S_T1)}, {s(S_T1)}, {s(S_T2)}
buffer_store_dwordx4 {v(TMP,4)}, {v(V_A)}, {srd(R_OUT)}, {s(S_T1)} offen
s_cmp_eq_u32 {s(S_LO)}, 1
s_cselect_b32 exec_hi, 0, -1
buffer_store_dwordx4 {v(TMP+4,4)}, {v(V_A)}, {srd(R_OUT)}, {s(S_T1)} offen offset:32
s_mov_b32 exec_hi, -1""")
stamp("G_end", True)
A("s_endpgm")

nstamp[0] = 2
STAMPS_G = list(STAMPS); del STAMPS[2:]
A(f"""L_role_A:
s_mul_i32 {s(S_T1)}, {s(S_LO)}, 56
s_add_u32 {s(S_T1)}, {s(S_T1)}, {L_WQR}
v_add_u32 {v(V_WA)}, {s(S_T1)}, {v(V_WA)}
s_mul_i32 {s(S_T1)}, {s(S_LO)}, 3584
s_add_u32 {s(S_T1)}, {s(S_T1)}, {L_WKVR}
v_add_u32 {v(V_WA2)}, {s(S_T1)}, {v(V_WA2)}""")
redirect(V_WA, 56, True)
redirect(V_WA2, 56, False)
A(f"""s_mov_b32 {s(S_KMAX)}, 0
s_cmp_lg_u32 {s(S_HI)}, {s(S_J)}
s_cbranch_scc1 L_a_plain
s_lshl_b32 {s(S_N0)}, {s(S_G)}, 1
s_add_u32 {s(S_N0)}, {s(S_N0)}, {s(S_J)}
s_cmp_eq_u32 {s(S_LO)}, 1
s_cbranch_scc1 L_a_v""")
def zero_pad_dims(acc):
    exec_hi()
    for i in range(12, 16): A(f"v_mov_b32 {v(acc+i)}, 0")
    exec_all()
def norm2(acc, dst, t):
    A(f"v_mul_f32 {v(dst)}, {v(acc)}, {v(acc)}\nv_mul_f32 {v(t)}, {v(acc+1)}, {v(acc+1)}")
    for i in range(2, 16): A(f"v_fmac_f32 {v(dst if i % 2 == 0 else t)}, {v(acc+i)}, {v(acc+i)}")
    A(f"v_add_f32 {v(dst)}, {v(dst)}, {v(t)}")
    both_halves_sum(dst, t)
phaseA_loop("A", "K")
colsum_spread(CS24, CSX, V_A)
center_scale(ACC2, CSX, V_R)
zero_pad_dims(ACC2)
norm2(ACC2, V_A, V_B)
for sh in (1, 2, 4, 8):
    A(f"v_max_f32_dpp {v(V_A)}, {v(V_A)}, {v(V_A)} row_shr:{sh} row_mask:0xf bank_mask:0xf")
A(f"v_max_f32_dpp {v(V_A)}, {v(V_A)}, {v(V_A)} row_bcast:15 row_mask:0xa bank_mask:0xf")
pack16(ACC2, TMP)
A(f"v_readlane_b32 {s(S_KMAX)}, {v(V_A)}, 31")
exec_hi()
A(f"v_mov_b32 {v(TMP+6)}, {ONES}\nv_mov_b32 {v(TMP+7)}, 0x3f80")
exec_all()
A(f"""s_or_b32 {s(S_KMAX)}, {s(S_KMAX)}, 1
s_lshl_b32 {s(S_T1)}, {s(S_N0)}, 12
s_add_u32 {s(S_T1)}, {s(S_T1)}, {W_KV}
buffer_store_dwordx4 {v(TMP,4)}, {v(V_L16)}, {srd(R_WS)}, {s(S_T1)} offen sc1
buffer_store_dwordx4 {v(TMP+4,4)}, {v(V_L16)}, {srd(R_WS)}, {s(S_T1)} offen offset:1024 sc1
s_branch L_a_q""")
A("L_a_v:")
phaseA_loop("A", "V")
A(f"v_mul_f32 {v(V_A)}, {v(V_M)}, {v(V_R)}")
A(f"""v_cmp_eq_u32 vcc, 0, {v(V_H)}
v_lshl_add_u32 {v(V_B)}, {v(V_LANE)}, 2, {v(V_SY)}
v_add_u32 {v(V_B)}, {L_VST - L_SYNC}, {v(V_B)}
v_cndmask_b32 {v(V_A)}, {v(V_A)}, {v(V_R)}, vcc
ds_write_b32 {v(V_B)}, {v(V_A)}
v_lshlrev_b32 {v(V_B)}, 4, {v(V_H)}
v_add_u32 {v(V_B)}, {L_VST}, {v(V_B)}""")
for jj in range(4):
    A(f"ds_read_b128 {v(CSX+4*jj,4)}, {v(V_B)} offset:{32*jj}")
    A(f"ds_read_b128 {v(TMP+4*jj,4)}, {v(V_B)} offset:{128 + 32*jj}")
A(f"""v_and_b32 {v(V_A)}, 16, {v(V_LANE)}
v_cmp_eq_u32 vcc, 0, {v(V_A)}
v_cndmask_b32 {v(V_A)}, {v(CS24+1)}, {v(CS24)}, vcc
s_waitcnt lgkmcnt(0)""")
for i in range(16): A(f"v_mul_f32 {v(TMP+i)}, {v(TMP+i)}, {v(V_A)}")
for i in range(16): A(f"v_fma_f32 {v(ACC2+i)}, {v(ACC2+i)}, {v(CSX+i)}, -{v(TMP+i)}")
pack16(ACC2, TMP)
A(f"v_cmp_eq_u32 vcc, 28, {v(V_T)}\nv_mov_b32 {v(V_A)}, {ONES}")
for k in range(8): A(f"v_cndmask_b32 {v(TMP+k)}, {v(TMP+k)}, {v(V_A)}, vcc")
A(f"""s_lshl_b32 {s(S_T1)}, {s(S_N0)}, 12
s_add_u32 {s(S_T1)}, {s(S_T1)}, {W_KV}
buffer_store_dwordx4 {v(TMP,4)}, {v(V_L16)}, {srd(R_WS)}, {s(S_T1)} offen offset:2048 sc1
buffer_store_dwordx4 {v(TMP+4,4)}, {v(V_L16)}, {srd(R_WS)}, {s(S_T1)} offen offset:3072 sc1
s_branch L_a_q
L_a_plain:""")
phaseA_loop("A", None)
A("L_a_q:")
stamp("A_gemm1")
l0, l1 = lab("dbg"), lab("dbgok")
A(f"""s_cmp_lg_u32 {s(S_WAVE)}, 7
s_cbranch_scc1 {l1}
v_mov_b32 {v(V_A)}, 0
s_mov_b32 {s(S_SPIN)}, 0
{l0}:
buffer_load_dword {v(V_B)}, {v(V_A)}, {srd(R_DBG)}, 0 offen sc1
s_add_u32 {s(S_SPIN)}, {s(S_SPIN)}, 1
s_cmp_gt_u32 {s(S_SPIN)}, {SPIN}
s_cbranch_scc1 L_END
s_waitcnt vmcnt(0)
v_readfirstlane_b32 {s(S_T4)}, {v(V_B)}
s_cmp_eq_u32 {s(S_T4)}, 0
s_cbranch_scc1 {l0}
{l1}:""")
colsum_spread(CS4, CSX, V_A)
A(f"v_mul_f32 {v(V_RR)}, {fh(28 ** -0.5 * LOG2E)}, {v(V_R)}")
center_scale(ACC, CSX, V_RR)
zero_pad_dims(ACC)
norm2(ACC, V_A, V_B)
pack16(ACC, TMP + 16)
A(f"""s_lshl_b32 {s(S_T1)}, {s(S_W4)}, 7
s_add_u32 {s(S_T1)}, {s(S_T1)}, {L_QN}
v_lshl_add_u32 {v(V_B)}, {v(V_T)}, 2, {s(S_T1)}
ds_write_b32 {v(V_B)}, {v(V_A)}
s_lshl_b32 {s(S_T1)}, {s(S_W4)}, 11
s_add_u32 {s(S_T1)}, {s(S_T1)}, {L_QX}
v_add_u32 {v(V_B)}, {s(S_T1)}, {v(V_L16)}
ds_write_b128 {v(V_B)}, {v(TMP+16,4)}
ds_write_b128 {v(V_B)}, {v(TMP+20,4)} offset:1024
s_waitcnt vmcnt(0) lgkmcnt(0)
s_barrier""")
stamp("A_b3")
l0 = lab("fkv")
A(f"""s_cmp_eq_u32 {s(S_KMAX)}, 0
s_cbranch_scc1 {l0}
s_lshl_b32 {s(S_T4)}, {s(S_N0)}, 7
s_add_u32 {s(S_T4)}, {s(S_T4)}, {F_KV}
v_mov_b32 {v(V_A)}, 0
v_mov_b32 {v(V_B)}, {s(S_KMAX)}
s_mov_b64 exec, 1
buffer_store_dword {v(V_B)}, {v(V_A)}, {srd(R_WS)}, {s(S_T4)} offen sc1
s_mov_b64 exec, -1
{l0}:""")
QF, OA, SS, EE, PP, KV = 32, 64, 128, 160, 168, 176
A(f"v_add_u32 {v(V_B)}, {L_QX}, {v(V_L16)}")
for q in range(4):
    A(f"ds_read_b128 {v(QF+8*q,4)}, {v(V_B)} offset:{2048*q}\nds_read_b128 {v(QF+8*q+4,4)}, {v(V_B)} offset:{2048*q+1024}")
A(f"""v_lshl_add_u32 {v(V_B)}, {v(V_LANE)}, 3, {v(V_SY)}
ds_read_b64 v[24:25], {v(V_B)} offset:{L_QN - L_SYNC}
v_lshrrev_b32 {v(V_A)}, 1, {v(V_LANE)}
v_add_u32 {v(V_A)}, {s(S_XCD)}, {v(V_A)}
v_and_b32 {v(V_A)}, 7, {v(V_A)}
v_lshlrev_b32 {v(V_A)}, 3, {v(V_A)}
v_and_b32 {v(V_B)}, 1, {v(V_LANE)}
s_lshl_b32 {s(S_T1)}, {s(S_W4)}, 1
v_add3_u32 {v(V_A)}, {v(V_A)}, {v(V_B)}, {s(S_T1)}
v_lshlrev_b32 {v(V_A)}, 7, {v(V_A)}
s_mov_b32 {s(S_T3)}, {F_KV}""")
poll_flags(V_A, s(S_T3), 16, V_B)
stamp("A_kvflags")
def tile_soff(dst, dreg_or_const, ii):
    A(f"""s_add_u32 {s(dst)}, {s(S_XCD)}, {dreg_or_const}
    s_and_b32 {s(dst)}, {s(dst)}, 7
    s_lshl_b32 {s(dst)}, {s(dst)}, 15
    s_add_u32 {s(dst)}, {s(dst)}, {s(S_N0)}""")
    if ii: A(f"s_add_u32 {s(dst)}, {s(dst)}, 4096")
def ldK(set_, soff):
    for m in range(2): A(f"buffer_load_dwordx4 {v(KV+16*set_+4*m,4)}, {v(V_L16)}, {srd(R_WS)}, {s(soff)} offen offset:{1024*m} sc1")
def ldV(set_, soff):
    for m in range(2): A(f"buffer_load_dwordx4 {v(KV+16*set_+8+4*m,4)}, {v(V_L16)}, {srd(R_WS)}, {s(soff)} offen offset:{2048+1024*m} sc1")
A(f"s_lshl_b32 {s(S_N0)}, {s(S_W4)}, 13\ns_add_u32 {s(S_N0)}, {s(S_N0)}, {W_KV}")
for sh in (1, 2, 4, 8):
    A(f"v_max_f32_dpp {v(V_B)}, {v(V_B)}, {v(V_B)} row_shr:{sh} row_mask:0xf bank_mask:0xf")
A(f"""s_waitcnt lgkmcnt(0)
v_max_f32 v24, v24, v25
v_readlane_b32 {s(S_T1)}, {v(V_B)}, 15
v_mul_f32 v24, {s(S_T1)}, v24
v_cmp_nge_f32 vcc, {fh(-1.0 if OPT['force_slow'] else 1600.0)}, v24
s_cmp_lg_u64 vcc, 0
s_cselect_b32 {s(S_T1)}, 1, 0
v_mov_b32 v24, {s(S_T1)}
s_mov_b64 exec, 1
ds_add_u32 {v(V_SY)}, v24 offset:{SY_BAD}
s_mov_b64 exec, -1""")
lds_arrive(SY_ABAR)
for n in range(4):
    tile_soff(S_T1, n >> 1, n & 1)
    ldK(n, S_T1); ldV(n, S_T1)
lds_wait(SY_ABAR, 4, V_C)
A(f"""ds_read_b32 v24, {v(V_SY)} offset:{SY_BAD}
s_mov_b32 {s(S_PASS)}, 8
s_waitcnt lgkmcnt(0)
v_readfirstlane_b32 {s(S_T1)}, v24
s_cmp_lg_u32 {s(S_T1)}, 0
s_cbranch_scc1 L_slow
L_attn:""")
for i in range(64): A(f"v_mov_b32 {v(OA+i)}, 0")
def qk(n, m):
    t_, q = (n // 4) % 4, n % 4
    mfma(SS + 16*(n % 2), KV + 16*t_ + 4*m, QF + 8*q + 4*m, "0" if m == 0 else None)
def pv(n, m):
    t_, q = (n // 4) % 4, n % 4
    mfma(OA + 16*q, KV + 16*t_ + 8 + 4*m, PP + 4*m)
def exps(n, qq):
    for i in range(4): A(f"v_exp_f32 {v(EE + 4*(qq % 2) + i)}, {v(SS + 16*(n % 2) + 4*qq + i)}")
def cvts(qq):
    e = EE + 4*(qq % 2)
    A(f"v_cvt_pk_bf16_f32 {v(PP+2*qq)}, {v(e)}, {v(e+1)}\nv_cvt_pk_bf16_f32 {v(PP+2*qq+1)}, {v(e+2)}, {v(e+3)}")
def slot_q12(n, first=False):
    if n % 4 == 3: A("s_waitcnt vmcnt(10)")
    qk(n + 1, 0)
    if n % 4 == 3: ldK((n // 4) % 4, S_T1 + ((n // 4) % 2))
    if not first: cvts(3)
    exps(n, 0)
    if not first: pv(n - 1, 1)
    cvts(0)
    exps(n, 1)
def slot_q34(n):
    qk(n + 1, 1)
    if n % 4 == 0 and n > 0: ldV(((n // 4) - 1) % 4, S_T1 + (((n // 4) - 1) % 2))
    cvts(1)
    exps(n, 2)
    if n % 4 == 0: A(f"s_waitcnt vmcnt(12)")
    pv(n, 0)
    cvts(2)
    exps(n, 3)
A("s_waitcnt vmcnt(12)")
qk(0, 0); qk(0, 1)
slot_q12(0, first=True)
A(f"s_mov_b32 {s(S_CNT)}, 2")
A(".p2align 6\nL_att_loop:")
qk(1, 1)
l0 = lab("nov")
A(f"s_cmp_eq_u32 {s(S_CNT)}, 2\ns_cbranch_scc1 {l0}")
ldV(3, S_T2)
A(f"{l0}:")
cvts(1); exps(0, 2)
A("s_waitcnt vmcnt(12)")
pv(0, 0); cvts(2); exps(0, 3)
def next_pair():
    A(f"""s_add_u32 {s(S_T1)}, {s(S_XCD)}, {s(S_CNT)}
    s_and_b32 {s(S_T1)}, {s(S_T1)}, 7
    s_lshl_b32 {s(S_T1)}, {s(S_T1)}, 15
    s_add_u32 {s(S_T1)}, {s(S_T1)}, {s(S_N0)}
    s_cmp_ge_u32 {s(S_CNT)}, 8
    s_cselect_b32 {s(S_T1)}, {OOB}, {s(S_T1)}
    s_add_u32 {s(S_T3)}, {s(S_T1)}, 4096
    s_add_u32 {s(S_CNT)}, {s(S_CNT)}, 1""")
for n in range(1, 16):
    if n in (2, 10): next_pair()
    if n in (5, 13): A(f"s_mov_b32 {s(S_T2)}, {s(S_T3)}")
    slot_q12(n); slot_q34(n)
slot_q12(16)
A(f"s_cmp_lt_u32 {s(S_CNT)}, {4 if OPT['noA'] else 10}\ns_cbranch_scc1 L_att_loop")
stamp("A_attn")
lds_wait(SY_GBAR, 12, V_C)
A("s_waitcnt vmcnt(0)")
lbls = [lab("red") for _ in range(4)]
l_done = lab("redd")
OT = 128
for a_ in range(4):
    A(f"{lbls[a_]}:")
    if a_ < 3:
        A(f"s_cmp_lg_u32 {s(S_W4)}, {a_}\ns_cbranch_scc1 {lbls[a_+1]}")
    for q in range(4):
        if q == a_: continue
        slot = q * 3 + (a_ if a_ < q else a_ - 1)
        for k in range(4):
            A(f"ds_write_b128 {v(V_L16)}, {v(OA+16*q+4*k,4)} offset:{4096*slot + 1024*k}")
    for i in range(16): A(f"v_mov_b32 {v(OT+i)}, {v(OA+16*a_+i)}")
    if a_ < 3: A(f"s_branch {l_done}")
A(f"{l_done}:\ns_waitcnt lgkmcnt(0)")
lds_arrive(SY_ABAR)
A(f"s_mul_i32 {s(S_T1)}, {s(S_W4)}, 12288\nv_add_u32 {v(V_A)}, {s(S_T1)}, {v(V_L16)}")
lds_wait(SY_ABAR, s(S_PASS), V_C)
for k in range(12):
    A(f"ds_read_b128 {v(OA+4*k,4)}, {v(V_A)} offset:{1024*k}")
for k in range(12):
    A(f"s_waitcnt lgkmcnt({11-k})")
    for i in range(4): A(f"v_add_f32 {v(OT+4*(k%4)+i)}, {v(OT+4*(k%4)+i)}, {v(OA+4*k+i)}")
A(f"""v_mov_b32 {v(V_A)}, {v(OT+12)}
v_mov_b32 {v(V_B)}, {v(OT+12)}
v_permlane32_swap_b32 {v(V_A)}, {v(V_B)}
v_rcp_f32 {v(V_B)}, {v(V_B)}""")
for i in range(16): A(f"v_mul_f32 {v(OT+i)}, {v(OT+i)}, {v(V_B)}")
pack16(OT, OA)
A(f"""s_mul_i32 {s(S_T1)}, {s(S_LO)}, 7
v_add_u32 {v(V_A)}, {s(S_T1)}, {v(V_H)}
v_lshrrev_b32 {v(V_B)}, 1, {v(V_A)}
v_and_b32 {v(V_A)}, 1, {v(V_A)}
v_lshlrev_b32 {v(V_B)}, 10, {v(V_B)}
v_lshl_add_u32 {v(V_B)}, {v(V_A)}, 3, {v(V_B)}
v_lshl_add_u32 {v(V_B)}, {v(V_T)}, 4, {v(V_B)}
s_mul_i32 {s(S_T1)}, {s(S_J)}, 7168
s_lshl_b32 {s(S_T2)}, {s(S_HI)}, 9
s_add_u32 {s(S_T1)}, {s(S_T1)}, {s(S_T2)}
s_add_u32 {s(S_T1)}, {s(S_T1)}, {s(S_GB)}
s_add_u32 {s(S_T1)}, {s(S_T1)}, {G_O}""")
for jj in range(4):
    if jj == 3: exec_lo()
    A(f"buffer_store_dwordx2 {v(OA+2*jj,2)}, {v(V_B)}, {srd(R_WS)}, {s(S_T1)} offen offset:{1024*jj} sc1")
exec_all()
signal_last(SY_CO, F_O, V_A)
stamp("A_end", True)
A("s_endpgm")

MXR = 24
A(f"""L_slow:
s_waitcnt vmcnt(0)
s_mov_b32 {s(S_CNT)}, 0""")
for q in range(4): A(f"v_mov_b32 {v(MXR+q)}, 0xff800000")
A("L_slow_loop:")
A(f"""s_lshr_b32 {s(S_T2)}, {s(S_CNT)}, 1
s_add_u32 {s(S_T1)}, {s(S_XCD)}, {s(S_T2)}
s_and_b32 {s(S_T1)}, {s(S_T1)}, 7
s_lshl_b32 {s(S_T1)}, {s(S_T1)}, 15
s_add_u32 {s(S_T1)}, {s(S_T1)}, {s(S_N0)}
s_and_b32 {s(S_T2)}, {s(S_CNT)}, 1
s_lshl_b32 {s(S_T2)}, {s(S_T2)}, 12
s_add_u32 {s(S_T1)}, {s(S_T1)}, {s(S_T2)}""")
for m in range(2): A(f"buffer_load_dwordx4 {v(OA+4*m,4)}, {v(V_L16)}, {srd(R_WS)}, {s(S_T1)} offen offset:{1024*m} sc1")
A("s_waitcnt vmcnt(0)")
for q in range(4):
    mfma(SS, OA, QF + 8*q, "0"); mfma(SS, OA + 4, QF + 8*q + 4)
    for i in range(8): A(f"v_max3_f32 {v(MXR+q)}, {v(SS+2*i)}, {v(SS+2*i+1)}, {v(MXR+q)}")
A(f"""s_add_u32 {s(S_CNT)}, {s(S_CNT)}, 1
s_cmp_lt_u32 {s(S_CNT)}, 16
s_cbranch_scc1 L_slow_loop
s_lshl_b32 {s(S_T1)}, {s(S_W4)}, 9
s_add_u32 {s(S_T1)}, {s(S_T1)}, {L_MX}
v_lshl_add_u32 {v(V_A)}, {v(V_T)}, 2, {s(S_T1)}""")
for q in range(4):
    A(f"""v_mov_b32 {v(V_B)}, {v(MXR+q)}
    v_permlane32_swap_b32 {v(MXR+q)}, {v(V_B)}
    v_max_f32 {v(MXR+q)}, {v(MXR+q)}, {v(V_B)}
    ds_write_b32 {v(V_A)}, {v(MXR+q)} offset:{128*q}""")
A("s_waitcnt lgkmcnt(0)")
lds_arrive(SY_ABAR)
lds_wait(SY_ABAR, 8, V_C)
A(f"v_lshlrev_b32 {v(V_A)}, 2, {v(V_T)}\nv_add_u32 {v(V_A)}, {L_MX}, {v(V_A)}")
for q in range(4):
    for w_ in range(4): A(f"ds_read_b32 {v(SS+4*q+w_)}, {v(V_A)} offset:{512*w_ + 128*q}")
A("s_waitcnt lgkmcnt(0)")
exec_hi()
for q in range(4):
    b = SS + 4*q
    A(f"""v_max3_f32 {v(b)}, {v(b)}, {v(b+1)}, {v(b+2)}
    v_max_f32 {v(b)}, {v(b)}, {v(b+3)}
    v_sub_f32 {v(b)}, 0, {v(b)}
    v_and_b32 {v(b+1)}, 0xffff0000, {v(b)}
    v_sub_f32 {v(b)}, {v(b)}, {v(b+1)}
    v_and_b32 {v(b+2)}, 0xffff0000, {v(b)}
    v_sub_f32 {v(b)}, {v(b)}, {v(b+2)}
    v_lshrrev_b32 {v(b+1)}, 16, {v(b+1)}
    v_or_b32 {v(QF+8*q+6)}, {v(b+1)}, {v(b+2)}
    v_lshrrev_b32 {v(QF+8*q+7)}, 16, {v(b)}""")
exec_all()
A(f"s_mov_b32 {s(S_PASS)}, 12\ns_branch L_attn")
A("L_END:\ns_endpgm")

body = A.finalize()
hdr = open("recurrent_scan__grouped_kv_mqa__mixer_s_mlp__prompt.s.ref").read().split("; Override")[0]
out = hdr + f"""; @launch grid=(256,1,1) block=(512,1,1) lds=163840
.amdgcn_target "amdgcn-amd-amdhsa--gfx950"
.text
.globl {KNAME}
.p2align 8
.type {KNAME},@function
{KNAME}:
{body}
.section .rodata,"a"
.p2align 6
.amdhsa_kernel {KNAME}
  .amdhsa_next_free_vgpr 256
  .amdhsa_next_free_sgpr 96
  .amdhsa_accum_offset 256
  .amdhsa_group_segment_fixed_size 0
  .amdhsa_kernarg_size 104
  .amdhsa_user_sgpr_count 2
  .amdhsa_user_sgpr_kernarg_segment_ptr 1
  .amdhsa_system_sgpr_workgroup_id_x 1
.end_amdhsa_kernel
"""
open(sys.argv[1], "w").write(out)
if OPT["stamp"]:
    import json
    json.dump({"G": STAMPS_G, "A": STAMPS}, open(sys.argv[1] + ".stamps.json", "w"))
```

```python
import sys, struct
from asmlib import Asm, v, s

OPT = dict(stamp=0, force_slow=0, noG=0, noA=0, prio=2, local=1, touch=1, codepf=1, plocal=0, fine=0, nop=0, norefill=0, l2pf=1, nap=0, ldprio=1, aprio=0, hflag=1, hpad=0, sepflag=0)
for a_ in sys.argv[2:]:
    k_, x_ = a_.split("="); OPT[k_] = int(x_)

KNAME = "recurrent_scan__grouped_kv_mqa__mixer_s_mlp__prompt_kernel"
def f2u(x): return struct.unpack("<I", struct.pack("<f", x))[0]
def fh(x): return hex(f2u(x))
LOG2E = 1.4426950408889634
ONES = 0x3F803F80
OOB = 0x40000000
SPIN = 400000

W_KV = 0x80000
W_GB0, W_GBS = 0x100000, 0x80000
G_H, G_X1, G_O, G_ST, G_HH = 0x0, 0xE000, 0x1C000, 0x2A000, 0x2C000
FLAG_GS = 0x3000
F_H, F_X1, F_M, F_O, F_KV = 0x0, 0x400, 0x1000 if OPT['sepflag'] else 0x800, 0xC00, 0x800 if OPT['sepflag'] else 0x1000
W_STAMP = 0x1500000
WS_USED = 0x1600000

L_S1 = 0
L_X = 57344
L_S2 = L_X + 58368
L_MISC = L_S2 + 43008
L_WQ6 = L_S1 + 8192
L_RING = L_X
RING_B = 24576
L_STATP = L_MISC
L_STX = L_STATP
L_QN = L_MISC + 1024
L_VST = L_QN + 512
L_SYNC = L_VST + 512
L_CS = L_SYNC + 128
L_MX = L_MISC + 3072
assert L_MX + 2048 <= 163840 and L_RING + 4 * RING_B <= L_MISC and L_CS + 896 <= L_MX
SY_GBAR, SY_ABAR, SY_CX1, SY_CP, SY_CO, SY_CH, SY_BAD, SY_LOC, SY_PF, SY_KMAX, SY_W2, SY_S, SY_AB2, SY_X1D = 0, 4, 8, 12, 16, 20, 24, 28, 32, 48, 52, 56, 60, 64

S_WAVE, S_G, S_J, S_XCD = 3, 4, 5, 6
R_X, R_WQ, R_WO, R_W1, R_W2, R_W3, R_W4, R_OUT, R_DBG, R_WS, R_WK, R_WV, R_STR = 8, 12, 16, 20, 24, 28, 32, 36, 40, 44, 48, 52, 56
S_GB = 60
S_W4 = 61
S_HI, S_LO = 62, 63
S_T0, S_T1, S_T2, S_T3, S_T4, S_T5 = 64, 65, 66, 67, 68, 69
S_SPIN = 70
S_KMAX = 71
S_SOFF, S_STRIDE, S_RING = 72, 73, 74
S_CNT, S_PASS, S_NF, S_NN, S_N0 = 75, 76, 77, 78, 79
S_FG, S_KV, S_LOC, S_RANK = 80, 81, 82, 83
S_TS = 84
S_C0, S_C1 = 86, 87
S_TOUCH = 90
srd = lambda r: s(r, 4)

V_LANE, V_L16, V_T, V_H = 1, 2, 3, 4
V_M, V_R, V_RR = 5, 6, 7
V_XB, V_WA, V_WA2, V_PAT, V_TRB = 8, 9, 10, 11, 12
V_A, V_B, V_C, V_D = 13, 14, 15, 16
V_ONE, V_SY = 17, 18
V_SEL = 20
V_DBG = 30
V_TCH = 31

A = Asm()
uid = [0]
def lab(p):
    uid[0] += 1
    return f"L_{p}_{uid[0]}"

nstamp = [0]
STAMPS = []
def stamp(name, last=False):
    if not OPT["stamp"]:
        return
    i = nstamp[0]; nstamp[0] += 1
    STAMPS.append(name)
    A(f"""s_memtime {s(S_TS,2)}
    s_waitcnt lgkmcnt(0)
    v_writelane_b32 v0, {s(S_TS)}, {i}""")
    if last:
        A(f"""s_memrealtime {s(S_TS,2)}
        s_lshl_b32 {s(S_T5)}, s2, 3
        s_add_u32 {s(S_T5)}, {s(S_T5)}, {s(S_WAVE)}
        s_lshl_b32 {s(S_T5)}, {s(S_T5)}, 8
        s_add_u32 {s(S_T5)}, {s(S_T5)}, {W_STAMP}
        s_waitcnt lgkmcnt(0)
        v_writelane_b32 v0, {s(S_TS)}, 63
        v_lshlrev_b32 v13, 2, {v(V_LANE)}
        buffer_store_dword v0, v13, {srd(R_WS)}, {s(S_T5)} offen""")
def stamp_dyn(base, sreg):
    if OPT["stamp"] and OPT["fine"]:
        A(f"""s_memtime {s(S_TS,2)}
        s_add_u32 m0, {s(sreg)}, {base}
        s_waitcnt lgkmcnt(0)
        v_writelane_b32 v0, {s(S_TS)}, m0""")
def stamp_rt0():
    if OPT["stamp"]:
        A(f"v_mov_b32 v0, 0\ns_memrealtime {s(S_TS,2)}\ns_waitcnt lgkmcnt(0)\nv_writelane_b32 v0, {s(S_TS)}, 62")

def exec_lo(): A("s_mov_b32 exec_lo, -1\ns_mov_b32 exec_hi, 0")
def exec_hi(): A("s_mov_b32 exec_lo, 0\ns_mov_b32 exec_hi, -1")
def exec_all(): A("s_mov_b64 exec, -1")

def poll_flags(vaddr, soff, nlanes, vdst):
    l0 = lab("poll")
    A(f"""s_mov_b64 exec, {hex((1 << nlanes) - 1)}
    s_mov_b32 {s(S_SPIN)}, 0
    {l0}:
    buffer_load_dword {v(vdst)}, {v(vaddr)}, {srd(R_WS)}, {soff} offen sc1
    s_add_u32 {s(S_SPIN)}, {s(S_SPIN)}, 1
    s_cmp_gt_u32 {s(S_SPIN)}, {SPIN}
    s_cbranch_scc1 L_END
    s_waitcnt vmcnt(0)
    v_cmp_ne_u32 vcc, 0, {v(vdst)}
    s_cmp_eq_u64 vcc, exec
    s_cbranch_scc1 {l0}_ok
    {"s_sleep 4" if OPT["nap"] & 4 else ""}
    s_branch {l0}
    {l0}_ok:
    s_mov_b64 exec, -1""")

def lds_arrive(word):
    A(f"""s_mov_b64 exec, 1
    ds_add_u32 {v(V_SY)}, {v(V_ONE)} offset:{word}
    s_mov_b64 exec, -1""")

def lds_wait(word, target, vtmp, vaddr=V_SY, nap=False):
    l0 = lab("lw")
    A(f"""s_mov_b32 {s(S_SPIN)}, 0
    {l0}:
    {"s_sleep 1" if (OPT["nap"] & 1 and nap) or OPT["nap"] & 2 else ""}
    ds_read_b32 {v(vtmp)}, {v(vaddr)} offset:{word}
    s_add_u32 {s(S_SPIN)}, {s(S_SPIN)}, 1
    s_cmp_gt_u32 {s(S_SPIN)}, {SPIN*8}
    s_cbranch_scc1 L_END
    s_waitcnt lgkmcnt(0)
    v_readfirstlane_b32 {s(S_T4)}, {v(vtmp)}
    s_cmp_ge_u32 {s(S_T4)}, {target}
    s_cbranch_scc0 {l0}""")

def by_mode(emit, local_ok=True, local_flag="nt"):
    if not (OPT["local"] and local_ok):
        emit("sc1"); return
    l0, l1 = lab("far"), lab("md")
    A(f"s_cmp_eq_u32 {s(S_LOC)}, 0\ns_cbranch_scc1 {l0}")
    emit(local_flag)
    A(f"s_branch {l1}\n{l0}:")
    emit("sc1")
    A(f"{l1}:")

def signal_last(word, flagbase, vtmp, local_ok=True, younger=0, emit=None):
    l0 = lab("sig")
    A(f"""s_waitcnt vmcnt({younger})
    s_mov_b64 exec, 1
    ds_add_rtn_u32 {v(vtmp)}, {v(V_SY)}, {v(V_ONE)} offset:{word}
    s_lshl_b32 {s(S_T3)}, {s(S_J)}, 7
    s_add_u32 {s(S_T3)}, {s(S_T3)}, {s(S_FG)}
    s_add_u32 {s(S_T3)}, {s(S_T3)}, {flagbase}
    s_waitcnt lgkmcnt(0)
    v_readfirstlane_b32 {s(S_T4)}, {v(vtmp)}
    v_mov_b32 {v(vtmp)}, 0
    s_cmp_eq_u32 {s(S_T4)}, 3
    s_cbranch_scc0 {l0}""")
    if emit: emit()
    else: by_mode(lambda f: A(f"buffer_store_dword {v(V_ONE)}, {v(vtmp)}, {srd(R_WS)}, {s(S_T3)} offen {f}"), local_ok, "")
    A(f"{l0}:\ns_mov_b64 exec, -1")

def poll_group(flagbase, n, vtmp, vtmp2):
    A(f"""s_add_u32 {s(S_T3)}, {s(S_FG)}, {flagbase}
    v_lshlrev_b32 {v(vtmp)}, 7, {v(V_LANE)}""")
    poll_flags(vtmp, s(S_T3), n, vtmp2)

def mfma(d, a, b, c=None):
    A(f"v_mfma_f32_32x32x16_bf16 {v(d,16)}, {v(a,4)}, {v(b,4)}, {v(d,16) if c is None else c}")
def mfma16(d, a, b, c=None):
    A(f"v_mfma_f32_16x16x32_bf16 {v(d,4)}, {v(a,4)}, {v(b,4)}, {v(d,4) if c is None else c}")
def trread(d, addr, off):
    A(f"ds_read_b64_tr_b16 {v(d,2)}, {v(addr)} offset:{off}")

def gelu16(src, n, t0):
    for i in range(n): A(f"v_mul_f32 {v(t0+i)}, {v(src+i)}, {v(src+i)}")
    for i in range(n): A(f"v_fma_f32 {v(t0+i)}, {v(t0+i)}, {s(S_C1)}, {v(V_D)}")
    for i in range(n): A(f"v_mul_f32 {v(t0+i)}, {v(t0+i)}, {v(src+i)}")
    for i in range(n): A(f"v_exp_f32 {v(t0+i)}, {v(t0+i)}")
    for i in range(n): A(f"v_add_f32 {v(t0+i)}, 1.0, {v(t0+i)}")
    for i in range(n): A(f"v_rcp_f32 {v(t0+i)}, {v(t0+i)}")
    for i in range(n): A(f"v_mul_f32 {v(src+i)}, {v(src+i)}, {v(t0+i)}")

def colsum_spread(cs4, dst16, vtmp):
    A(f"""s_lshl_b32 {s(S_T4)}, {s(S_WAVE)}, 7
    s_add_u32 {s(S_T4)}, {s(S_T4)}, {L_CS}
    v_and_b32 {v(vtmp)}, 15, {v(V_LANE)}
    v_cmp_gt_u32 vcc, 2, {v(vtmp)}
    v_lshlrev_b32 {v(vtmp)}, 6, {v(vtmp)}
    v_and_b32 {v(vtmp+1)}, 48, {v(V_LANE)}
    v_add3_u32 {v(vtmp)}, {v(vtmp)}, {v(vtmp+1)}, {s(S_T4)}
    s_mov_b64 exec, vcc
    ds_write_b128 {v(vtmp)}, {v(cs4,4)}
    s_mov_b64 exec, -1
    v_lshl_add_u32 {v(vtmp)}, {v(V_H)}, 4, {s(S_T4)}""")
    for jj in range(4):
        A(f"ds_read_b128 {v(dst16+4*jj,4)}, {v(vtmp)} offset:{32*jj}")
    A("s_waitcnt lgkmcnt(0)")

def swap_sum2(a, b):
    A(f"v_permlane32_swap_b32 {v(a)}, {v(b)}\nv_add_f32 {v(a)}, {v(a)}, {v(b)}")
def both_halves_sum(a, t):
    A(f"v_mov_b32 {v(t)}, {v(a)}\nv_permlane32_swap_b32 {v(a)}, {v(t)}\nv_add_f32 {v(a)}, {v(a)}, {v(t)}")

def pattern(dst, vslot):
    A(f"""v_mul_u32_u24 {v(V_A)}, 9363, {v(vslot)}
    v_lshrrev_b32 {v(V_A)}, 16, {v(V_A)}
    v_mul_u32_u24 {v(V_B)}, 7, {v(V_A)}
    v_sub_u32 {v(V_B)}, {v(vslot)}, {v(V_B)}
    v_and_b32 {v(V_C)}, 3, {v(V_A)}
    v_bfe_u32 {v(V_D)}, {v(V_A)}, 2, 2
    v_and_b32 {v(V_A)}, 48, {v(V_A)}
    v_lshl_add_u32 {v(V_A)}, {v(V_C)}, 2, {v(V_A)}
    v_add_u32 {v(V_A)}, {v(V_A)}, {v(V_D)}
    v_mul_u32_u24 {v(V_A)}, 896, {v(V_A)}
    v_lshl_add_u32 {v(dst)}, {v(V_B)}, 4, {v(V_A)}
    s_mul_i32 {s(S_T4)}, {s(S_J)}, 112
    v_add_u32 {v(dst)}, {s(S_T4)}, {v(dst)}""")

def dma_rows(rsrc, vpat, spat, chunks):
    A(f"s_lshl_b32 {s(S_T1)}, {s(spat)}, 10")
    for u, lds in chunks:
        A(f"""s_add_u32 m0, {s(S_T1)}, {lds if isinstance(lds, int) else lds}
        s_mov_b32 {s(S_T2)}, {u * 57344}
        buffer_load_dwordx4 {v(vpat)}, {srd(rsrc)}, {s(S_T2)} offen lds""")

def blk_voffset(dst, rowstride):
    A(f"""v_lshrrev_b32 {v(V_A)}, 3, {v(V_LANE)}
    v_lshlrev_b32 {v(V_B)}, 2, {v(V_LANE)}
    v_and_b32 {v(V_B)}, 64, {v(V_B)}
    v_and_b32 {v(V_C)}, 7, {v(V_LANE)}
    v_lshlrev_b32 {v(V_C)}, 4, {v(V_C)}
    v_xor_b32 {v(V_B)}, {v(V_B)}, {v(V_C)}
    v_mul_u32_u24 {v(dst)}, {rowstride}, {v(V_A)}
    v_add_u32 {v(dst)}, {v(dst)}, {v(V_B)}""")

def touch(rsrc, nbytes, shares=32, srank=S_RANK, throttle=None):
    if not OPT["touch"]:
        return 0
    per = -(-(nbytes // 128) // shares)
    n = (per + 63) // 64
    A(f"s_mul_i32 {s(S_T1)}, {s(srank)}, {per * 128}\nv_lshlrev_b32 {v(V_A)}, 7, {v(V_LANE)}")
    for i in range(n):
        rem = per - 64 * i
        if rem < 64:
            A(f"s_mov_b64 exec, {hex((1 << rem) - 1)}" if rem <= 31 else f"s_mov_b32 exec_hi, {hex((1 << (rem - 32)) - 1)}")
        A(f"buffer_load_dword {v(V_TCH)}, {v(V_A)}, {srd(rsrc)}, {s(S_T1)} offen sc1")
        if throttle is not None: A(f"s_waitcnt vmcnt({throttle})")
        if i < n - 1: A(f"s_add_u32 {s(S_T1)}, {s(S_T1)}, 8192")
    exec_all()
    return n


class VMQ:
    def __init__(self): self.q = []
    def issue(self, tag, n=1): self.q += [tag] * n
    def wait(self, *tags, extra=""):
        last = max((i for i, t in enumerate(self.q) if t in tags), default=-1)
        if last >= 0:
            n = len(self.q) - 1 - last
            assert n < 64
            A(f"s_waitcnt vmcnt({n}) {extra}".strip())
            self.q = self.q[last + 1:]
        elif extra:
            A(f"s_waitcnt {extra}")
    def drained(self): self.q = []

A(f"""s_cmp_ge_u32 s2, 256
s_cbranch_scc1 L_END
s_load_dwordx16 s[64:79], s[0:1], 0
s_load_dwordx8 s[80:87], s[0:1], 64
s_load_dwordx2 s[88:89], s[0:1], 96
v_and_b32 {v(V_LANE)}, 63, v0
v_lshrrev_b32 {v(V_A)}, 6, v0
v_lshlrev_b32 {v(V_L16)}, 4, {v(V_LANE)}
v_readfirstlane_b32 {s(S_WAVE)}, {v(V_A)}
v_and_b32 {v(V_T)}, 31, {v(V_LANE)}
v_lshrrev_b32 {v(V_H)}, 5, {v(V_LANE)}
s_and_b32 {s(S_XCD)}, s2, 7
s_lshr_b32 s7, s2, 3
s_and_b32 {s(S_J)}, s7, 7
s_lshr_b32 s7, s7, 3
s_lshl_b32 {s(S_G)}, {s(S_XCD)}, 2
s_add_u32 {s(S_G)}, {s(S_G)}, s7
s_mul_i32 {s(S_GB)}, {s(S_G)}, {W_GBS}
s_add_u32 {s(S_GB)}, {s(S_GB)}, {W_GB0}
s_and_b32 {s(S_W4)}, {s(S_WAVE)}, 3
s_lshr_b32 {s(S_HI)}, {s(S_W4)}, 1
s_and_b32 {s(S_LO)}, {s(S_W4)}, 1
s_mov_b32 {s(R_X+2)}, 1835008
s_mov_b32 {s(R_X+3)}, 0x20000
s_lshl_b32 s7, {s(S_G)}, 3
s_add_u32 s7, s7, {s(S_WAVE)}
s_mul_i32 s7, s7, {8*896}
s_mul_i32 m0, {s(S_WAVE)}, {8*912}
s_add_u32 m0, m0, {L_X}
s_mov_b32 exec_hi, 0x00ffffff
s_waitcnt lgkmcnt(0)
s_mov_b64 {s(R_X,2)}, s[64:65]""")
for i in range(8):
    A(f"buffer_load_dwordx4 {v(V_L16)}, {srd(R_X)}, s7 offen lds")
    if i < 7:
        A(f"s_add_u32 m0, m0, 912\ns_add_u32 s7, s7, 896")
exec_all()
kmap = {R_WQ: 66, R_WK: 68, R_WV: 70, R_WO: 72, R_W1: 76, R_W2: 78, R_W3: 80, R_W4: 82, R_OUT: 84, R_DBG: 86, R_WS: 88}
sizes = {R_WQ: 401408, R_WO: 401408, R_W1: 401408, R_W2: 401408, R_W3: 1605632, R_W4: 1605632,
         R_OUT: 1835008, R_DBG: 256, R_WS: WS_USED, R_WK: 25088, R_WV: 25088}
for r_, k_ in kmap.items():
    A(f"s_mov_b64 {s(r_,2)}, {s(k_,2)}\ns_mov_b32 {s(r_+2)}, {sizes[r_]}\ns_mov_b32 {s(r_+3)}, 0x20000")
A(f"s_mov_b64 {s(R_STR,2)}, {s(R_W3,2)}\ns_mov_b32 {s(R_STR+2)}, 1605632\ns_mov_b32 {s(R_STR+3)}, 0x20000")
stamp_rt0()
stamp("start")
V_B896, V_TP = V_PAT, V_TRB
A(f"""s_mul_i32 {s(S_FG)}, {s(S_G)}, {FLAG_GS}
s_cmp_eq_u32 {s(S_J)}, 7
s_cselect_b32 {s(S_KV)}, 1, 0
v_mov_b32 {v(V_ONE)}, 1
v_mov_b32 {v(V_SY)}, {L_SYNC}""")
blk_voffset(V_B896, 896)
def common_addresses():
    A(f"""v_lshl_add_u32 {v(V_XB)}, {s(S_HI)}, 5, {v(V_T)}
    v_mul_u32_u24 {v(V_XB)}, 912, {v(V_XB)}
    v_lshl_add_u32 {v(V_XB)}, {v(V_H)}, 4, {v(V_XB)}
    v_add_u32 {v(V_XB)}, {L_X}, {v(V_XB)}
    v_bfe_u32 {v(V_A)}, {v(V_LANE)}, 2, 2
    v_and_b32 {v(V_B)}, 3, {v(V_LANE)}
    v_bfe_u32 {v(V_C)}, {v(V_LANE)}, 4, 1
    v_lshlrev_b32 {v(V_B)}, 3, {v(V_B)}
    v_lshl_add_u32 {v(V_B)}, {v(V_C)}, 5, {v(V_B)}
    v_and_b32 {v(V_D)}, 1, {v(V_LANE)}
    v_cmp_eq_u32 vcc, {v(V_D)}, {v(V_C)}
    v_mov_b32 {v(V_D)}, {ONES}""")
    for i in range(4):
        A(f"v_cndmask_b32 {v(V_SEL+i)}, 0, {v(V_D)}, vcc")
A(f"s_cmp_ge_u32 {s(S_WAVE)}, 4\ns_cbranch_scc1 L_role_A")

BF, AF, ACC, CS4 = 32, 64, 96, 112
CSX = 120
TMP = 136
STAGES = [(0, 8), (8, 16), (16, 24), (24, 28)]

def stats_read():
    A(f"""v_lshl_add_u32 {v(V_A)}, {s(S_HI)}, 5, {v(V_T)}
    v_lshlrev_b32 {v(V_A)}, 3, {v(V_A)}
    v_add_u32 {v(V_A)}, {L_STATP}, {v(V_A)}
    ds_read_b64 {v(TMP,2)}, {v(V_A)}
    ds_read_b64 {v(TMP+2,2)}, {v(V_A)} offset:512""")
def stats_final(read=True):
    if read:
        stats_read(); A("s_waitcnt lgkmcnt(0)")
    A(f"""v_add_f32 {v(TMP)}, {v(TMP)}, {v(TMP+2)}
    v_add_f32 {v(TMP+1)}, {v(TMP+1)}, {v(TMP+3)}
    v_mul_f32 {v(V_M)}, {fh(1/448)}, {v(TMP)}
    v_mul_f32 {v(TMP+1)}, {fh(1/448)}, {v(TMP+1)}
    v_fma_f32 {v(TMP+1)}, -{v(V_M)}, {v(V_M)}, {v(TMP+1)}
    v_max_f32 {v(TMP+1)}, 0, {v(TMP+1)}
    v_add_f32 {v(TMP+2)}, {fh(1e-5)}, {v(TMP+1)}
    v_rsq_f32 {v(V_R)}, {v(TMP+2)}
    v_mul_f32 {v(TMP+1)}, {v(TMP+1)}, {v(V_R)}
    v_fmaak_f32 {v(TMP+1)}, {v(TMP+1)}, {v(V_R)}, {fh(1e-5)}
    v_rsq_f32 {v(TMP+1)}, {v(TMP+1)}
    v_mul_f32 {v(V_RR)}, {v(V_R)}, {v(TMP+1)}""")

def tile_steps(kind, barriers):
    def rd(ks):
        if barriers and ks in (8, 16, 24): A("s_barrier")
        for ii in range(2):
            d = AF + 4*(ks % 8) + 2*ii
            if kind == "W": trread(d, V_WA, 2048*ks + 512*ii)
            elif kind == "Q" and ks < 24: trread(d, V_WA, (16*ks + ii) * 112)
            elif kind == "Q": trread(d, V_WA2, (16*(ks - 24) + ii) * 112)
            else: trread(d, V_WA, (16*ks + 4*ii) * 56)
        if ks >= 8: A(f"ds_read_b128 {v(BF+4*(ks % 8),4)}, {v(V_XB)} offset:{32*ks}")
    cnt = lambda ks: 2 + (ks >= 8)
    ahead = 4
    if barriers: stats_read()
    for ks in range(ahead): rd(ks)
    for ks in range(28):
        if barriers and ks == 2: stats_final(False)
        left = sum(cnt(x) for x in range(ks + 1, min(28, ks + ahead)))
        A(f"s_waitcnt lgkmcnt({left})")
        z = "0" if ks == 0 else None
        a, b = AF + 4*(ks % 8), BF + 4*(ks % 8)
        if kind == "V":
            mfma(ACC, b, a, z); mfma16(CS4, V_SEL, a, z)
        else:
            mfma(ACC, a, b, z); mfma16(CS4, a, V_SEL, z)
        if ks + ahead < 28: rd(ks + ahead)

def phaseA1(kind):
    for i in range(8):
        A(f"ds_read_b128 {v(BF+4*i,4)}, {v(V_XB)} offset:{32*i}")
    A("s_waitcnt lgkmcnt(0)\ns_barrier")
    tile_steps(kind, True)
    A(f"""v_lshlrev_b32 {v(V_A)}, 2, {v(V_T)}
    buffer_load_dword {v(V_DBG)}, {v(V_A)}, {srd(R_DBG)}, 0 offen sc1""")

def center_scale(acc, csx, vscale):
    for i in range(16): A(f"v_fma_f32 {v(acc+i)}, -{v(V_M)}, {v(csx+i)}, {v(acc+i)}")
    for i in range(16): A(f"v_mul_f32 {v(acc+i)}, {v(acc+i)}, {v(vscale)}")
def pack16(src, dst):
    for k in range(8): A(f"v_cvt_pk_bf16_f32 {v(dst+k)}, {v(src+2*k)}, {v(src+2*k+1)}")
def zero_pad_dims(acc):
    exec_hi()
    for i in range(12, 16): A(f"v_mov_b32 {v(acc+i)}, 0")
    exec_all()
def norm2(acc, dst, t):
    A(f"v_mul_f32 {v(dst)}, {v(acc)}, {v(acc)}\nv_mul_f32 {v(t)}, {v(acc+1)}, {v(acc+1)}")
    for i in range(2, 16): A(f"v_fmac_f32 {v(dst if i % 2 == 0 else t)}, {v(acc+i)}, {v(acc+i)}")
    A(f"v_add_f32 {v(dst)}, {v(dst)}, {v(t)}")
    both_halves_sum(dst, t)
def flags_cleared(younger=0):
    l0, l1 = lab("dbg"), lab("dbgok")
    A(f"""s_getreg_b32 {s(S_LOC)}, hwreg(HW_REG_XCC_ID)
    s_and_b32 {s(S_LOC)}, {s(S_LOC)}, 15
    s_add_u32 {s(S_LOC)}, {s(S_LOC)}, 1
    v_lshlrev_b32 {v(V_A)}, 2, {v(V_T)}
    s_mov_b32 {s(S_SPIN)}, 0
    s_waitcnt vmcnt({younger})
    {l0}:
    v_cmp_eq_u32 vcc, 0, {v(V_DBG)}
    s_cbranch_vccz {l1}
    buffer_load_dword {v(V_DBG)}, {v(V_A)}, {srd(R_DBG)}, 0 offen sc1
    s_waitcnt vmcnt(0)
    s_add_u32 {s(S_SPIN)}, {s(S_SPIN)}, 1
    s_cmp_gt_u32 {s(S_SPIN)}, {SPIN}
    s_cbranch_scc1 L_END
    s_branch {l0}
    {l1}:""")

XC = 232
X1 = 240
if OPT["sepflag"]:
    CLEAR = f"""buffer_store_dword {v(V_B)}, {v(V_A)}, {srd(R_WS)}, {s(S_FG)} offen sc1
    s_add_u32 {s(S_T1)}, {s(S_FG)}, 8192
    s_mov_b32 exec_hi, 0
    buffer_store_dword {v(V_B)}, {v(V_A)}, {srd(R_WS)}, {s(S_T1)} offen sc1
    s_mov_b32 exec_hi, -1"""
else:
    CLEAR = f"""s_mov_b32 exec_hi, 1
    buffer_store_dword {v(V_B)}, {v(V_A)}, {srd(R_WS)}, {s(S_FG)} offen sc1
    s_mov_b32 exec_hi, -1
    v_lshrrev_b32 {v(V_A)}, 3, {v(V_LANE)}
    v_lshlrev_b32 {v(V_A)}, 7, {v(V_A)}
    v_and_b32 {v(V_C)}, 7, {v(V_LANE)}
    v_lshl_add_u32 {v(V_A)}, {v(V_C)}, 2, {v(V_A)}
    buffer_store_dword {v(V_B)}, {v(V_A)}, {srd(R_WS)}, {s(S_FG)} offen offset:{F_M} sc1"""
A(f"""s_setprio {OPT['prio']}
v_mov_b32 {v(V_B)}, 0
s_cmp_eq_u32 {s(S_W4)}, 1
s_cbranch_scc0 L_g_nozero
v_lshl_add_u32 {v(V_A)}, {v(V_T)}, 2, {v(V_SY)}
ds_write_b32 {v(V_A)}, {v(V_B)}
L_g_nozero:
s_lshl_b32 {s(S_T0)}, {s(S_KV)}, 2
s_add_u32 {s(S_T0)}, {s(S_T0)}, {s(S_W4)}
s_cmp_eq_u32 {s(S_T0)}, 4
s_cbranch_scc0 L_g_noclear
v_lshlrev_b32 {v(V_A)}, 7, {v(V_LANE)}
{CLEAR}
L_g_noclear:""")
if OPT["codepf"]:
    A(f"""s_cmp_eq_u32 {s(S_W4)}, 2
    s_cbranch_scc0 L_nocode
    L_pc:
    s_getpc_b64 {s(S_T2,2)}
    s_lshr_b32 {s(S_T1)}, s2, 3
    s_lshl_b32 {s(S_T1)}, {s(S_T1)}, 3
    v_and_b32 {v(V_A)}, 7, {v(V_LANE)}
    v_add_u32 {v(V_A)}, {s(S_T1)}, {v(V_A)}
    v_lshlrev_b32 {v(V_A)}, 7, {v(V_A)}
    v_mov_b32 v25, {s(S_T3)}
    v_add_co_u32 v24, vcc, {s(S_T2)}, {v(V_A)}
    v_addc_co_u32 v25, vcc, 0, v25, vcc
    v_cmp_gt_u32 vcc, L_CODE_END-L_pc-128, {v(V_A)}
    s_and_b64 exec, vcc, 0xff
    s_cbranch_execz L_nocode
    global_load_dword {v(V_TCH)}, v[24:25], off sc1
    L_nocode:
    s_mov_b64 exec, -1""")
common_addresses()
A(f"""v_lshl_add_u32 {v(V_D)}, {v(V_H)}, 3, {v(V_A)}
v_mul_u32_u24 {v(V_WA2)}, 56, {v(V_D)}
v_add_u32 {v(V_WA2)}, {v(V_WA2)}, {v(V_B)}
v_cmp_le_u32 vcc, 56, {v(V_B)}
v_lshl_add_u32 {v(V_TP)}, {v(V_D)}, 7, {v(V_B)}
v_lshlrev_b32 {v(V_A)}, 5, {v(V_A)}
v_and_b32 {v(V_A)}, 64, {v(V_A)}
v_add_u32 {v(V_TP)}, {v(V_TP)}, {v(V_A)}
v_cndmask_b32 {v(V_A)}, 0, 32, vcc
v_sub_u32 {v(V_WA2)}, {v(V_WA2)}, {v(V_A)}
s_lshl_b32 {s(S_T1)}, {s(S_LO)}, 6
v_xor_b32 {v(V_WA)}, {s(S_T1)}, {v(V_TP)}
v_add_u32 {v(V_WA)}, {L_S1}, {v(V_WA)}
s_mul_i32 {s(S_T1)}, {s(S_LO)}, 448
v_add_u32 {v(V_A)}, {s(S_T1)}, {v(V_XB)}
s_mov_b32 {s(S_C0)}, {fh(-2*0.7978845608028654*LOG2E)}
s_mov_b32 {s(S_C1)}, {fh(-2*0.7978845608028654*LOG2E*0.044715)}
s_mov_b32 {s(S_T3)}, {ONES}
v_mov_b32 v24, 0
v_mov_b32 v25, 0
v_mov_b32 v26, 0
v_mov_b32 v27, 0
s_waitcnt vmcnt(0) lgkmcnt(0)
s_cmp_eq_u32 {s(S_T0)}, 4
s_cbranch_scc0 L_g_b1
s_lshl_b32 {s(S_T1)}, {s(S_G)}, 2
s_mov_b64 exec, 1
buffer_store_dword {v(V_ONE)}, v24, {srd(R_DBG)}, {s(S_T1)} offen sc1
s_mov_b64 exec, -1
L_g_b1:
s_barrier""")
stamp("x_landed")
for i in range(14):
    A(f"ds_read_b128 {v(32+4*i,4)}, {v(V_A)} offset:{32*i}")
for i in range(14):
    A(f"s_waitcnt lgkmcnt({13-i})")
    for d in range(4):
        r_ = 32 + 4*i + d
        A(f"v_dot2_f32_bf16 {v(24+(d&1))}, {v(r_)}, {s(S_T3)}, {v(24+(d&1))}")
        A(f"v_dot2_f32_bf16 {v(26+(d&1))}, {v(r_)}, {v(r_)}, {v(26+(d&1))}")
A(f"""v_lshl_add_u32 {v(V_B)}, {s(S_HI)}, 5, {v(V_T)}
v_lshlrev_b32 {v(V_B)}, 3, {v(V_B)}
v_lshl_add_u32 {v(V_B)}, {v(V_H)}, 2, {v(V_B)}
s_lshl_b32 {s(S_T2)}, {s(S_LO)}, 9
s_add_u32 {s(S_T2)}, {s(S_T2)}, {L_STATP}
v_add_u32 {v(V_B)}, {s(S_T2)}, {v(V_B)}
v_add_f32 v24, v24, v25
v_add_f32 v26, v26, v27""")
swap_sum2(24, 26)
A(f"""ds_write_b32 {v(V_B)}, v24
s_cmp_eq_u32 {s(S_KV)}, 1
s_cbranch_scc1 L_g_kv""")
phaseA1("W")
stamp("G_gemm1")
A(f"""s_lshl_b32 {s(S_T1)}, {s(S_J)}, 1
s_add_u32 {s(S_T1)}, {s(S_T1)}, {s(S_LO)}
s_lshl_b32 {s(S_T2)}, {s(S_T1)}, 6
v_lshlrev_b32 {v(V_A)}, 3, {v(V_H)}
v_sub_u32 {v(V_A)}, {v(V_XB)}, {v(V_A)}
v_add_u32 {v(V_A)}, {s(S_T2)}, {v(V_A)}""")
for jj in range(4): A(f"ds_read_b64 {v(XC+2*jj,2)}, {v(V_A)} offset:{16*jj}")
colsum_spread(CS4, CSX, V_A)
lds_arrive(SY_GBAR)
center_scale(ACC, CSX, V_RR)
A(f"v_mov_b32 {v(V_D)}, {s(S_C0)}")
gelu16(ACC, 16, TMP)
pack16(ACC, TMP)
V_CH = V_XB
A(f"""v_lshlrev_b32 {v(V_CH)}, 4, {v(V_T)}
v_lshl_add_u32 {v(V_CH)}, {v(V_H)}, 10, {v(V_CH)}
s_lshl_b32 {s(S_T1)}, {s(S_T1)}, 12
s_lshl_b32 {s(S_T2)}, {s(S_HI)}, 9
s_add_u32 {s(S_T1)}, {s(S_T1)}, {s(S_T2)}
s_add_u32 {s(S_N0)}, {s(S_T1)}, {s(S_GB)}""")
def store_chunks(src8, region, flag):
    A(f"""s_add_u32 {s(S_T1)}, {s(S_N0)}, {region}
    buffer_store_dwordx4 {v(src8,4)}, {v(V_CH)}, {srd(R_WS)}, {s(S_T1)} offen {flag}
    buffer_store_dwordx4 {v(src8+4,4)}, {v(V_CH)}, {srd(R_WS)}, {s(S_T1)} offen offset:2048 {flag}""")
def packed_to_chunks(p8):
    for a_ in range(2):
        for d in range(2):
            A(f"v_permlane32_swap_b32 {v(p8+4*a_+d)}, {v(p8+4*a_+2+d)}")
packed_to_chunks(TMP)
store_chunks(TMP, G_H, "sc1")
def slice_pieces(rsrc, lds, idx):
    A(f"""s_lshl_b32 {s(S_T0)}, {s(S_W4)}, 10
    s_mul_i32 {s(S_T2)}, {s(S_W4)}, {8*896}
    s_lshl_b32 {s(S_T1)}, {s(S_J)}, 7
    s_add_u32 {s(S_T2)}, {s(S_T2)}, {s(S_T1)}""")
    for i in idx:
        A(f"""s_add_u32 m0, {s(S_T0)}, {lds + 4096*i}
        s_add_u32 {s(S_T1)}, {s(S_T2)}, {32*896*i}
        buffer_load_dwordx4 {v(V_B896)}, {srd(rsrc)}, {s(S_T1)} offen lds""")
if OPT["fine"] > 1: stamp("h_stored")
lds_wait(SY_GBAR, 4, V_C)
slice_pieces(R_W2, L_S1, [0, 1] + list(range(4, 14)))
HA, HB_, HFL = 24, 25, 26
A(f"""s_lshl_b32 {s(S_T1)}, {s(S_G)}, 6
s_lshl_b32 {s(S_T2)}, {s(S_HI)}, 5
s_add_u32 {s(S_T1)}, {s(S_T1)}, {s(S_T2)}
s_add_u32 {s(S_T2)}, {s(S_LO)}, 1
s_sub_u32 {s(S_T3)}, {s(S_T1)}, {s(S_T2)}
s_add_u32 {s(S_T1)}, {s(S_T1)}, {s(S_T2)}
s_mov_b32 {s(S_T2)}, {W_GBS}""")
for dst, sb in ((HA, S_T3), (HB_, S_T1)):
    A(f"""v_add_u32 {v(V_B)}, {s(sb)}, {v(V_T)}
    v_cmp_gt_u32 vcc, 2048, {v(V_B)}
    v_lshrrev_b32 {v(V_C)}, 6, {v(V_B)}
    v_and_b32 {v(V_B)}, 63, {v(V_B)}
    v_mul_lo_u32 {v(V_C)}, {v(V_C)}, {s(S_T2)}
    v_lshl_add_u32 {v(V_C)}, {v(V_B)}, 4, {v(V_C)}
    v_lshl_add_u32 {v(V_C)}, {v(V_H)}, 10, {v(V_C)}
    v_mov_b32 {v(V_B)}, {OOB}
    v_cndmask_b32 {v(dst)}, {v(V_B)}, {v(V_C)}, vcc""")
A(f"""v_lshrrev_b32 {v(V_A)}, 3, {v(V_LANE)}
v_mul_u32_u24 {v(V_B)}, 3, {v(V_A)}
v_lshrrev_b32 {v(V_B)}, 1, {v(V_B)}
v_add_u32 {v(V_B)}, -2, {v(V_B)}
v_cmp_eq_u32 vcc, 0, {v(V_A)}
v_cndmask_b32 {v(V_B)}, {v(V_B)}, 0, vcc
v_add_u32 {v(V_B)}, {s(S_G)}, {v(V_B)}
v_mov_b32 {v(V_C)}, {s(S_G)}
v_cmp_gt_u32 vcc, 32, {v(V_B)}
v_cndmask_b32 {v(V_B)}, {v(V_C)}, {v(V_B)}, vcc
v_mul_u32_u24 {v(V_B)}, {FLAG_GS}, {v(V_B)}
v_and_b32 {v(V_A)}, 7, {v(V_LANE)}
v_lshl_add_u32 {v(HFL)}, {v(V_A)}, 7, {v(V_B)}""")
V_B3584 = V_WA2
blk_voffset(V_B3584, 3584)
def h_flag():
    A(f"""v_mov_b32 {v(V_B)}, {s(S_LOC)}
    buffer_store_dword {v(V_B)}, {v(V_A)}, {srd(R_WS)}, {s(S_T3)} offen sc1""")
if OPT["fine"] > 1: stamp("h_issued")
flags_cleared(12)
signal_last(SY_CH, F_H, V_A, younger=12, emit=h_flag)
stamp("G_hpub")
if OPT["noG"]:
    A(f"v_mov_b32 {v(V_B)}, 0\nds_write_b32 {v(V_SY)}, {v(V_B)} offset:{SY_LOC}")
    lds_arrive(SY_X1D)
    stamp("G_end", True)
    A("s_endpgm")
lds_wait(SY_ABAR, 8, V_C)
slice_pieces(R_W2, L_S1, [2, 3])
poll_flags(HFL, "0", 24, V_B)
stamp("G_hflags")
lds_arrive(SY_W2)
KB = 32
AM, AO, KA = 88, 104, 120
def ksplit_loads(addr_lo, addr_hi, sbase):
    for i in range(14):
        if i % 2 == 0:
            A(f"s_add_u32 {s(S_T2)}, {s(sbase)}, {2048*i}")
        A(f"buffer_load_dwordx4 {v(KB+4*i,4)}, {v(addr_lo if i < 7 else addr_hi)}, {srd(R_WS)}, {s(S_T2)} offen offset:{2048*(i%2)} sc1")
def ksplit_mm(extra=None):
    A(f"""s_mul_i32 {s(S_T1)}, {s(S_LO)}, {14*2048}
    s_lshl_b32 {s(S_T2)}, {s(S_LO)}, 6
    v_xor_b32 {v(V_A)}, {s(S_T2)}, {v(V_TP)}
    v_xor_b32 {v(V_B)}, 64, {v(V_A)}
    v_add_u32 {v(V_A)}, {s(S_T1)}, {v(V_A)}
    v_add_u32 {v(V_B)}, {s(S_T1)}, {v(V_B)}""")
    def rd(i):
        b = KA + 8 * (i % 2)
        trread(b, V_A, 2048*i); trread(b + 2, V_A, 2048*i + 512)
        trread(b + 4, V_B, 2048*i); trread(b + 6, V_B, 2048*i + 512)
    rd(0)
    young = 0
    for i in range(14):
        if i < 13: rd(i + 1)
        A(f"s_waitcnt vmcnt({13 - i + young}) lgkmcnt({4 if i < 13 else 0})")
        z = "0" if i == 0 else None
        b = KA + 8 * (i % 2)
        mfma(AO, b + 4, KB + 4*i, z); mfma(AM, b, KB + 4*i, z)
        if extra: young += extra(i)
def pair_reduce():
    A(f"""v_add_u32 {v(V_A)}, {s(S_RING)}, {v(V_L16)}
    s_xor_b32 {s(S_T1)}, {s(S_W4)}, 1
    s_mul_i32 {s(S_T2)}, {s(S_T1)}, {RING_B}
    s_add_u32 {s(S_T2)}, {s(S_T2)}, {L_RING}
    v_add_u32 {v(V_B)}, {s(S_T2)}, {v(V_L16)}
    v_lshl_add_u32 {v(V_C)}, {s(S_W4)}, 2, {v(V_SY)}
    v_lshl_add_u32 {v(V_D)}, {s(S_T1)}, 2, {v(V_SY)}""")
    for q in range(4):
        A(f"ds_write_b128 {v(V_A)}, {v(AO+4*q,4)} offset:{1024*q}")
    A(f"""s_mov_b64 exec, 1
    ds_add_u32 {v(V_C)}, {v(V_ONE)} offset:{SY_PF}
    s_mov_b64 exec, -1""")
    lds_wait(SY_PF, 1, V_C, V_D)
    for q in range(4):
        A(f"ds_read_b128 {v(AO+4*q,4)}, {v(V_B)} offset:{1024*q}")
    for q in range(4):
        A(f"s_waitcnt lgkmcnt({3-q})")
        for i in range(4): A(f"v_add_f32 {v(AM+4*q+i)}, {v(AM+4*q+i)}, {v(AO+4*q+i)}")
def decide_local():
    A(f"""s_mov_b64 exec, 0xff
    v_cmp_ne_u32 vcc, {s(S_LOC)}, {v(V_B)}
    s_mov_b64 exec, -1
    s_cmp_eq_u64 vcc, 0
    s_cselect_b32 {s(S_LOC)}, 1, 0
    v_mov_b32 {v(V_B)}, {s(S_LOC)}
    ds_write_b32 {v(V_SY)}, {v(V_B)} offset:{SY_LOC}""")

A(f"s_mul_i32 {s(S_T1)}, {s(S_LO)}, {28*1024}\ns_add_u32 {s(S_T1)}, {s(S_T1)}, {W_GB0 + G_H}")
ksplit_loads(HA, HB_, S_T1)
if OPT["fine"] > 1: stamp("g2_issued")
decide_local()
S_HALF = S_RANK
def dma_block(slot, rsrc, vsrc, half, advance):
    A(f"""s_add_u32 m0, {s(S_RING)}, {2048*slot}
    s_add_u32 {s(S_T5)}, {s(S_SOFF)}, {half}
    buffer_load_dwordx4 {v(vsrc)}, {srd(rsrc)}, {s(S_SOFF)} offen lds
    s_add_u32 m0, m0, 1024
    s_add_u32 {s(S_SOFF)}, {s(S_SOFF)}, {advance}
    buffer_load_dwordx4 {v(vsrc)}, {srd(rsrc)}, {s(S_T5)} offen lds""")
def w3_block(slot): dma_block(slot, R_W3, V_B3584, 8*3584, 16*3584)
A(f"""s_mul_i32 {s(S_RING)}, {s(S_W4)}, {RING_B}
s_add_u32 {s(S_RING)}, {s(S_RING)}, {L_RING}
s_lshl_b32 {s(S_SOFF)}, {s(S_J)}, 2
s_add_u32 {s(S_SOFF)}, {s(S_SOFF)}, {s(S_W4)}
s_lshl_b32 {s(S_SOFF)}, {s(S_SOFF)}, 7""")
lds_wait(SY_W2, 4, V_C)
if OPT["fine"] > 1: stamp("g2_w2ok")
def prefill(i):
    if i >= 8: return 0
    w3_block(4 + i)
    return 2
ksplit_mm(prefill)
if OPT["fine"] > 1: stamp("g2_mm")
pair_reduce()
stamp("G_gemm2")
A(f"v_mul_f32 {v(V_A)}, {v(V_M)}, {v(V_R)}")
for i in range(16): A(f"v_sub_f32 {v(AM+i)}, {v(AM+i)}, {v(V_A)}")
for k in range(8):
    A(f"v_lshlrev_b32 {v(TMP+2*k)}, 16, {v(XC+k)}\nv_and_b32 {v(TMP+2*k+1)}, 0xffff0000, {v(XC+k)}")
for i in range(16): A(f"v_fma_f32 {v(X1+i)}, {v(TMP+i)}, {v(V_R)}, {v(AM+i)}")
pack16(X1, TMP)
packed_to_chunks(TMP)
by_mode(lambda f: store_chunks(TMP, G_X1, f))
A(f"v_add_f32 {v(V_A)}, {v(X1)}, {v(X1+1)}\nv_mul_f32 {v(V_B)}, {v(X1)}, {v(X1)}\nv_mul_f32 {v(V_C)}, {v(X1+1)}, {v(X1+1)}\nv_add_f32 {v(V_D)}, {v(X1+2)}, {v(X1+3)}")
for i in range(2, 16):
    if i >= 4:
        A(f"v_add_f32 {v(V_A if i % 2 == 0 else V_D)}, {v(V_A if i % 2 == 0 else V_D)}, {v(X1+i)}")
    A(f"v_fmac_f32 {v(V_B if i % 2 == 0 else V_C)}, {v(X1+i)}, {v(X1+i)}")
A(f"v_add_f32 {v(V_A)}, {v(V_A)}, {v(V_D)}\nv_add_f32 {v(V_B)}, {v(V_B)}, {v(V_C)}")
V_STA = 26
A(f"""v_lshlrev_b32 {v(V_STA)}, 4, {v(V_T)}
v_lshl_add_u32 {v(V_STA)}, {v(V_H)}, 11, {v(V_STA)}
s_lshr_b32 {s(S_T1)}, {s(S_J)}, 1
s_lshl_b32 {s(S_T1)}, {s(S_T1)}, 9
s_and_b32 {s(S_T2)}, {s(S_J)}, 1
s_lshl_b32 {s(S_T2)}, {s(S_T2)}, 1
s_add_u32 {s(S_T2)}, {s(S_T2)}, {s(S_LO)}
s_lshl_b32 {s(S_T2)}, {s(S_T2)}, 2
s_add_u32 {s(S_T1)}, {s(S_T1)}, {s(S_T2)}
s_lshl_b32 {s(S_T2)}, {s(S_HI)}, 12
s_add_u32 {s(S_T1)}, {s(S_T1)}, {s(S_T2)}
s_add_u32 {s(S_T1)}, {s(S_T1)}, {s(S_GB)}
s_add_u32 {s(S_T1)}, {s(S_T1)}, {G_ST}""")
swap_sum2(V_A, V_B)
by_mode(lambda f: A(f"buffer_store_dword {v(V_A)}, {v(V_STA)}, {srd(R_WS)}, {s(S_T1)} offen {f}"))
signal_last(SY_CX1, F_X1, V_A)
stamp("G_x1pub")
RW, GA, GBf, GACC, GCS = 32, 96, 112, 128, 192
V_TR0, V_TR1 = 27, 28
A(f"""v_add_u32 {v(V_TR0)}, {s(S_RING)}, {v(V_TP)}
v_xor_b32 {v(V_TR1)}, 64, {v(V_TR0)}""")
def blk_reads(dst, slot, second):
    trread(dst, V_TR0, 2048*slot); trread(dst + 2, V_TR0, 2048*slot + second)
    trread(dst + 4, V_TR1, 2048*slot); trread(dst + 6, V_TR1, 2048*slot + second)
def to_regs(slots, second):
    for i, sl in enumerate(slots):
        blk_reads(RW + 8*i, sl, second)
        if i % 2 == 1: A("s_waitcnt lgkmcnt(4)")
    A("s_waitcnt lgkmcnt(0)")
to_regs(range(4, 12), 512)
poll_group(F_X1, 7, V_A, V_B)
stamp("G_x1flags")
STL = 96
A(f"""s_lshl_b32 {s(S_T1)}, {s(S_HI)}, 12
s_lshl_b32 {s(S_T2)}, {s(S_LO)}, 10
s_add_u32 {s(S_T1)}, {s(S_T1)}, {s(S_T2)}
s_add_u32 {s(S_T1)}, {s(S_T1)}, {s(S_GB)}
s_add_u32 {s(S_T1)}, {s(S_T1)}, {G_ST}
buffer_load_dwordx4 {v(STL,4)}, {v(V_STA)}, {srd(R_WS)}, {s(S_T1)} offen sc1
buffer_load_dwordx4 {v(STL+4,4)}, {v(V_STA)}, {srd(R_WS)}, {s(S_T1)} offen offset:512 sc1
s_mul_i32 {s(S_T1)}, {s(S_W4)}, 14336
s_mov_b32 m0, {s(S_T1)}
s_add_u32 {s(S_T1)}, {s(S_T1)}, {s(S_GB)}
s_add_u32 {s(S_T1)}, {s(S_T1)}, {G_X1}""")
for i in range(14):
    A(f"buffer_load_dwordx4 {v(V_L16)}, {srd(R_WS)}, {s(S_T1)} offen offset:{1024*(i%4)} sc1 lds")
    if i % 4 == 3:
        A(f"s_add_u32 m0, m0, 4096\ns_add_u32 {s(S_T1)}, {s(S_T1)}, 4096")
l0 = lab("pq")
A(f"""s_lshl_b32 {s(S_T1)}, {s(S_W4)}, 8
s_add_u32 {s(S_T1)}, {s(S_T1)}, {L_STX}
v_lshl_add_u32 {v(V_A)}, {v(V_LANE)}, 2, {s(S_T1)}
s_waitcnt vmcnt(14)
s_cmp_eq_u32 {s(S_LO)}, 0
s_cbranch_scc1 {l0}
v_mov_b32 {v(STL+6)}, 0
v_mov_b32 {v(STL+7)}, 0
{l0}:""")
for w_ in (4, 2, 1):
    for i in range(w_): A(f"v_add_f32 {v(STL+i)}, {v(STL+i)}, {v(STL+w_+i)}")
A(f"ds_write_b32 {v(V_A)}, {v(STL)}")
lds_wait(SY_ABAR, 16, V_C)
vq = VMQ(); vq.issue("x1", 14)
for i in range(4):
    w3_block(i); vq.issue(("w3", 8 + i), 2)
vq.wait("x1")
lds_arrive(SY_GBAR)
for i in range(4, 12):
    w3_block(i); vq.issue(("w3", 8 + i), 2)
M1, R1, C0R, C1R = (24, 25), (30, 31), (5, 6), (7, 9)
S_HB, S_P = S_PASS, S_NF
A(f"""v_lshlrev_b32 {v(V_A)}, 2, {v(V_LANE)}
v_add_u32 {v(V_A)}, {L_STX}, {v(V_A)}""")
lds_wait(SY_GBAR, 8, V_C)
stamp("G_x1landed")
ST2 = 200
for q in range(4): A(f"ds_read_b32 {v(ST2+q)}, {v(V_A)} offset:{256*q}")
def x1_reads(ks):
    b = GBf + 8*(ks % 2)
    A(f"ds_read_b128 {v(b,4)}, {v(V_CH)} offset:{2048*ks}\nds_read_b128 {v(b+4,4)}, {v(V_CH)} offset:{2048*ks + 512}")
def row_constants():
    for tt in range(2):
        b = ST2 + 2*tt
        A(f"""v_add_f32 {v(b)}, {v(b)}, {v(b+1)}
        v_mul_f32 {v(b)}, {fh(1/448)}, {v(b)}
        v_mov_b32 {v(b+1)}, {v(b)}
        v_permlane32_swap_b32 {v(b)}, {v(b+1)}
        v_mov_b32 {v(M1[tt])}, {v(b)}
        v_fma_f32 {v(b+1)}, -{v(b)}, {v(b)}, {v(b+1)}
        v_max_f32 {v(b+1)}, 0, {v(b+1)}
        v_add_f32 {v(b+1)}, {fh(1e-5)}, {v(b+1)}
        v_rsq_f32 {v(R1[tt])}, {v(b+1)}
        v_mul_f32 {v(C0R[tt])}, {s(S_C0)}, {v(R1[tt])}
        v_mul_f32 {v(b)}, {v(R1[tt])}, {v(R1[tt])}
        v_mul_f32 {v(b)}, {v(b)}, {v(R1[tt])}
        v_mul_f32 {v(C1R[tt])}, {s(S_C1)}, {v(b)}""")
def producer(c, dst):
    A(f"""s_add_u32 {s(dst)}, {s(S_J)}, {(c % 14) // 2}
    s_cmp_ge_u32 {s(dst)}, 7
    s_cselect_b32 {s(S_T4)}, 7, 0
    s_sub_u32 {s(dst)}, {s(dst)}, {s(S_T4)}""")
def w4_block(c):
    if c % 2 == 0:
        producer(c, S_SOFF)
        A(f"s_mul_i32 {s(S_SOFF)}, {s(S_SOFF)}, {256*896}\ns_add_u32 {s(S_SOFF)}, {s(S_SOFF)}, {s(S_CNT)}")
        if c >= 14: A(f"s_add_u32 {s(S_SOFF)}, {s(S_SOFF)}, {32*896}")
    dma_block((20 + c) % 12, R_W4, V_B896, 8*896, 16*896)
    vq.issue(("w4", c), 2)
A(f"""s_mul_i32 {s(S_CNT)}, {s(S_W4)}, {64*896}
s_lshl_b32 {s(S_T1)}, {s(S_J)}, 7
s_add_u32 {s(S_CNT)}, {s(S_CNT)}, {s(S_T1)}""")
x1_reads(0)
for ks in range(28):
    nxt = ks + 1
    n = 0
    if nxt < 28:
        if nxt >= 8:
            vq.wait(("w3", nxt)); blk_reads(GA + 8*(nxt % 2), (nxt - 8) % 12, 512); n += 4
        x1_reads(nxt); n += 2
    A(f"s_waitcnt lgkmcnt({n})")
    a = RW + 8*ks if ks < 8 else GA + 8*(ks % 2)
    b = GBf + 8*(ks % 2)
    z = "0" if ks == 0 else None
    mfma(GACC, a, b, z)
    mfma(GACC + 16, a, b + 4, z)
    if ks >= 8:
        if ks + 12 < 28:
            w3_block((ks - 8) % 12); vq.issue(("w3", ks + 12), 2)
        else:
            w4_block(ks + 12 - 28)
    mfma16(GCS, a, V_SEL, z)
    mfma(GACC + 32, a + 4, b, z)
    mfma(GACC + 48, a + 4, b + 4, z)
    mfma16(GCS + 4, a + 4, V_SEL, z)
    if ks == 1: row_constants()
lds_arrive(SY_X1D)
stamp("G_g3mm")
CSY, GT, HP = 96, 112, 200
HBLK = 4096 + OPT["hpad"]
FSH, FBE = (7, 1024) if OPT["sepflag"] else (2, 128)
A(f"""v_lshlrev_b32 {v(V_A)}, 9, {v(V_H)}
v_sub_u32 {v(V_TR0)}, {v(V_TR0)}, {v(V_A)}
v_xor_b32 {v(V_TR1)}, 64, {v(V_TR0)}
s_mul_i32 {s(S_HB)}, {s(S_W4)}, {2*HBLK}
s_add_u32 {s(S_HB)}, {s(S_HB)}, {s(S_GB)}
s_add_u32 {s(S_HB)}, {s(S_HB)}, {G_HH}
s_mul_i32 {s(S_NN)}, {s(S_W4)}, {2*FBE}
s_add_u32 {s(S_NN)}, {s(S_NN)}, {s(S_FG)}
s_add_u32 {s(S_NN)}, {s(S_NN)}, {F_M}
v_lshlrev_b32 v29, {FSH}, {v(V_LANE)}""")
hp = lambda be, mm: HP + 16*be + 8*mm
def gelu_tile(be, tt):
    acc = GACC + 32*be + 16*tt
    for i in range(16): A(f"v_fma_f32 {v(acc+i)}, -{v(M1[tt])}, {v(CSY+i)}, {v(acc+i)}")
    for i in range(16): A(f"v_mul_f32 {v(GT+i)}, {v(acc+i)}, {v(acc+i)}")
    for i in range(16): A(f"v_fma_f32 {v(GT+i)}, {v(GT+i)}, {v(C1R[tt])}, {v(C0R[tt])}")
    for i in range(16): A(f"v_mul_f32 {v(GT+i)}, {v(GT+i)}, {v(acc+i)}")
    for i in range(16): A(f"v_exp_f32 {v(GT+i)}, {v(GT+i)}")
    for i in range(16): A(f"v_add_f32 {v(GT+i)}, 1.0, {v(GT+i)}")
    for i in range(16): A(f"v_rcp_f32 {v(GT+i)}, {v(GT+i)}")
    for i in range(16): A(f"v_mul_f32 {v(acc+i)}, {v(acc+i)}, {v(GT+i)}")
    for k in range(8): A(f"v_cvt_pk_bf16_f32 {v(hp(be, k // 4) + 4*tt + k % 4)}, {v(acc+2*k)}, {v(acc+2*k+1)}")
def h_stores(be):
    A(f"s_mul_i32 {s(S_T1)}, {s(S_J)}, {8*HBLK}\ns_add_u32 {s(S_T1)}, {s(S_T1)}, {s(S_HB)}")
    if be: A(f"s_add_u32 {s(S_T1)}, {s(S_T1)}, {HBLK}")
    def em(f):
        for mm in range(2):
            for tt in range(2):
                A(f"buffer_store_dwordx4 {v(hp(be, mm) + 4*tt,4)}, {v(V_L16)}, {srd(R_WS)}, {s(S_T1)} offen offset:{2048*mm + 1024*tt} {f}")
    by_mode(em, OPT["hflag"] > 0, "nt" if OPT["hflag"] == 1 else "")
    vq.issue(("st", be), 4)
def m_flag(be):
    vq.wait(("st", be))
    A(f"s_lshl_b32 {s(S_T1)}, {s(S_J)}, {FSH}\nv_mov_b32 {v(V_A)}, {s(S_T1)}\ns_mov_b64 exec, 1")
    by_mode(lambda f: A(f"buffer_store_dword {v(V_ONE)}, {v(V_A)}, {srd(R_WS)}, {s(S_NN)} offen offset:{FBE*be} {f}"), OPT["hflag"] > 0, "")
    exec_all()
    vq.issue(("fl", be))
colsum_spread(GCS, CSY, V_A)
gelu_tile(0, 0); gelu_tile(0, 1)
h_stores(0)
vq.wait(("w4", 7))
to_regs([(20 + c) % 12 for c in range(8)], 1024)
for c in range(12, 20): w4_block(c)
colsum_spread(GCS + 4, CSY, V_A)
m_flag(0)
gelu_tile(1, 0); gelu_tile(1, 1)
stamp("G_gemm3")
poll_flags(29, s(S_NN), 7, V_B)
vq.drained()
stamp("G_m0flags")
free_sets = [112, 120, 192]
pending = list(range(2, 14)) + list(range(16, 28))
bset = {0: hp(0, 0), 1: hp(0, 1), 14: hp(1, 0), 15: hp(1, 1)}
allow = [14]
def b_loads(limit):
    while pending and free_sets and pending[0] <= limit and pending[0] < allow[0]:
        c = pending.pop(0); r_ = free_sets.pop(0); bset[c] = r_
        if c % 2 == 0:
            producer(c, S_P)
            A(f"s_mul_i32 {s(S_P)}, {s(S_P)}, {8*HBLK}\ns_add_u32 {s(S_P)}, {s(S_P)}, {s(S_HB)}")
            if c >= 14: A(f"s_add_u32 {s(S_P)}, {s(S_P)}, {HBLK}")
        for tt in range(2):
            A(f"buffer_load_dwordx4 {v(r_+4*tt,4)}, {v(V_L16)}, {srd(R_WS)}, {s(S_P)} offen offset:{2048*(c % 2) + 1024*tt} sc1")
        vq.issue(("B", c), 2)
b_loads(4)
h_stores(1)
LOOK = 7
for c in range(28):
    nxt = c + 1
    n = 0
    if 8 <= nxt < 28:
        vq.wait(("w4", nxt)); blk_reads(GA + 8*(nxt % 2), (20 + nxt) % 12, 1024); n = 4
    vq.wait(("B", c), extra=f"lgkmcnt({n})" if c >= 8 else "")
    a = RW + 8*c if c < 8 else GA + 8*(c % 2)
    b = bset[c]
    z = "0" if c == 0 else None
    mfma(GACC, a, b, z)
    mfma(GACC + 16, a, b + 4, z)
    if c == 4: m_flag(1)
    if c == 9:
        A(f"s_mov_b64 exec, 0x7f\nbuffer_load_dword {v(V_B)}, v29, {srd(R_WS)}, {s(S_NN)} offen offset:{FBE} sc1\ns_mov_b64 exec, -1")
        vq.issue("chk")
    if c == 11:
        l0 = lab("m1ok")
        vq.wait("chk")
        A(f"""s_mov_b64 exec, 0x7f
        v_cmp_eq_u32 vcc, 0, {v(V_B)}
        s_mov_b64 exec, -1
        s_add_u32 {s(S_T3)}, {s(S_NN)}, {FBE}
        s_cbranch_vccz {l0}""")
        poll_flags(29, s(S_T3), 7, V_B)
        A(f"{l0}:")
        allow[0] = 28
    if 8 <= c < 16: w4_block(c + 12)
    mfma(GACC + 32, a + 4, b, z)
    mfma(GACC + 48, a + 4, b + 4, z)
    if c < 8: free_sets.append(a)
    free_sets.append(b)
    b_loads(c + LOOK)
stamp("G_gemm4")
lbls = [lab("gr") for _ in range(4)]
l_done = lab("grd")
OT4 = 96
A(f"v_add_u32 {v(V_A)}, {s(S_RING)}, {v(V_L16)}\ns_nop 9")
for w_ in range(4):
    A(f"{lbls[w_]}:")
    if w_ < 3:
        A(f"s_cmp_lg_u32 {s(S_W4)}, {w_}\ns_cbranch_scc1 {lbls[w_+1]}")
    tile = lambda u: GACC + 32*(u & 1) + 16*(u >> 1)
    for u in range(4):
        if u == w_: continue
        for k in range(4):
            A(f"ds_write_b128 {v(V_A)}, {v(tile(u)+4*k,4)} offset:{4096*u + 1024*k}")
    for i in range(16): A(f"v_mov_b32 {v(OT4+i)}, {v(tile(w_)+i)}")
    A(f"v_mov_b32 {v(V_D)}, {v(R1[w_ >> 1])}")
    if w_ < 3: A(f"s_branch {l_done}")
A(f"{l_done}:")
lds_arrive(SY_GBAR)
for u in range(1, 4):
    A(f"""s_add_u32 {s(S_T1)}, {s(S_W4)}, {u}
    s_and_b32 {s(S_T1)}, {s(S_T1)}, 3
    s_mul_i32 {s(S_T1)}, {s(S_T1)}, {RING_B}
    s_lshl_b32 {s(S_T2)}, {s(S_W4)}, 12
    s_add_u32 {s(S_T1)}, {s(S_T1)}, {s(S_T2)}
    s_add_u32 {s(S_T1)}, {s(S_T1)}, {L_RING}
    v_add_u32 {v(23+u)}, {s(S_T1)}, {v(V_L16)}""")
XU = 112
for k in range(8):
    A(f"v_lshlrev_b32 {v(XU+2*k)}, 16, {v(XC+k)}\nv_and_b32 {v(XU+2*k+1)}, 0xffff0000, {v(XC+k)}")
lds_wait(SY_GBAR, 12, V_C)
for u in range(3):
    for k in range(4):
        A(f"ds_read_b128 {v(32+16*u+4*k,4)}, {v(24+u)} offset:{1024*k}")
for u in range(3):
    for k in range(4):
        A(f"s_waitcnt lgkmcnt({11 - 4*u - k})")
        for i in range(4): A(f"v_add_f32 {v(OT4+4*k+i)}, {v(OT4+4*k+i)}, {v(32+16*u+4*k+i)}")
GT2 = 144
for i in range(16): A(f"v_fma_f32 {v(X1+i)}, {v(OT4+i)}, {v(V_D)}, {v(X1+i)}")
for i in range(16): A(f"v_mul_f32 {v(GT2+i)}, {fh(-LOG2E)}, {v(X1+i)}")
for i in range(16): A(f"v_exp_f32 {v(GT2+i)}, {v(GT2+i)}")
for i in range(16): A(f"v_add_f32 {v(GT2+i)}, 1.0, {v(GT2+i)}")
for i in range(16): A(f"v_rcp_f32 {v(GT2+i)}, {v(GT2+i)}")
for i in range(16): A(f"v_mul_f32 {v(X1+i)}, {v(X1+i)}, {v(GT2+i)}")
stamp("G_gate")
A(f"""s_lshl_b32 {s(S_T1)}, {s(S_W4)}, 13
v_add_u32 {v(V_A)}, {s(S_T1)}, {v(V_L16)}
v_mul_u32_u24 {v(V_B)}, 896, {v(V_T)}
v_lshl_add_u32 {v(V_B)}, {v(V_H)}, 4, {v(V_B)}
s_lshl_b32 {s(S_T1)}, {s(S_G)}, 1
s_add_u32 {s(S_T1)}, {s(S_T1)}, {s(S_HI)}
s_mul_i32 {s(S_T1)}, {s(S_T1)}, {32*896}
s_lshl_b32 {s(S_T2)}, {s(S_J)}, 1
s_add_u32 {s(S_T2)}, {s(S_T2)}, {s(S_LO)}
s_lshl_b32 {s(S_T2)}, {s(S_T2)}, 6
s_add_u32 {s(S_T1)}, {s(S_T1)}, {s(S_T2)}""")
lds_wait(SY_S, 4, V_C)
stamp("G_sready")
for q in range(4):
    A(f"ds_read_b128 {v(32+4*q,4)}, {v(V_A)} offset:{1024*q}\nds_read_b128 {v(48+4*q,4)}, {v(V_A)} offset:{4096 + 1024*q}")
for q in range(4):
    A(f"s_waitcnt lgkmcnt({6 - 2*q})")
    for i in range(4): A(f"v_add_f32 {v(32+4*q+i)}, {v(32+4*q+i)}, {v(48+4*q+i)}")
    for i in range(4): A(f"v_fma_f32 {v(X1+4*q+i)}, {v(X1+4*q+i)}, {v(32+4*q+i)}, {v(XU+4*q+i)}")
pack16(X1, GT2)
packed_to_chunks(GT2)
A(f"""buffer_store_dwordx4 {v(GT2,4)}, {v(V_B)}, {srd(R_OUT)}, {s(S_T1)} offen nt
buffer_store_dwordx4 {v(GT2+4,4)}, {v(V_B)}, {srd(R_OUT)}, {s(S_T1)} offen offset:32 nt""")
stamp("G_end", True)
A("s_endpgm")
STAMPS_G = list(STAMPS)

A(f"""L_g_kv:
s_mul_i32 {s(S_T1)}, {s(S_LO)}, 25088
s_add_u32 {s(S_T1)}, {s(S_T1)}, {L_S1}
v_add_u32 {v(V_WA)}, {s(S_T1)}, {v(V_WA2)}
s_lshl_b32 {s(S_N0)}, {s(S_G)}, 1
s_add_u32 {s(S_N0)}, {s(S_N0)}, {s(S_HI)}
s_lshl_b32 {s(S_N0)}, {s(S_N0)}, 12
s_add_u32 {s(S_N0)}, {s(S_N0)}, {W_KV}
s_cmp_eq_u32 {s(S_LO)}, 1
s_cbranch_scc1 L_g_v""")
phaseA1("K")
colsum_spread(CS4, CSX, V_A)
center_scale(ACC, CSX, V_R)
zero_pad_dims(ACC)
pack16(ACC, TMP)
exec_hi()
A(f"v_mov_b32 {v(TMP+6)}, {ONES}\nv_mov_b32 {v(TMP+7)}, 0x3f80")
exec_all()
A(f"""buffer_store_dwordx4 {v(TMP,4)}, {v(V_L16)}, {srd(R_WS)}, {s(S_N0)} offen sc1
buffer_store_dwordx4 {v(TMP+4,4)}, {v(V_L16)}, {srd(R_WS)}, {s(S_N0)} offen offset:1024 sc1""")
norm2(ACC, V_A, V_B)
for sh in (1, 2, 4, 8):
    A(f"v_max_f32_dpp {v(V_A)}, {v(V_A)}, {v(V_A)} row_shr:{sh} row_mask:0xf bank_mask:0xf")
A(f"""s_mov_b64 exec, 0x80008000
ds_max_u32 {v(V_SY)}, {v(V_A)} offset:{SY_KMAX}
s_mov_b64 exec, -1
s_branch L_g_kvpub
L_g_v:""")
phaseA1("V")
A(f"""v_mul_f32 {v(V_A)}, {v(V_M)}, {v(V_R)}
v_cmp_eq_u32 vcc, 0, {v(V_H)}
s_lshl_b32 {s(S_T1)}, {s(S_HI)}, 8
s_add_u32 {s(S_T1)}, {s(S_T1)}, {L_VST}
v_lshl_add_u32 {v(V_B)}, {v(V_LANE)}, 2, {s(S_T1)}
v_cndmask_b32 {v(V_A)}, {v(V_A)}, {v(V_R)}, vcc
ds_write_b32 {v(V_B)}, {v(V_A)}
v_lshl_add_u32 {v(V_B)}, {v(V_H)}, 4, {s(S_T1)}""")
for jj in range(4):
    A(f"ds_read_b128 {v(CSX+4*jj,4)}, {v(V_B)} offset:{32*jj}")
    A(f"ds_read_b128 {v(TMP+4*jj,4)}, {v(V_B)} offset:{128 + 32*jj}")
A(f"""v_and_b32 {v(V_A)}, 16, {v(V_LANE)}
v_cmp_eq_u32 vcc, 0, {v(V_A)}
v_cndmask_b32 {v(V_A)}, {v(CS4+1)}, {v(CS4)}, vcc
s_waitcnt lgkmcnt(0)""")
for i in range(16): A(f"v_mul_f32 {v(TMP+i)}, {v(TMP+i)}, {v(V_A)}")
for i in range(16): A(f"v_fma_f32 {v(ACC+i)}, {v(ACC+i)}, {v(CSX+i)}, -{v(TMP+i)}")
pack16(ACC, TMP)
A(f"v_cmp_eq_u32 vcc, 28, {v(V_T)}\nv_mov_b32 {v(V_A)}, {ONES}")
for k in range(8): A(f"v_cndmask_b32 {v(TMP+k)}, {v(TMP+k)}, {v(V_A)}, vcc")
A(f"""buffer_store_dwordx4 {v(TMP,4)}, {v(V_L16)}, {srd(R_WS)}, {s(S_N0)} offen offset:2048 sc1
buffer_store_dwordx4 {v(TMP+4,4)}, {v(V_L16)}, {srd(R_WS)}, {s(S_N0)} offen offset:3072 sc1
L_g_kvpub:""")
nstamp[0] = 2; stamp("kv_stored")
lds_arrive(SY_GBAR)
flags_cleared()
def kv_flags():
    A(f"""ds_read_b32 {v(V_C)}, {v(V_SY)} offset:{SY_KMAX}
    s_waitcnt lgkmcnt(0)
    v_or_b32 {v(V_C)}, 1, {v(V_C)}
    buffer_store_dword {v(V_C)}, {v(V_A)}, {srd(R_WS)}, {s(S_T3)} offen offset:{F_KV - F_H - 7*128} sc1""")
    h_flag()
signal_last(SY_CH, F_H, V_A, emit=kv_flags)
stamp("kv_pub")
A(f"s_lshl_b32 {s(S_T0)}, {s(S_G)}, 2\ns_add_u32 {s(S_T0)}, {s(S_T0)}, {s(S_W4)}")
for r_, n_ in ((R_W3, 1605632), (R_W4, 1605632), (R_WO, 401408)):
    touch(r_, n_, 128, S_T0)
if OPT["l2pf"]:
    A(f"""s_and_b32 {s(S_T0)}, {s(S_G)}, 3
    s_lshl_b32 {s(S_T0)}, {s(S_T0)}, 2
    s_add_u32 {s(S_T0)}, {s(S_T0)}, {s(S_W4)}""")
    for r_, n_ in ((R_W3, 1605632), (R_W4, 1605632), (R_WO, 401408))[:OPT["l2pf"]]:
        touch(r_, n_, 16, S_T0, throttle=1)
stamp("kv_touched")
poll_group(F_H, 8, V_A, V_B)
decide_local()
lds_arrive(SY_X1D)
nstamp[0] = len(STAMPS_G) - 1
stamp("G_end", True)
A("s_endpgm")

nstamp[0] = 1
del STAMPS[1:]
A(f"""L_role_A:
s_cmp_eq_u32 {s(S_KV)}, 1
s_cbranch_scc1 L_a_kvcopy
""")
slice_pieces(R_W1, L_S1, range(14))
A(f"""s_branch L_a_copied
L_a_kvcopy:
s_mov_b32 {s(R_STR+2)}, 25088""")
for st in range(3):
    for q in range(4):
        A(f"""s_add_u32 {s(S_T1)}, {s(S_W4)}, {4*q}
        s_min_u32 {s(S_T1)}, {s(S_T1)}, 13
        s_cmp_ge_u32 {s(S_T1)}, 7
        s_cselect_b64 {s(R_STR,2)}, {s(R_WV,2)}, {s(R_WK,2)}
        s_cselect_b32 {s(S_T2)}, 7, 0
        s_cselect_b32 {s(S_T3)}, 25088, 0
        s_sub_u32 {s(S_T1)}, {s(S_T1)}, {s(S_T2)}
        s_lshl_b32 {s(S_T1)}, {s(S_T1)}, 10
        s_add_u32 {s(S_T1)}, {s(S_T1)}, {7168*st}
        s_add_u32 {s(S_T3)}, {s(S_T3)}, {s(S_T1)}
        s_add_u32 m0, {s(S_T3)}, {L_S1}
        s_nop 0
        buffer_load_dwordx4 {v(V_L16)}, {srd(R_STR)}, {s(S_T1)} offen lds""")
A(f"""s_lshl_b32 {s(S_T1)}, {s(S_W4)}, 10
s_add_u32 {s(S_T1)}, {s(S_T1)}, 21504
s_add_u32 m0, {s(S_T1)}, {L_S1}
s_cmp_eq_u32 {s(S_W4)}, 3
s_cselect_b32 exec_hi, 0, -1
buffer_load_dwordx4 {v(V_L16)}, {srd(R_WK)}, {s(S_T1)} offen lds
s_add_u32 m0, m0, 25088
s_nop 0
buffer_load_dwordx4 {v(V_L16)}, {srd(R_WV)}, {s(S_T1)} offen lds
s_mov_b32 exec_hi, -1
L_a_copied:
s_waitcnt vmcnt(14)
s_barrier""")
stamp("x_landed")
A(f"""v_lshl_add_u32 v25, {s(S_W4)}, 6, {v(V_LANE)}
s_mul_i32 {s(S_RING)}, {s(S_KV)}, {50176 - 8192}
s_add_u32 {s(S_RING)}, {s(S_RING)}, {L_WQ6}""")
pattern(24, 25)
A("v_add_u32 v25, 256, v25")
pattern(25, 25)
A(f"s_add_u32 {s(S_T0)}, {s(S_W4)}, 4\ns_cmp_eq_u32 {s(S_W4)}, 3\ns_cbranch_scc1 L_a_wq3")
def wq_copy(two):
    ents = [(p, u) for u in range(7) for p in range(2)]
    cuts = [0, 5, 7, 9, 11, 14]
    done = 0
    for b in range(5):
        for p, u in ents[cuts[b]:cuts[b+1]]:
            if p == 1 and not two: continue
            dma_rows(R_WQ, 24 + p, S_T0 if p else S_W4, [(u, L_S2 + 7168*u if u < 6 else s(S_RING))])
            done += 1
        if b < 4:
            A(f"s_waitcnt vmcnt({[10, 6, 2, 0][b] + done})\ns_barrier")
            if b == 0:
                common_addresses()
                A(f"""v_lshlrev_b32 {v(V_D)}, 1, {v(V_H)}
                v_lshl_add_u32 {v(V_D)}, {v(V_A)}, 2, {v(V_D)}
                v_mul_u32_u24 {v(V_WA)}, 112, {v(V_D)}
                v_add_u32 {v(V_WA)}, {v(V_WA)}, {v(V_B)}
                v_cmp_le_u32 vcc, 56, {v(V_B)}
                s_lshl_b32 {s(S_T2)}, {s(S_LO)}, 5
                v_mov_b32 {v(V_A)}, {s(S_T2)}
                v_cndmask_b32 {v(V_A)}, 0, {v(V_A)}, vcc
                v_sub_u32 {v(V_WA)}, {v(V_WA)}, {v(V_A)}
                s_mul_i32 {s(S_T1)}, {s(S_LO)}, 56
                s_add_u32 {s(S_T2)}, {s(S_T1)}, {s(S_RING)}
                v_add_u32 {v(V_WA2)}, {s(S_T2)}, {v(V_WA)}
                s_add_u32 {s(S_T2)}, {s(S_T1)}, {L_S2}
                v_add_u32 {v(V_WA)}, {s(S_T2)}, {v(V_WA)}""")
            if b == 1: stats_final()
wq_copy(True)
A("s_branch L_a_wqdone\nL_a_wq3:")
wq_copy(False)
A("L_a_wqdone:")
for i in range(8):
    A(f"ds_read_b128 {v(BF+4*i,4)}, {v(V_XB)} offset:{32*i}")
A("s_waitcnt vmcnt(0)")
lds_arrive(SY_ABAR)
lds_wait(SY_ABAR, 4, V_C)
stamp("A_wq")
tile_steps("Q", False)
lds_arrive(SY_ABAR)
stamp("A_qgemm")
colsum_spread(CS4, CSX, V_A)
lds_wait(SY_GBAR, 4, V_C)
lds_wait(SY_ABAR, 8, V_C)
A(f"v_mul_f32 {v(V_RR)}, {fh(28 ** -0.5 * LOG2E)}, {v(V_R)}")
center_scale(ACC, CSX, V_RR)
zero_pad_dims(ACC)
pack16(ACC, TMP + 16)
norm2(ACC, V_A, V_B)
A(f"""s_lshl_b32 {s(S_T1)}, {s(S_W4)}, 7
s_add_u32 {s(S_T1)}, {s(S_T1)}, {L_QN}
v_lshl_add_u32 {v(V_B)}, {v(V_T)}, 2, {s(S_T1)}
ds_write_b32 {v(V_B)}, {v(V_A)}
s_mul_i32 {s(S_T1)}, {s(S_W4)}, {RING_B}
s_add_u32 {s(S_T1)}, {s(S_T1)}, {L_RING + 4096}
v_add_u32 {v(V_B)}, {s(S_T1)}, {v(V_L16)}
ds_write_b128 {v(V_B)}, {v(TMP+16,4)}
ds_write_b128 {v(V_B)}, {v(TMP+20,4)} offset:1024""")
lds_arrive(SY_ABAR)
QF, OA, SS, EE, PP, KV = 32, 64, 128, 160, 168, 176
A(f"""v_add_u32 {v(V_A)}, {s(S_XCD)}, {v(V_LANE)}
v_and_b32 {v(V_A)}, 7, {v(V_A)}
v_lshl_add_u32 {v(V_A)}, {v(V_A)}, 2, {s(S_W4)}
v_mul_u32_u24 {v(V_A)}, {FLAG_GS}, {v(V_A)}
s_mov_b32 {s(S_T3)}, {F_KV}
s_lshl_b32 {s(S_N0)}, {s(S_W4)}, 13
s_add_u32 {s(S_N0)}, {s(S_N0)}, {W_KV}""")
lds_wait(SY_CH, 4, V_C)
stamp("A_w2")
poll_flags(V_A, s(S_T3), 8, V_B)
stamp("A_kvflags")
def tile_soff(dst, d, ii):
    A(f"""s_add_u32 {s(dst)}, {s(S_XCD)}, {d}
    s_and_b32 {s(dst)}, {s(dst)}, 7
    s_lshl_b32 {s(dst)}, {s(dst)}, 15
    s_add_u32 {s(dst)}, {s(dst)}, {s(S_N0)}""")
    if ii: A(f"s_add_u32 {s(dst)}, {s(dst)}, 4096")
def ldK(set_, soff):
    if OPT["ldprio"]: A("s_setprio 3")
    ldK_(set_, soff)
    if OPT["ldprio"]: A(f"s_setprio {OPT['aprio']}")
def ldV(set_, soff):
    if OPT["ldprio"]: A("s_setprio 3")
    ldV_(set_, soff)
    if OPT["ldprio"]: A(f"s_setprio {OPT['aprio']}")
def ldK_(set_, soff):
    for m in range(2): A(f"buffer_load_dwordx4 {v(KV+16*set_+4*m,4)}, {v(V_L16)}, {srd(R_WS)}, {s(soff)} offen offset:{1024*m} sc1")
def ldV_(set_, soff):
    for m in range(2): A(f"buffer_load_dwordx4 {v(KV+16*set_+8+4*m,4)}, {v(V_L16)}, {srd(R_WS)}, {s(soff)} offen offset:{2048+1024*m} sc1")
def first_tiles(ns=(0, 1)):
    for n in ns:
        tile_soff(S_T1, n >> 1, n & 1)
        ldK(n, S_T1); ldV(n, S_T1)
first_tiles()
for sh in (1, 2, 4):
    A(f"v_max_f32_dpp {v(V_B)}, {v(V_B)}, {v(V_B)} row_shr:{sh} row_mask:0xf bank_mask:0xf")
A(f"v_readlane_b32 {s(S_KMAX)}, {v(V_B)}, 7")
lds_wait(SY_ABAR, 12, V_C)
A(f"v_add_u32 {v(V_B)}, {L_RING + 4096}, {v(V_L16)}\nv_add_u32 {v(V_D)}, {L_RING + 4096 + 2*RING_B}, {v(V_L16)}")
for q in range(4):
    r_ = V_B if q < 2 else V_D
    A(f"ds_read_b128 {v(QF+8*q,4)}, {v(r_)} offset:{RING_B*(q%2)}\nds_read_b128 {v(QF+8*q+4,4)}, {v(r_)} offset:{RING_B*(q%2)+1024}")
A(f"""v_lshlrev_b32 {v(V_B)}, 3, {v(V_LANE)}
v_add_u32 {v(V_B)}, {L_QN}, {v(V_B)}
ds_read_b64 v[24:25], {v(V_B)}
s_mov_b32 {s(S_PASS)}, 20
s_waitcnt lgkmcnt(0)
v_max_f32 v24, v24, v25
v_mul_f32 v24, {s(S_KMAX)}, v24
v_cmp_nge_f32 vcc, {fh(-1.0 if OPT['force_slow'] else 1600.0)}, v24
s_cmp_lg_u64 vcc, 0
s_cselect_b32 {s(S_T1)}, 1, 0
v_mov_b32 v24, {s(S_T1)}
s_mov_b64 exec, 1
ds_add_u32 {v(V_SY)}, v24 offset:{SY_BAD}
ds_add_u32 {v(V_SY)}, {v(V_ONE)} offset:{SY_ABAR}
s_mov_b64 exec, -1
L_attn:""")
for i in range(64): A(f"v_mov_b32 {v(OA+i)}, 0")
def qk(n, m):
    t_, q = (n // 4) % 4, n % 4
    mfma(SS + 16*(n % 2), KV + 16*t_ + 4*m, QF + 8*q + 4*m, "0" if m == 0 else None)
def pv(n, m):
    t_, q = (n // 4) % 4, n % 4
    mfma(OA + 16*q, KV + 16*t_ + 8 + 4*m, PP + 4*m)
def exps(n, qq):
    for i in range(4): A(f"v_exp_f32 {v(EE + 4*(qq % 2) + i)}, {v(SS + 16*(n % 2) + 4*qq + i)}")
def cvts(qq):
    e = EE + 4*(qq % 2)
    A(f"v_cvt_pk_bf16_f32 {v(PP+2*qq)}, {v(e)}, {v(e+1)}\nv_cvt_pk_bf16_f32 {v(PP+2*qq+1)}, {v(e+2)}, {v(e+3)}")
def slot_q12(n, first=False):
    if n % 4 == 3: A("s_waitcnt vmcnt(10)")
    qk(n + 1, 0)
    if n % 4 == 3: ldK((n // 4) % 4, S_T1 + ((n // 4) % 2))
    if not first: cvts(3)
    exps(n, 0)
    if not first: pv(n - 1, 1)
    cvts(0)
    exps(n, 1)
def slot_q34(n):
    qk(n + 1, 1)
    if n % 4 == 0 and n > 0: ldV(((n // 4) - 1) % 4, S_T1 + (((n // 4) - 1) % 2))
    cvts(1)
    exps(n, 2)
    if n % 4 == 0: A(f"s_waitcnt vmcnt(12)")
    pv(n, 0)
    cvts(2)
    exps(n, 3)
if OPT["fine"] > 1: stamp("a_q")
A("s_waitcnt vmcnt(4)")
if OPT["fine"] > 1: stamp("a_k0")
qk(0, 0); qk(0, 1)
first_tiles((2,))
slot_q12(0, first=True)
A(f"s_mov_b32 {s(S_CNT)}, 2")
A(".p2align 6\nL_att_loop:")
qk(1, 1)
l0 = lab("nov")
l1 = lab("v3")
A(f"s_cmp_eq_u32 {s(S_CNT)}, 2\ns_cbranch_scc0 {l1}")
tile_soff(S_T2, 1, 1)
ldK(3, S_T2)
A(f"{l1}:")
ldV(3, S_T2)
cvts(1); exps(0, 2)
A("s_waitcnt vmcnt(12)")
pv(0, 0); cvts(2); exps(0, 3)
def next_pair():
    A(f"""s_add_u32 {s(S_T1)}, {s(S_XCD)}, {s(S_CNT)}
    s_and_b32 {s(S_T1)}, {s(S_T1)}, 7
    s_lshl_b32 {s(S_T1)}, {s(S_T1)}, 15
    s_add_u32 {s(S_T1)}, {s(S_T1)}, {s(S_N0)}
    s_cmp_ge_u32 {s(S_CNT)}, 8
    s_cselect_b32 {s(S_T1)}, {OOB}, {s(S_T1)}
    s_add_u32 {s(S_T3)}, {s(S_T1)}, 4096
    s_add_u32 {s(S_CNT)}, {s(S_CNT)}, 1""")
for n in range(1, 16):
    if n in (2, 10): next_pair()
    if n in (5, 13): A(f"s_mov_b32 {s(S_T2)}, {s(S_T3)}")
    slot_q12(n); slot_q34(n)
    if OPT["fine"] > 2 and n in (3, 7, 11):
        A(f"s_lshl_b32 {s(S_T5)}, {s(S_CNT)}, 1")
        stamp_dyn(40 - 6 + (n == 7), S_T5)
slot_q12(16)
stamp_dyn(28, S_CNT)
A(f"s_cmp_lt_u32 {s(S_CNT)}, {4 if OPT['noA'] else 10}\ns_cbranch_scc1 L_att_loop")
stamp("A_attn")
lds_wait(SY_X1D, 4, V_C, nap=True)
if OPT["fine"] > 1: stamp("a_gok")
lbls = [lab("red") for _ in range(4)]
l_done = lab("redd")
OT = 128
for a_ in range(4):
    A(f"{lbls[a_]}:")
    if a_ < 3:
        A(f"s_cmp_lg_u32 {s(S_W4)}, {a_}\ns_cbranch_scc1 {lbls[a_+1]}")
    for q in range(4):
        if q == a_: continue
        slot = q * 3 + (a_ if a_ < q else a_ - 1)
        for k in range(4):
            A(f"ds_write_b128 {v(V_L16)}, {v(OA+16*q+4*k,4)} offset:{4096*slot + 1024*k}")
    for i in range(16): A(f"v_mov_b32 {v(OT+i)}, {v(OA+16*a_+i)}")
    if a_ < 3: A(f"s_branch {l_done}")
A(f"{l_done}:")
lds_arrive(SY_ABAR)
A(f"s_mul_i32 {s(S_T1)}, {s(S_W4)}, 12288\nv_add_u32 {v(V_A)}, {s(S_T1)}, {v(V_L16)}")
lds_wait(SY_ABAR, s(S_PASS), V_C)
A(f"ds_read_b64 v[24:25], {v(V_SY)} offset:{SY_BAD}")
for k in range(12):
    A(f"ds_read_b128 {v(OA+4*k,4)}, {v(V_A)} offset:{1024*k}")
A(f"""s_waitcnt lgkmcnt(12)
v_readfirstlane_b32 {s(S_T1)}, v24
v_readfirstlane_b32 {s(S_LOC)}, v25
s_cmp_eq_u32 {s(S_PASS)}, 20
s_cselect_b32 {s(S_T1)}, {s(S_T1)}, 0
s_cmp_lg_u32 {s(S_T1)}, 0
s_cbranch_scc1 L_slow""")
for k in range(12):
    A(f"s_waitcnt lgkmcnt({11-k})")
    for i in range(4): A(f"v_add_f32 {v(OT+4*(k%4)+i)}, {v(OT+4*(k%4)+i)}, {v(OA+4*k+i)}")
A(f"""v_mov_b32 {v(V_A)}, {v(OT+12)}
v_mov_b32 {v(V_B)}, {v(OT+12)}
v_permlane32_swap_b32 {v(V_A)}, {v(V_B)}
v_rcp_f32 {v(V_B)}, {v(V_B)}""")
for i in range(16): A(f"v_mul_f32 {v(OT+i)}, {v(OT+i)}, {v(V_B)}")
pack16(OT, OA)
A(f"""s_mul_i32 {s(S_T1)}, {s(S_LO)}, 7
v_add_u32 {v(V_A)}, {s(S_T1)}, {v(V_H)}
v_lshrrev_b32 {v(V_B)}, 1, {v(V_A)}
v_and_b32 {v(V_A)}, 1, {v(V_A)}
v_lshlrev_b32 {v(V_B)}, 10, {v(V_B)}
v_lshl_add_u32 {v(V_B)}, {v(V_A)}, 3, {v(V_B)}
v_lshl_add_u32 {v(V_B)}, {v(V_T)}, 4, {v(V_B)}
s_mul_i32 {s(S_T1)}, {s(S_J)}, 7168
s_lshl_b32 {s(S_T2)}, {s(S_HI)}, 9
s_add_u32 {s(S_T1)}, {s(S_T1)}, {s(S_T2)}
s_add_u32 {s(S_T1)}, {s(S_T1)}, {s(S_GB)}
s_add_u32 {s(S_T1)}, {s(S_T1)}, {G_O}""")
def o_stores(f):
    for jj in range(4):
        if jj == 3: exec_lo()
        A(f"buffer_store_dwordx2 {v(OA+2*jj,2)}, {v(V_B)}, {srd(R_WS)}, {s(S_T1)} offen offset:{1024*jj} {f}")
    exec_all()
if OPT["fine"] > 1: stamp("a_red")
by_mode(o_stores)
lds_arrive(SY_AB2)
signal_last(SY_CO, F_O, V_A)
stamp("A_opub")
A(f"s_cmp_eq_u32 {s(S_KV)}, 1\ns_cbranch_scc1 L_a_end")
lds_wait(SY_AB2, 4, V_C)
slice_pieces(R_WO, L_S1, range(14))
A(f"""v_bfe_u32 {v(V_A)}, {v(V_LANE)}, 2, 2
v_lshl_add_u32 {v(V_D)}, {v(V_H)}, 3, {v(V_A)}
v_and_b32 {v(V_B)}, 3, {v(V_LANE)}
v_lshlrev_b32 {v(V_B)}, 3, {v(V_B)}
v_lshl_add_u32 {v(V_TP)}, {v(V_D)}, 7, {v(V_B)}
v_lshlrev_b32 {v(V_A)}, 5, {v(V_A)}
v_and_b32 {v(V_A)}, 64, {v(V_A)}
v_lshlrev_b32 {v(V_B)}, 1, {v(V_LANE)}
v_and_b32 {v(V_B)}, 32, {v(V_B)}
v_add3_u32 {v(V_TP)}, {v(V_TP)}, {v(V_A)}, {v(V_B)}
v_lshlrev_b32 {v(V_CH)}, 4, {v(V_T)}
v_lshl_add_u32 {v(V_CH)}, {v(V_H)}, 10, {v(V_CH)}""")
poll_group(F_O, 8, V_A, V_B)
stamp("A_oflags")
lds_arrive(SY_AB2)
A(f"""s_mul_i32 {s(S_T1)}, {s(S_LO)}, {28*1024}
s_lshl_b32 {s(S_T2)}, {s(S_HI)}, 9
s_add_u32 {s(S_T1)}, {s(S_T1)}, {s(S_T2)}
s_add_u32 {s(S_T1)}, {s(S_T1)}, {s(S_GB)}
s_add_u32 {s(S_T1)}, {s(S_T1)}, {G_O}""")
ksplit_loads(V_CH, V_CH, S_T1)
lds_wait(SY_AB2, 8, V_C)
if OPT["fine"] > 1:
    stamp("o_wo"); A("s_waitcnt vmcnt(0)"); stamp("o_all")
ksplit_mm()
lds_arrive(SY_AB2)
A(f"""s_lshl_b32 {s(S_T1)}, {s(S_W4)}, 13
s_lshl_b32 {s(S_T2)}, {s(S_LO)}, 12
s_add_u32 {s(S_T1)}, {s(S_T1)}, {s(S_T2)}
v_add_u32 {v(V_A)}, {s(S_T1)}, {v(V_L16)}
v_xor_b32 {v(V_B)}, 8192, {v(V_A)}""")
lds_wait(SY_AB2, 12, V_C)
for q in range(4):
    A(f"ds_write_b128 {v(V_A)}, {v(AM+4*q,4)} offset:{1024*q}\nds_write_b128 {v(V_B)}, {v(AO+4*q,4)} offset:{1024*q}")
lds_arrive(SY_S)
A("L_a_end:")
stamp("A_end", True)
A("s_endpgm")

MXR = 24
A(f"""L_slow:
s_waitcnt vmcnt(0) lgkmcnt(0)
s_mov_b32 {s(S_CNT)}, 0""")
for q in range(4): A(f"v_mov_b32 {v(MXR+q)}, 0xff800000")
A("L_slow_loop:")
A(f"""s_lshr_b32 {s(S_T2)}, {s(S_CNT)}, 1
s_add_u32 {s(S_T1)}, {s(S_XCD)}, {s(S_T2)}
s_and_b32 {s(S_T1)}, {s(S_T1)}, 7
s_lshl_b32 {s(S_T1)}, {s(S_T1)}, 15
s_add_u32 {s(S_T1)}, {s(S_T1)}, {s(S_N0)}
s_and_b32 {s(S_T2)}, {s(S_CNT)}, 1
s_lshl_b32 {s(S_T2)}, {s(S_T2)}, 12
s_add_u32 {s(S_T1)}, {s(S_T1)}, {s(S_T2)}""")
for m in range(2): A(f"buffer_load_dwordx4 {v(OA+4*m,4)}, {v(V_L16)}, {srd(R_WS)}, {s(S_T1)} offen offset:{1024*m} sc1")
A("s_waitcnt vmcnt(0)")
for q in range(4):
    mfma(SS, OA, QF + 8*q, "0"); mfma(SS, OA + 4, QF + 8*q + 4)
    for i in range(8): A(f"v_max3_f32 {v(MXR+q)}, {v(SS+2*i)}, {v(SS+2*i+1)}, {v(MXR+q)}")
A(f"""s_add_u32 {s(S_CNT)}, {s(S_CNT)}, 1
s_cmp_lt_u32 {s(S_CNT)}, 16
s_cbranch_scc1 L_slow_loop
s_lshl_b32 {s(S_T1)}, {s(S_W4)}, 9
s_add_u32 {s(S_T1)}, {s(S_T1)}, {L_MX}
v_lshl_add_u32 {v(V_A)}, {v(V_T)}, 2, {s(S_T1)}""")
for q in range(4):
    A(f"""v_mov_b32 {v(V_B)}, {v(MXR+q)}
    v_permlane32_swap_b32 {v(MXR+q)}, {v(V_B)}
    v_max_f32 {v(MXR+q)}, {v(MXR+q)}, {v(V_B)}
    ds_write_b32 {v(V_A)}, {v(MXR+q)} offset:{128*q}""")
lds_arrive(SY_ABAR)
first_tiles()
lds_wait(SY_ABAR, 24, V_C)
A(f"v_lshlrev_b32 {v(V_A)}, 2, {v(V_T)}\nv_add_u32 {v(V_A)}, {L_MX}, {v(V_A)}")
for q in range(4):
    for w_ in range(4): A(f"ds_read_b32 {v(SS+4*q+w_)}, {v(V_A)} offset:{512*w_ + 128*q}")
    A("s_waitcnt lgkmcnt(0)")
exec_hi()
for q in range(4):
    b = SS + 4*q
    A(f"""v_max3_f32 {v(b)}, {v(b)}, {v(b+1)}, {v(b+2)}
    v_max_f32 {v(b)}, {v(b)}, {v(b+3)}
    v_sub_f32 {v(b)}, 0, {v(b)}
    v_and_b32 {v(b+1)}, 0xffff0000, {v(b)}
    v_sub_f32 {v(b)}, {v(b)}, {v(b+1)}
    v_and_b32 {v(b+2)}, 0xffff0000, {v(b)}
    v_sub_f32 {v(b)}, {v(b)}, {v(b+2)}
    v_lshrrev_b32 {v(b+1)}, 16, {v(b+1)}
    v_or_b32 {v(QF+8*q+6)}, {v(b+1)}, {v(b+2)}
    v_lshrrev_b32 {v(QF+8*q+7)}, 16, {v(b)}""")
exec_all()
A(f"s_mov_b32 {s(S_PASS)}, 28\ns_branch L_attn")
A("L_END:\ns_endpgm\nL_CODE_END:")

body = A.finalize()
hdr = open("recurrent_scan__grouped_kv_mqa__mixer_s_mlp__prompt.s.ref").read().split("; Override")[0]
out = hdr + f"""; @launch grid=(256,1,1) block=(512,1,1) lds=163840
.amdgcn_target "amdgcn-amd-amdhsa--gfx950"
.text
.globl {KNAME}
.p2align 8
.type {KNAME},@function
{KNAME}:
{body}
.section .rodata,"a"
.p2align 6
.amdhsa_kernel {KNAME}
  .amdhsa_next_free_vgpr 256
  .amdhsa_next_free_sgpr 96
  .amdhsa_accum_offset 256
  .amdhsa_group_segment_fixed_size 0
  .amdhsa_kernarg_size 104
  .amdhsa_user_sgpr_count 2
  .amdhsa_user_sgpr_kernarg_segment_ptr 1
  .amdhsa_system_sgpr_workgroup_id_x 1
.end_amdhsa_kernel
"""
open(sys.argv[1], "w").write(out)
if OPT["stamp"]:
    import json
    json.dump({"G": STAMPS_G, "A": STAMPS}, open(sys.argv[1] + ".stamps.json", "w"))
```

```python
import sys, struct
from asmlib import Asm, v, s

OPT = dict(stamp=0, force_slow=0, noG=0, noA=0, prio=2, local=1, touch=1, codepf=1, plocal=0, fine=0, nop=0, norefill=0, l2pf=1, nap=0, ldprio=1, aprio=0, hflag=1, hpad=0, sepflag=0, dbgout=0)
for a_ in sys.argv[2:]:
    k_, x_ = a_.split("="); OPT[k_] = int(x_)

KNAME = "recurrent_scan__grouped_kv_mqa__mixer_s_mlp__prompt_kernel"
def f2u(x): return struct.unpack("<I", struct.pack("<f", x))[0]
def fh(x): return hex(f2u(x))
LOG2E = 1.4426950408889634
ONES = 0x3F803F80
OOB = 0x40000000
SPIN = 400000

W_KV = 0x80000
W_GB0, W_GBS = 0x100000, 0x80000
G_H, G_X1, G_O, G_ST, G_HH = 0x0, 0xE000, 0x1C000, 0x2A000, 0x2C000
FLAG_GS = 0x3000
F_H, F_X1, F_M, F_O, F_KV = 0x0, 0x400, 0x1000 if OPT['sepflag'] else 0x800, 0xC00, 0x800 if OPT['sepflag'] else 0x1000
W_STAMP = 0x1500000
WS_USED = 0x1600000

L_S1 = 0
L_X = 57344
L_S2 = L_X + 58368
L_MISC = L_S2 + 43008
L_WQ6 = L_S1 + 8192
L_RING = L_X
RING_B = 24576
L_STATP = L_MISC
L_STX = L_STATP
L_QN = L_MISC + 1024
L_VST = L_QN + 512
L_SYNC = L_VST + 512
L_CS = L_SYNC + 128
L_MX = L_MISC + 3072
assert L_MX + 2048 <= 163840 and L_RING + 4 * RING_B <= L_MISC and L_CS + 896 <= L_MX
SY_GBAR, SY_ABAR, SY_CX1, SY_CP, SY_CO, SY_CH, SY_BAD, SY_LOC, SY_PF, SY_KMAX, SY_W2, SY_S, SY_AB2, SY_X1D = 0, 4, 8, 12, 16, 20, 24, 28, 32, 48, 52, 56, 60, 64

S_WAVE, S_G, S_J, S_XCD = 3, 4, 5, 6
R_X, R_WQ, R_WO, R_W1, R_W2, R_W3, R_W4, R_OUT, R_DBG, R_WS, R_WK, R_WV, R_STR = 8, 12, 16, 20, 24, 28, 32, 36, 40, 44, 48, 52, 56
S_GB = 60
S_W4 = 61
S_HI, S_LO = 62, 63
S_T0, S_T1, S_T2, S_T3, S_T4, S_T5 = 64, 65, 66, 67, 68, 69
S_SPIN = 70
S_KMAX = 71
S_SOFF, S_STRIDE, S_RING = 72, 73, 74
S_CNT, S_PASS, S_NF, S_NN, S_N0 = 75, 76, 77, 78, 79
S_FG, S_KV, S_LOC, S_RANK = 80, 81, 82, 83
S_TS = 84
S_C0, S_C1 = 86, 87
S_TOUCH = 90
srd = lambda r: s(r, 4)

V_LANE, V_L16, V_T, V_H = 1, 2, 3, 4
V_M, V_R, V_RR = 5, 6, 7
V_XB, V_WA, V_WA2, V_PAT, V_TRB = 8, 9, 10, 11, 12
V_A, V_B, V_C, V_D = 13, 14, 15, 16
V_ONE, V_SY = 17, 18
V_SEL = 20
V_DBG = 30
V_TCH = 31

A = Asm()
uid = [0]
def lab(p):
    uid[0] += 1
    return f"L_{p}_{uid[0]}"

nstamp = [0]
STAMPS = []
def stamp(name, last=False):
    if not OPT["stamp"]:
        return
    i = nstamp[0]; nstamp[0] += 1
    STAMPS.append(name)
    A(f"""s_memtime {s(S_TS,2)}
    s_waitcnt lgkmcnt(0)
    v_writelane_b32 v0, {s(S_TS)}, {i}""")
    if last:
        A(f"""s_memrealtime {s(S_TS,2)}
        s_lshl_b32 {s(S_T5)}, s2, 3
        s_add_u32 {s(S_T5)}, {s(S_T5)}, {s(S_WAVE)}
        s_lshl_b32 {s(S_T5)}, {s(S_T5)}, 8
        s_add_u32 {s(S_T5)}, {s(S_T5)}, {W_STAMP}
        s_waitcnt lgkmcnt(0)
        v_writelane_b32 v0, {s(S_TS)}, 63
        v_lshlrev_b32 v13, 2, {v(V_LANE)}
        buffer_store_dword v0, v13, {srd(R_WS)}, {s(S_T5)} offen""")
        if OPT["dbgout"]:
            l0 = lab("dbo")
            A(f"""v_readlane_b32 {s(S_T4)}, v0, 62
            s_sub_u32 {s(S_T4)}, 0, {s(S_T4)}
            v_mov_b32 v14, {s(S_TS)}
            v_mov_b32 v15, {s(S_T4)}
            v_mov_b32 v16, 0
            s_mov_b64 exec, 1
            buffer_atomic_umax v14, v16, {srd(R_DBG)}, 0 offen sc1
            buffer_atomic_umax v15, v16, {srd(R_DBG)}, 0 offen offset:4 sc1
            s_mov_b64 exec, -1
            s_lshl_b32 {s(S_T4)}, s2, 3
            s_add_u32 {s(S_T4)}, {s(S_T4)}, {s(S_WAVE)}
            s_cmp_eq_u32 {s(S_T4)}, {OPT["dbgout"]}
            s_cbranch_scc0 {l0}
            v_readlane_b32 {s(S_T4)}, v0, 0
            v_subrev_u32 v14, {s(S_T4)}, v0
            s_mov_b64 exec, 0x7ffe
            buffer_store_dword v14, v13, {srd(R_DBG)}, 0 offen offset:4 sc1
            s_mov_b64 exec, -1
            {l0}:""")
def stamp_dyn(base, sreg):
    if OPT["stamp"] and OPT["fine"]:
        A(f"""s_memtime {s(S_TS,2)}
        s_add_u32 m0, {s(sreg)}, {base}
        s_waitcnt lgkmcnt(0)
        v_writelane_b32 v0, {s(S_TS)}, m0""")
def stamp_rt0():
    if OPT["stamp"]:
        A(f"v_mov_b32 v0, 0\ns_memrealtime {s(S_TS,2)}\ns_waitcnt lgkmcnt(0)\nv_writelane_b32 v0, {s(S_TS)}, 62")

def exec_lo(): A("s_mov_b32 exec_lo, -1\ns_mov_b32 exec_hi, 0")
def exec_hi(): A("s_mov_b32 exec_lo, 0\ns_mov_b32 exec_hi, -1")
def exec_all(): A("s_mov_b64 exec, -1")

def poll_flags(vaddr, soff, nlanes, vdst):
    l0 = lab("poll")
    A(f"""s_mov_b64 exec, {hex((1 << nlanes) - 1)}
    s_mov_b32 {s(S_SPIN)}, 0
    {l0}:
    buffer_load_dword {v(vdst)}, {v(vaddr)}, {srd(R_WS)}, {soff} offen sc1
    s_add_u32 {s(S_SPIN)}, {s(S_SPIN)}, 1
    s_cmp_gt_u32 {s(S_SPIN)}, {SPIN}
    s_cbranch_scc1 L_END
    s_waitcnt vmcnt(0)
    v_cmp_ne_u32 vcc, 0, {v(vdst)}
    s_cmp_eq_u64 vcc, exec
    s_cbranch_scc1 {l0}_ok
    {"s_sleep 4" if OPT["nap"] & 4 else ""}
    s_branch {l0}
    {l0}_ok:
    s_mov_b64 exec, -1""")

def lds_arrive(word):
    A(f"""s_mov_b64 exec, 1
    ds_add_u32 {v(V_SY)}, {v(V_ONE)} offset:{word}
    s_mov_b64 exec, -1""")

def lds_wait(word, target, vtmp, vaddr=V_SY, nap=False):
    l0 = lab("lw")
    A(f"""s_mov_b32 {s(S_SPIN)}, 0
    {l0}:
    {"s_sleep 1" if (OPT["nap"] & 1 and nap) or OPT["nap"] & 2 else ""}
    ds_read_b32 {v(vtmp)}, {v(vaddr)} offset:{word}
    s_add_u32 {s(S_SPIN)}, {s(S_SPIN)}, 1
    s_cmp_gt_u32 {s(S_SPIN)}, {SPIN*8}
    s_cbranch_scc1 L_END
    s_waitcnt lgkmcnt(0)
    v_readfirstlane_b32 {s(S_T4)}, {v(vtmp)}
    s_cmp_ge_u32 {s(S_T4)}, {target}
    s_cbranch_scc0 {l0}""")

def by_mode(emit, local_ok=True, local_flag="nt"):
    if not (OPT["local"] and local_ok):
        emit("sc1"); return
    l0, l1 = lab("far"), lab("md")
    A(f"s_cmp_eq_u32 {s(S_LOC)}, 0\ns_cbranch_scc1 {l0}")
    emit(local_flag)
    A(f"s_branch {l1}\n{l0}:")
    emit("sc1")
    A(f"{l1}:")

def signal_last(word, flagbase, vtmp, local_ok=True, younger=0, emit=None):
    l0 = lab("sig")
    A(f"""s_waitcnt vmcnt({younger})
    s_mov_b64 exec, 1
    ds_add_rtn_u32 {v(vtmp)}, {v(V_SY)}, {v(V_ONE)} offset:{word}
    s_lshl_b32 {s(S_T3)}, {s(S_J)}, 7
    s_add_u32 {s(S_T3)}, {s(S_T3)}, {s(S_FG)}
    s_add_u32 {s(S_T3)}, {s(S_T3)}, {flagbase}
    s_waitcnt lgkmcnt(0)
    v_readfirstlane_b32 {s(S_T4)}, {v(vtmp)}
    v_mov_b32 {v(vtmp)}, 0
    s_cmp_eq_u32 {s(S_T4)}, 3
    s_cbranch_scc0 {l0}""")
    if emit: emit()
    else: by_mode(lambda f: A(f"buffer_store_dword {v(V_ONE)}, {v(vtmp)}, {srd(R_WS)}, {s(S_T3)} offen {f}"), local_ok, "")
    A(f"{l0}:\ns_mov_b64 exec, -1")

def poll_group(flagbase, n, vtmp, vtmp2):
    A(f"""s_add_u32 {s(S_T3)}, {s(S_FG)}, {flagbase}
    v_lshlrev_b32 {v(vtmp)}, 7, {v(V_LANE)}""")
    poll_flags(vtmp, s(S_T3), n, vtmp2)

def mfma(d, a, b, c=None):
    A(f"v_mfma_f32_32x32x16_bf16 {v(d,16)}, {v(a,4)}, {v(b,4)}, {v(d,16) if c is None else c}")
def mfma16(d, a, b, c=None):
    A(f"v_mfma_f32_16x16x32_bf16 {v(d,4)}, {v(a,4)}, {v(b,4)}, {v(d,4) if c is None else c}")
def trread(d, addr, off):
    A(f"ds_read_b64_tr_b16 {v(d,2)}, {v(addr)} offset:{off}")

def gelu16(src, n, t0):
    for i in range(n): A(f"v_mul_f32 {v(t0+i)}, {v(src+i)}, {v(src+i)}")
    for i in range(n): A(f"v_fma_f32 {v(t0+i)}, {v(t0+i)}, {s(S_C1)}, {v(V_D)}")
    for i in range(n): A(f"v_mul_f32 {v(t0+i)}, {v(t0+i)}, {v(src+i)}")
    for i in range(n): A(f"v_exp_f32 {v(t0+i)}, {v(t0+i)}")
    for i in range(n): A(f"v_add_f32 {v(t0+i)}, 1.0, {v(t0+i)}")
    for i in range(n): A(f"v_rcp_f32 {v(t0+i)}, {v(t0+i)}")
    for i in range(n): A(f"v_mul_f32 {v(src+i)}, {v(src+i)}, {v(t0+i)}")

def colsum_spread(cs4, dst16, vtmp):
    A(f"""s_lshl_b32 {s(S_T4)}, {s(S_WAVE)}, 7
    s_add_u32 {s(S_T4)}, {s(S_T4)}, {L_CS}
    v_and_b32 {v(vtmp)}, 15, {v(V_LANE)}
    v_cmp_gt_u32 vcc, 2, {v(vtmp)}
    v_lshlrev_b32 {v(vtmp)}, 6, {v(vtmp)}
    v_and_b32 {v(vtmp+1)}, 48, {v(V_LANE)}
    v_add3_u32 {v(vtmp)}, {v(vtmp)}, {v(vtmp+1)}, {s(S_T4)}
    s_mov_b64 exec, vcc
    ds_write_b128 {v(vtmp)}, {v(cs4,4)}
    s_mov_b64 exec, -1
    v_lshl_add_u32 {v(vtmp)}, {v(V_H)}, 4, {s(S_T4)}""")
    for jj in range(4):
        A(f"ds_read_b128 {v(dst16+4*jj,4)}, {v(vtmp)} offset:{32*jj}")
    A("s_waitcnt lgkmcnt(0)")

def swap_sum2(a, b):
    A(f"v_permlane32_swap_b32 {v(a)}, {v(b)}\nv_add_f32 {v(a)}, {v(a)}, {v(b)}")
def both_halves_sum(a, t):
    A(f"v_mov_b32 {v(t)}, {v(a)}\nv_permlane32_swap_b32 {v(a)}, {v(t)}\nv_add_f32 {v(a)}, {v(a)}, {v(t)}")

def pattern(dst, vslot):
    A(f"""v_mul_u32_u24 {v(V_A)}, 9363, {v(vslot)}
    v_lshrrev_b32 {v(V_A)}, 16, {v(V_A)}
    v_mul_u32_u24 {v(V_B)}, 7, {v(V_A)}
    v_sub_u32 {v(V_B)}, {v(vslot)}, {v(V_B)}
    v_and_b32 {v(V_C)}, 3, {v(V_A)}
    v_bfe_u32 {v(V_D)}, {v(V_A)}, 2, 2
    v_and_b32 {v(V_A)}, 48, {v(V_A)}
    v_lshl_add_u32 {v(V_A)}, {v(V_C)}, 2, {v(V_A)}
    v_add_u32 {v(V_A)}, {v(V_A)}, {v(V_D)}
    v_mul_u32_u24 {v(V_A)}, 896, {v(V_A)}
    v_lshl_add_u32 {v(dst)}, {v(V_B)}, 4, {v(V_A)}
    s_mul_i32 {s(S_T4)}, {s(S_J)}, 112
    v_add_u32 {v(dst)}, {s(S_T4)}, {v(dst)}""")

def dma_rows(rsrc, vpat, spat, chunks):
    A(f"s_lshl_b32 {s(S_T1)}, {s(spat)}, 10")
    for u, lds in chunks:
        A(f"""s_add_u32 m0, {s(S_T1)}, {lds if isinstance(lds, int) else lds}
        s_mov_b32 {s(S_T2)}, {u * 57344}
        buffer_load_dwordx4 {v(vpat)}, {srd(rsrc)}, {s(S_T2)} offen lds""")

def blk_voffset(dst, rowstride):
    A(f"""v_lshrrev_b32 {v(V_A)}, 3, {v(V_LANE)}
    v_lshlrev_b32 {v(V_B)}, 2, {v(V_LANE)}
    v_and_b32 {v(V_B)}, 64, {v(V_B)}
    v_and_b32 {v(V_C)}, 7, {v(V_LANE)}
    v_lshlrev_b32 {v(V_C)}, 4, {v(V_C)}
    v_xor_b32 {v(V_B)}, {v(V_B)}, {v(V_C)}
    v_mul_u32_u24 {v(dst)}, {rowstride}, {v(V_A)}
    v_add_u32 {v(dst)}, {v(dst)}, {v(V_B)}""")

def touch(rsrc, nbytes, shares=32, srank=S_RANK, throttle=None):
    if not OPT["touch"]:
        return 0
    per = -(-(nbytes // 128) // shares)
    n = (per + 63) // 64
    A(f"s_mul_i32 {s(S_T1)}, {s(srank)}, {per * 128}\nv_lshlrev_b32 {v(V_A)}, 7, {v(V_LANE)}")
    for i in range(n):
        rem = per - 64 * i
        if rem < 64:
            A(f"s_mov_b64 exec, {hex((1 << rem) - 1)}" if rem <= 31 else f"s_mov_b32 exec_hi, {hex((1 << (rem - 32)) - 1)}")
        A(f"buffer_load_dword {v(V_TCH)}, {v(V_A)}, {srd(rsrc)}, {s(S_T1)} offen sc1")
        if throttle is not None: A(f"s_waitcnt vmcnt({throttle})")
        if i < n - 1: A(f"s_add_u32 {s(S_T1)}, {s(S_T1)}, 8192")
    exec_all()
    return n


class VMQ:
    def __init__(self): self.q = []
    def issue(self, tag, n=1): self.q += [tag] * n
    def wait(self, *tags, extra=""):
        last = max((i for i, t in enumerate(self.q) if t in tags), default=-1)
        if last >= 0:
            n = len(self.q) - 1 - last
            assert n < 64
            A(f"s_waitcnt vmcnt({n}) {extra}".strip())
            self.q = self.q[last + 1:]
        elif extra:
            A(f"s_waitcnt {extra}")
    def drained(self): self.q = []

A(f"""s_cmp_ge_u32 s2, 256
s_cbranch_scc1 L_END
s_load_dwordx16 s[64:79], s[0:1], 0
s_load_dwordx8 s[80:87], s[0:1], 64
s_load_dwordx2 s[88:89], s[0:1], 96
v_and_b32 {v(V_LANE)}, 63, v0
v_lshrrev_b32 {v(V_A)}, 6, v0
v_lshlrev_b32 {v(V_L16)}, 4, {v(V_LANE)}
v_readfirstlane_b32 {s(S_WAVE)}, {v(V_A)}
v_and_b32 {v(V_T)}, 31, {v(V_LANE)}
v_lshrrev_b32 {v(V_H)}, 5, {v(V_LANE)}
s_and_b32 {s(S_XCD)}, s2, 7
s_lshr_b32 s7, s2, 3
s_and_b32 {s(S_J)}, s7, 7
s_lshr_b32 s7, s7, 3
s_lshl_b32 {s(S_G)}, {s(S_XCD)}, 2
s_add_u32 {s(S_G)}, {s(S_G)}, s7
s_mul_i32 {s(S_GB)}, {s(S_G)}, {W_GBS}
s_add_u32 {s(S_GB)}, {s(S_GB)}, {W_GB0}
s_and_b32 {s(S_W4)}, {s(S_WAVE)}, 3
s_lshr_b32 {s(S_HI)}, {s(S_W4)}, 1
s_and_b32 {s(S_LO)}, {s(S_W4)}, 1
s_mov_b32 {s(R_X+2)}, 1835008
s_mov_b32 {s(R_X+3)}, 0x20000
s_lshl_b32 s7, {s(S_G)}, 3
s_add_u32 s7, s7, {s(S_WAVE)}
s_mul_i32 s7, s7, {8*896}
s_mul_i32 m0, {s(S_WAVE)}, {8*912}
s_add_u32 m0, m0, {L_X}
s_mov_b32 exec_hi, 0x00ffffff
s_waitcnt lgkmcnt(0)
s_mov_b64 {s(R_X,2)}, s[64:65]""")
for i in range(8):
    A(f"buffer_load_dwordx4 {v(V_L16)}, {srd(R_X)}, s7 offen lds")
    if i < 7:
        A(f"s_add_u32 m0, m0, 912\ns_add_u32 s7, s7, 896")
exec_all()
kmap = {R_WQ: 66, R_WK: 68, R_WV: 70, R_WO: 72, R_W1: 76, R_W2: 78, R_W3: 80, R_W4: 82, R_OUT: 84, R_DBG: 86, R_WS: 88}
sizes = {R_WQ: 401408, R_WO: 401408, R_W1: 401408, R_W2: 401408, R_W3: 1605632, R_W4: 1605632,
         R_OUT: 1835008, R_DBG: 256, R_WS: WS_USED, R_WK: 25088, R_WV: 25088}
for r_, k_ in kmap.items():
    A(f"s_mov_b64 {s(r_,2)}, {s(k_,2)}\ns_mov_b32 {s(r_+2)}, {sizes[r_]}\ns_mov_b32 {s(r_+3)}, 0x20000")
A(f"s_mov_b64 {s(R_STR,2)}, {s(R_W3,2)}\ns_mov_b32 {s(R_STR+2)}, 1605632\ns_mov_b32 {s(R_STR+3)}, 0x20000")
stamp_rt0()
stamp("start")
V_B896, V_TP = V_PAT, V_TRB
A(f"""s_mul_i32 {s(S_FG)}, {s(S_G)}, {FLAG_GS}
s_cmp_eq_u32 {s(S_J)}, 7
s_cselect_b32 {s(S_KV)}, 1, 0
v_mov_b32 {v(V_ONE)}, 1
v_mov_b32 {v(V_SY)}, {L_SYNC}""")
blk_voffset(V_B896, 896)
def common_addresses():
    A(f"""v_lshl_add_u32 {v(V_XB)}, {s(S_HI)}, 5, {v(V_T)}
    v_mul_u32_u24 {v(V_XB)}, 912, {v(V_XB)}
    v_lshl_add_u32 {v(V_XB)}, {v(V_H)}, 4, {v(V_XB)}
    v_add_u32 {v(V_XB)}, {L_X}, {v(V_XB)}
    v_bfe_u32 {v(V_A)}, {v(V_LANE)}, 2, 2
    v_and_b32 {v(V_B)}, 3, {v(V_LANE)}
    v_bfe_u32 {v(V_C)}, {v(V_LANE)}, 4, 1
    v_lshlrev_b32 {v(V_B)}, 3, {v(V_B)}
    v_lshl_add_u32 {v(V_B)}, {v(V_C)}, 5, {v(V_B)}
    v_and_b32 {v(V_D)}, 1, {v(V_LANE)}
    v_cmp_eq_u32 vcc, {v(V_D)}, {v(V_C)}
    v_mov_b32 {v(V_D)}, {ONES}""")
    for i in range(4):
        A(f"v_cndmask_b32 {v(V_SEL+i)}, 0, {v(V_D)}, vcc")
A(f"s_cmp_ge_u32 {s(S_WAVE)}, 4\ns_cbranch_scc1 L_role_A")

BF, AF, ACC, CS4 = 32, 64, 96, 112
CSX = 120
TMP = 136
STAGES = [(0, 8), (8, 16), (16, 24), (24, 28)]

def stats_read():
    A(f"""v_lshl_add_u32 {v(V_A)}, {s(S_HI)}, 5, {v(V_T)}
    v_lshlrev_b32 {v(V_A)}, 3, {v(V_A)}
    v_add_u32 {v(V_A)}, {L_STATP}, {v(V_A)}
    ds_read_b64 {v(TMP,2)}, {v(V_A)}
    ds_read_b64 {v(TMP+2,2)}, {v(V_A)} offset:512""")
def stats_final(read=True):
    if read:
        stats_read(); A("s_waitcnt lgkmcnt(0)")
    A(f"""v_add_f32 {v(TMP)}, {v(TMP)}, {v(TMP+2)}
    v_add_f32 {v(TMP+1)}, {v(TMP+1)}, {v(TMP+3)}
    v_mul_f32 {v(V_M)}, {fh(1/448)}, {v(TMP)}
    v_mul_f32 {v(TMP+1)}, {fh(1/448)}, {v(TMP+1)}
    v_fma_f32 {v(TMP+1)}, -{v(V_M)}, {v(V_M)}, {v(TMP+1)}
    v_max_f32 {v(TMP+1)}, 0, {v(TMP+1)}
    v_add_f32 {v(TMP+2)}, {fh(1e-5)}, {v(TMP+1)}
    v_rsq_f32 {v(V_R)}, {v(TMP+2)}
    v_mul_f32 {v(TMP+1)}, {v(TMP+1)}, {v(V_R)}
    v_fmaak_f32 {v(TMP+1)}, {v(TMP+1)}, {v(V_R)}, {fh(1e-5)}
    v_rsq_f32 {v(TMP+1)}, {v(TMP+1)}
    v_mul_f32 {v(V_RR)}, {v(V_R)}, {v(TMP+1)}""")

def tile_steps(kind, barriers):
    def rd(ks):
        if barriers and ks in (8, 16, 24): A("s_barrier")
        for ii in range(2):
            d = AF + 4*(ks % 8) + 2*ii
            if kind == "W": trread(d, V_WA, 2048*ks + 512*ii)
            elif kind == "Q" and ks < 24: trread(d, V_WA, (16*ks + ii) * 112)
            elif kind == "Q": trread(d, V_WA2, (16*(ks - 24) + ii) * 112)
            else: trread(d, V_WA, (16*ks + 4*ii) * 56)
        if ks >= 8: A(f"ds_read_b128 {v(BF+4*(ks % 8),4)}, {v(V_XB)} offset:{32*ks}")
    cnt = lambda ks: 2 + (ks >= 8)
    ahead = 4
    if barriers: stats_read()
    for ks in range(ahead): rd(ks)
    for ks in range(28):
        if barriers and ks == 2: stats_final(False)
        left = sum(cnt(x) for x in range(ks + 1, min(28, ks + ahead)))
        A(f"s_waitcnt lgkmcnt({left})")
        z = "0" if ks == 0 else None
        a, b = AF + 4*(ks % 8), BF + 4*(ks % 8)
        if kind == "V":
            mfma(ACC, b, a, z); mfma16(CS4, V_SEL, a, z)
        else:
            mfma(ACC, a, b, z); mfma16(CS4, a, V_SEL, z)
        if ks + ahead < 28: rd(ks + ahead)

def phaseA1(kind):
    for i in range(8):
        A(f"ds_read_b128 {v(BF+4*i,4)}, {v(V_XB)} offset:{32*i}")
    A("s_waitcnt lgkmcnt(0)\ns_barrier")
    tile_steps(kind, True)
    A(f"""v_lshlrev_b32 {v(V_A)}, 2, {v(V_T)}
    buffer_load_dword {v(V_DBG)}, {v(V_A)}, {srd(R_DBG)}, 0 offen offset:128 sc1""")

def center_scale(acc, csx, vscale):
    for i in range(16): A(f"v_fma_f32 {v(acc+i)}, -{v(V_M)}, {v(csx+i)}, {v(acc+i)}")
    for i in range(16): A(f"v_mul_f32 {v(acc+i)}, {v(acc+i)}, {v(vscale)}")
def pack16(src, dst):
    for k in range(8): A(f"v_cvt_pk_bf16_f32 {v(dst+k)}, {v(src+2*k)}, {v(src+2*k+1)}")
def zero_pad_dims(acc):
    exec_hi()
    for i in range(12, 16): A(f"v_mov_b32 {v(acc+i)}, 0")
    exec_all()
def norm2(acc, dst, t):
    A(f"v_mul_f32 {v(dst)}, {v(acc)}, {v(acc)}\nv_mul_f32 {v(t)}, {v(acc+1)}, {v(acc+1)}")
    for i in range(2, 16): A(f"v_fmac_f32 {v(dst if i % 2 == 0 else t)}, {v(acc+i)}, {v(acc+i)}")
    A(f"v_add_f32 {v(dst)}, {v(dst)}, {v(t)}")
    both_halves_sum(dst, t)
def flags_cleared(younger=0):
    l0, l1 = lab("dbg"), lab("dbgok")
    A(f"""s_getreg_b32 {s(S_LOC)}, hwreg(HW_REG_XCC_ID)
    s_and_b32 {s(S_LOC)}, {s(S_LOC)}, 15
    s_add_u32 {s(S_LOC)}, {s(S_LOC)}, 1
    v_lshlrev_b32 {v(V_A)}, 2, {v(V_T)}
    s_mov_b32 {s(S_SPIN)}, 0
    s_waitcnt vmcnt({younger})
    {l0}:
    v_cmp_eq_u32 vcc, 0, {v(V_DBG)}
    s_cbranch_vccz {l1}
    buffer_load_dword {v(V_DBG)}, {v(V_A)}, {srd(R_DBG)}, 0 offen offset:128 sc1
    s_waitcnt vmcnt(0)
    s_add_u32 {s(S_SPIN)}, {s(S_SPIN)}, 1
    s_cmp_gt_u32 {s(S_SPIN)}, {SPIN}
    s_cbranch_scc1 L_END
    s_branch {l0}
    {l1}:""")

XC = 232
X1 = 240
if OPT["sepflag"]:
    CLEAR = f"""buffer_store_dword {v(V_B)}, {v(V_A)}, {srd(R_WS)}, {s(S_FG)} offen sc1
    s_add_u32 {s(S_T1)}, {s(S_FG)}, 8192
    s_mov_b32 exec_hi, 0
    buffer_store_dword {v(V_B)}, {v(V_A)}, {srd(R_WS)}, {s(S_T1)} offen sc1
    s_mov_b32 exec_hi, -1"""
else:
    CLEAR = f"""s_mov_b32 exec_hi, 1
    buffer_store_dword {v(V_B)}, {v(V_A)}, {srd(R_WS)}, {s(S_FG)} offen sc1
    s_mov_b32 exec_hi, -1
    v_lshrrev_b32 {v(V_A)}, 3, {v(V_LANE)}
    v_lshlrev_b32 {v(V_A)}, 7, {v(V_A)}
    v_and_b32 {v(V_C)}, 7, {v(V_LANE)}
    v_lshl_add_u32 {v(V_A)}, {v(V_C)}, 2, {v(V_A)}
    buffer_store_dword {v(V_B)}, {v(V_A)}, {srd(R_WS)}, {s(S_FG)} offen offset:{F_M} sc1"""
A(f"""s_setprio {OPT['prio']}
v_mov_b32 {v(V_B)}, 0
s_cmp_eq_u32 {s(S_W4)}, 1
s_cbranch_scc0 L_g_nozero
v_lshl_add_u32 {v(V_A)}, {v(V_T)}, 2, {v(V_SY)}
ds_write_b32 {v(V_A)}, {v(V_B)}
L_g_nozero:
s_lshl_b32 {s(S_T0)}, {s(S_KV)}, 2
s_add_u32 {s(S_T0)}, {s(S_T0)}, {s(S_W4)}
s_cmp_eq_u32 {s(S_T0)}, 4
s_cbranch_scc0 L_g_noclear
v_lshlrev_b32 {v(V_A)}, 7, {v(V_LANE)}
{CLEAR}
L_g_noclear:""")
if OPT["codepf"]:
    A(f"""s_cmp_eq_u32 {s(S_W4)}, 2
    s_cbranch_scc0 L_nocode
    L_pc:
    s_getpc_b64 {s(S_T2,2)}
    s_lshr_b32 {s(S_T1)}, s2, 3
    s_lshl_b32 {s(S_T1)}, {s(S_T1)}, 3
    v_and_b32 {v(V_A)}, 7, {v(V_LANE)}
    v_add_u32 {v(V_A)}, {s(S_T1)}, {v(V_A)}
    v_lshlrev_b32 {v(V_A)}, 7, {v(V_A)}
    v_mov_b32 v25, {s(S_T3)}
    v_add_co_u32 v24, vcc, {s(S_T2)}, {v(V_A)}
    v_addc_co_u32 v25, vcc, 0, v25, vcc
    v_cmp_gt_u32 vcc, L_CODE_END-L_pc-128, {v(V_A)}
    s_and_b64 exec, vcc, 0xff
    s_cbranch_execz L_nocode
    global_load_dword {v(V_TCH)}, v[24:25], off sc1
    L_nocode:
    s_mov_b64 exec, -1""")
common_addresses()
A(f"""v_lshl_add_u32 {v(V_D)}, {v(V_H)}, 3, {v(V_A)}
v_mul_u32_u24 {v(V_WA2)}, 56, {v(V_D)}
v_add_u32 {v(V_WA2)}, {v(V_WA2)}, {v(V_B)}
v_cmp_le_u32 vcc, 56, {v(V_B)}
v_lshl_add_u32 {v(V_TP)}, {v(V_D)}, 7, {v(V_B)}
v_lshlrev_b32 {v(V_A)}, 5, {v(V_A)}
v_and_b32 {v(V_A)}, 64, {v(V_A)}
v_add_u32 {v(V_TP)}, {v(V_TP)}, {v(V_A)}
v_cndmask_b32 {v(V_A)}, 0, 32, vcc
v_sub_u32 {v(V_WA2)}, {v(V_WA2)}, {v(V_A)}
s_lshl_b32 {s(S_T1)}, {s(S_LO)}, 6
v_xor_b32 {v(V_WA)}, {s(S_T1)}, {v(V_TP)}
v_add_u32 {v(V_WA)}, {L_S1}, {v(V_WA)}
s_mul_i32 {s(S_T1)}, {s(S_LO)}, 448
v_add_u32 {v(V_A)}, {s(S_T1)}, {v(V_XB)}
s_mov_b32 {s(S_C0)}, {fh(-2*0.7978845608028654*LOG2E)}
s_mov_b32 {s(S_C1)}, {fh(-2*0.7978845608028654*LOG2E*0.044715)}
s_mov_b32 {s(S_T3)}, {ONES}
v_mov_b32 v24, 0
v_mov_b32 v25, 0
v_mov_b32 v26, 0
v_mov_b32 v27, 0
s_waitcnt vmcnt(0) lgkmcnt(0)
s_cmp_eq_u32 {s(S_T0)}, 4
s_cbranch_scc0 L_g_b1
s_lshl_b32 {s(S_T1)}, {s(S_G)}, 2
s_mov_b64 exec, 1
buffer_store_dword {v(V_ONE)}, v24, {srd(R_DBG)}, {s(S_T1)} offen offset:128 sc1
s_mov_b64 exec, -1
L_g_b1:
s_barrier""")
stamp("x_landed")
for i in range(14):
    A(f"ds_read_b128 {v(32+4*i,4)}, {v(V_A)} offset:{32*i}")
for i in range(14):
    A(f"s_waitcnt lgkmcnt({13-i})")
    for d in range(4):
        r_ = 32 + 4*i + d
        A(f"v_dot2_f32_bf16 {v(24+(d&1))}, {v(r_)}, {s(S_T3)}, {v(24+(d&1))}")
        A(f"v_dot2_f32_bf16 {v(26+(d&1))}, {v(r_)}, {v(r_)}, {v(26+(d&1))}")
A(f"""v_lshl_add_u32 {v(V_B)}, {s(S_HI)}, 5, {v(V_T)}
v_lshlrev_b32 {v(V_B)}, 3, {v(V_B)}
v_lshl_add_u32 {v(V_B)}, {v(V_H)}, 2, {v(V_B)}
s_lshl_b32 {s(S_T2)}, {s(S_LO)}, 9
s_add_u32 {s(S_T2)}, {s(S_T2)}, {L_STATP}
v_add_u32 {v(V_B)}, {s(S_T2)}, {v(V_B)}
v_add_f32 v24, v24, v25
v_add_f32 v26, v26, v27""")
swap_sum2(24, 26)
A(f"""ds_write_b32 {v(V_B)}, v24
s_cmp_eq_u32 {s(S_KV)}, 1
s_cbranch_scc1 L_g_kv""")
phaseA1("W")
stamp("G_gemm1")
A(f"""s_lshl_b32 {s(S_T1)}, {s(S_J)}, 1
s_add_u32 {s(S_T1)}, {s(S_T1)}, {s(S_LO)}
s_lshl_b32 {s(S_T2)}, {s(S_T1)}, 6
v_lshlrev_b32 {v(V_A)}, 3, {v(V_H)}
v_sub_u32 {v(V_A)}, {v(V_XB)}, {v(V_A)}
v_add_u32 {v(V_A)}, {s(S_T2)}, {v(V_A)}""")
for jj in range(4): A(f"ds_read_b64 {v(XC+2*jj,2)}, {v(V_A)} offset:{16*jj}")
colsum_spread(CS4, CSX, V_A)
lds_arrive(SY_GBAR)
center_scale(ACC, CSX, V_RR)
A(f"v_mov_b32 {v(V_D)}, {s(S_C0)}")
gelu16(ACC, 16, TMP)
pack16(ACC, TMP)
V_CH = V_XB
A(f"""v_lshlrev_b32 {v(V_CH)}, 4, {v(V_T)}
v_lshl_add_u32 {v(V_CH)}, {v(V_H)}, 10, {v(V_CH)}
s_lshl_b32 {s(S_T1)}, {s(S_T1)}, 12
s_lshl_b32 {s(S_T2)}, {s(S_HI)}, 9
s_add_u32 {s(S_T1)}, {s(S_T1)}, {s(S_T2)}
s_add_u32 {s(S_N0)}, {s(S_T1)}, {s(S_GB)}""")
def store_chunks(src8, region, flag):
    A(f"""s_add_u32 {s(S_T1)}, {s(S_N0)}, {region}
    buffer_store_dwordx4 {v(src8,4)}, {v(V_CH)}, {srd(R_WS)}, {s(S_T1)} offen {flag}
    buffer_store_dwordx4 {v(src8+4,4)}, {v(V_CH)}, {srd(R_WS)}, {s(S_T1)} offen offset:2048 {flag}""")
def packed_to_chunks(p8):
    for a_ in range(2):
        for d in range(2):
            A(f"v_permlane32_swap_b32 {v(p8+4*a_+d)}, {v(p8+4*a_+2+d)}")
packed_to_chunks(TMP)
store_chunks(TMP, G_H, "sc1")
def slice_pieces(rsrc, lds, idx):
    A(f"""s_lshl_b32 {s(S_T0)}, {s(S_W4)}, 10
    s_mul_i32 {s(S_T2)}, {s(S_W4)}, {8*896}
    s_lshl_b32 {s(S_T1)}, {s(S_J)}, 7
    s_add_u32 {s(S_T2)}, {s(S_T2)}, {s(S_T1)}""")
    for i in idx:
        A(f"""s_add_u32 m0, {s(S_T0)}, {lds + 4096*i}
        s_add_u32 {s(S_T1)}, {s(S_T2)}, {32*896*i}
        buffer_load_dwordx4 {v(V_B896)}, {srd(rsrc)}, {s(S_T1)} offen lds""")
if OPT["fine"] > 1: stamp("h_stored")
lds_wait(SY_GBAR, 4, V_C)
slice_pieces(R_W2, L_S1, [0, 1] + list(range(4, 14)))
HA, HB_, HFL = 24, 25, 26
A(f"""s_lshl_b32 {s(S_T1)}, {s(S_G)}, 6
s_lshl_b32 {s(S_T2)}, {s(S_HI)}, 5
s_add_u32 {s(S_T1)}, {s(S_T1)}, {s(S_T2)}
s_add_u32 {s(S_T2)}, {s(S_LO)}, 1
s_sub_u32 {s(S_T3)}, {s(S_T1)}, {s(S_T2)}
s_add_u32 {s(S_T1)}, {s(S_T1)}, {s(S_T2)}
s_mov_b32 {s(S_T2)}, {W_GBS}""")
for dst, sb in ((HA, S_T3), (HB_, S_T1)):
    A(f"""v_add_u32 {v(V_B)}, {s(sb)}, {v(V_T)}
    v_cmp_gt_u32 vcc, 2048, {v(V_B)}
    v_lshrrev_b32 {v(V_C)}, 6, {v(V_B)}
    v_and_b32 {v(V_B)}, 63, {v(V_B)}
    v_mul_lo_u32 {v(V_C)}, {v(V_C)}, {s(S_T2)}
    v_lshl_add_u32 {v(V_C)}, {v(V_B)}, 4, {v(V_C)}
    v_lshl_add_u32 {v(V_C)}, {v(V_H)}, 10, {v(V_C)}
    v_mov_b32 {v(V_B)}, {OOB}
    v_cndmask_b32 {v(dst)}, {v(V_B)}, {v(V_C)}, vcc""")
A(f"""v_lshrrev_b32 {v(V_A)}, 3, {v(V_LANE)}
v_mul_u32_u24 {v(V_B)}, 3, {v(V_A)}
v_lshrrev_b32 {v(V_B)}, 1, {v(V_B)}
v_add_u32 {v(V_B)}, -2, {v(V_B)}
v_cmp_eq_u32 vcc, 0, {v(V_A)}
v_cndmask_b32 {v(V_B)}, {v(V_B)}, 0, vcc
v_add_u32 {v(V_B)}, {s(S_G)}, {v(V_B)}
v_mov_b32 {v(V_C)}, {s(S_G)}
v_cmp_gt_u32 vcc, 32, {v(V_B)}
v_cndmask_b32 {v(V_B)}, {v(V_C)}, {v(V_B)}, vcc
v_mul_u32_u24 {v(V_B)}, {FLAG_GS}, {v(V_B)}
v_and_b32 {v(V_A)}, 7, {v(V_LANE)}
v_lshl_add_u32 {v(HFL)}, {v(V_A)}, 7, {v(V_B)}""")
V_B3584 = V_WA2
blk_voffset(V_B3584, 3584)
def h_flag():
    A(f"""v_mov_b32 {v(V_B)}, {s(S_LOC)}
    buffer_store_dword {v(V_B)}, {v(V_A)}, {srd(R_WS)}, {s(S_T3)} offen sc1""")
if OPT["fine"] > 1: stamp("h_issued")
flags_cleared(12)
signal_last(SY_CH, F_H, V_A, younger=12, emit=h_flag)
stamp("G_hpub")
if OPT["noG"]:
    A(f"v_mov_b32 {v(V_B)}, 0\nds_write_b32 {v(V_SY)}, {v(V_B)} offset:{SY_LOC}")
    lds_arrive(SY_X1D)
    stamp("G_end", True)
    A("s_endpgm")
lds_wait(SY_ABAR, 8, V_C)
slice_pieces(R_W2, L_S1, [2, 3])
poll_flags(HFL, "0", 24, V_B)
stamp("G_hflags")
lds_arrive(SY_W2)
KB = 32
AM, AO, KA = 88, 104, 120
def ksplit_loads(addr_lo, addr_hi, sbase):
    for i in range(14):
        if i % 2 == 0:
            A(f"s_add_u32 {s(S_T2)}, {s(sbase)}, {2048*i}")
        A(f"buffer_load_dwordx4 {v(KB+4*i,4)}, {v(addr_lo if i < 7 else addr_hi)}, {srd(R_WS)}, {s(S_T2)} offen offset:{2048*(i%2)} sc1")
def ksplit_mm(extra=None):
    A(f"""s_mul_i32 {s(S_T1)}, {s(S_LO)}, {14*2048}
    s_lshl_b32 {s(S_T2)}, {s(S_LO)}, 6
    v_xor_b32 {v(V_A)}, {s(S_T2)}, {v(V_TP)}
    v_xor_b32 {v(V_B)}, 64, {v(V_A)}
    v_add_u32 {v(V_A)}, {s(S_T1)}, {v(V_A)}
    v_add_u32 {v(V_B)}, {s(S_T1)}, {v(V_B)}""")
    def rd(i):
        b = KA + 8 * (i % 2)
        trread(b, V_A, 2048*i); trread(b + 2, V_A, 2048*i + 512)
        trread(b + 4, V_B, 2048*i); trread(b + 6, V_B, 2048*i + 512)
    rd(0)
    young = 0
    for i in range(14):
        if i < 13: rd(i + 1)
        A(f"s_waitcnt vmcnt({13 - i + young}) lgkmcnt({4 if i < 13 else 0})")
        z = "0" if i == 0 else None
        b = KA + 8 * (i % 2)
        mfma(AO, b + 4, KB + 4*i, z); mfma(AM, b, KB + 4*i, z)
        if extra: young += extra(i)
def pair_reduce():
    A(f"""v_add_u32 {v(V_A)}, {s(S_RING)}, {v(V_L16)}
    s_xor_b32 {s(S_T1)}, {s(S_W4)}, 1
    s_mul_i32 {s(S_T2)}, {s(S_T1)}, {RING_B}
    s_add_u32 {s(S_T2)}, {s(S_T2)}, {L_RING}
    v_add_u32 {v(V_B)}, {s(S_T2)}, {v(V_L16)}
    v_lshl_add_u32 {v(V_C)}, {s(S_W4)}, 2, {v(V_SY)}
    v_lshl_add_u32 {v(V_D)}, {s(S_T1)}, 2, {v(V_SY)}""")
    for q in range(4):
        A(f"ds_write_b128 {v(V_A)}, {v(AO+4*q,4)} offset:{1024*q}")
    A(f"""s_mov_b64 exec, 1
    ds_add_u32 {v(V_C)}, {v(V_ONE)} offset:{SY_PF}
    s_mov_b64 exec, -1""")
    lds_wait(SY_PF, 1, V_C, V_D)
    for q in range(4):
        A(f"ds_read_b128 {v(AO+4*q,4)}, {v(V_B)} offset:{1024*q}")
    for q in range(4):
        A(f"s_waitcnt lgkmcnt({3-q})")
        for i in range(4): A(f"v_add_f32 {v(AM+4*q+i)}, {v(AM+4*q+i)}, {v(AO+4*q+i)}")
def decide_local():
    A(f"""s_mov_b64 exec, 0xff
    v_cmp_ne_u32 vcc, {s(S_LOC)}, {v(V_B)}
    s_mov_b64 exec, -1
    s_cmp_eq_u64 vcc, 0
    s_cselect_b32 {s(S_LOC)}, 1, 0
    v_mov_b32 {v(V_B)}, {s(S_LOC)}
    ds_write_b32 {v(V_SY)}, {v(V_B)} offset:{SY_LOC}""")

A(f"s_mul_i32 {s(S_T1)}, {s(S_LO)}, {28*1024}\ns_add_u32 {s(S_T1)}, {s(S_T1)}, {W_GB0 + G_H}")
ksplit_loads(HA, HB_, S_T1)
if OPT["fine"] > 1: stamp("g2_issued")
decide_local()
S_HALF = S_RANK
def dma_block(slot, rsrc, vsrc, half, advance):
    A(f"""s_add_u32 m0, {s(S_RING)}, {2048*slot}
    s_add_u32 {s(S_T5)}, {s(S_SOFF)}, {half}
    buffer_load_dwordx4 {v(vsrc)}, {srd(rsrc)}, {s(S_SOFF)} offen lds
    s_add_u32 m0, m0, 1024
    s_add_u32 {s(S_SOFF)}, {s(S_SOFF)}, {advance}
    buffer_load_dwordx4 {v(vsrc)}, {srd(rsrc)}, {s(S_T5)} offen lds""")
def w3_block(slot): dma_block(slot, R_W3, V_B3584, 8*3584, 16*3584)
A(f"""s_mul_i32 {s(S_RING)}, {s(S_W4)}, {RING_B}
s_add_u32 {s(S_RING)}, {s(S_RING)}, {L_RING}
s_lshl_b32 {s(S_SOFF)}, {s(S_J)}, 2
s_add_u32 {s(S_SOFF)}, {s(S_SOFF)}, {s(S_W4)}
s_lshl_b32 {s(S_SOFF)}, {s(S_SOFF)}, 7""")
lds_wait(SY_W2, 4, V_C)
if OPT["fine"] > 1: stamp("g2_w2ok")
def prefill(i):
    if i >= 8: return 0
    w3_block(4 + i)
    return 2
ksplit_mm(prefill)
if OPT["fine"] > 1: stamp("g2_mm")
pair_reduce()
stamp("G_gemm2")
A(f"v_mul_f32 {v(V_A)}, {v(V_M)}, {v(V_R)}")
for i in range(16): A(f"v_sub_f32 {v(AM+i)}, {v(AM+i)}, {v(V_A)}")
for k in range(8):
    A(f"v_lshlrev_b32 {v(TMP+2*k)}, 16, {v(XC+k)}\nv_and_b32 {v(TMP+2*k+1)}, 0xffff0000, {v(XC+k)}")
for i in range(16): A(f"v_fma_f32 {v(X1+i)}, {v(TMP+i)}, {v(V_R)}, {v(AM+i)}")
pack16(X1, TMP)
packed_to_chunks(TMP)
by_mode(lambda f: store_chunks(TMP, G_X1, f))
A(f"v_add_f32 {v(V_A)}, {v(X1)}, {v(X1+1)}\nv_mul_f32 {v(V_B)}, {v(X1)}, {v(X1)}\nv_mul_f32 {v(V_C)}, {v(X1+1)}, {v(X1+1)}\nv_add_f32 {v(V_D)}, {v(X1+2)}, {v(X1+3)}")
for i in range(2, 16):
    if i >= 4:
        A(f"v_add_f32 {v(V_A if i % 2 == 0 else V_D)}, {v(V_A if i % 2 == 0 else V_D)}, {v(X1+i)}")
    A(f"v_fmac_f32 {v(V_B if i % 2 == 0 else V_C)}, {v(X1+i)}, {v(X1+i)}")
A(f"v_add_f32 {v(V_A)}, {v(V_A)}, {v(V_D)}\nv_add_f32 {v(V_B)}, {v(V_B)}, {v(V_C)}")
V_STA = 26
A(f"""v_lshlrev_b32 {v(V_STA)}, 4, {v(V_T)}
v_lshl_add_u32 {v(V_STA)}, {v(V_H)}, 11, {v(V_STA)}
s_lshr_b32 {s(S_T1)}, {s(S_J)}, 1
s_lshl_b32 {s(S_T1)}, {s(S_T1)}, 9
s_and_b32 {s(S_T2)}, {s(S_J)}, 1
s_lshl_b32 {s(S_T2)}, {s(S_T2)}, 1
s_add_u32 {s(S_T2)}, {s(S_T2)}, {s(S_LO)}
s_lshl_b32 {s(S_T2)}, {s(S_T2)}, 2
s_add_u32 {s(S_T1)}, {s(S_T1)}, {s(S_T2)}
s_lshl_b32 {s(S_T2)}, {s(S_HI)}, 12
s_add_u32 {s(S_T1)}, {s(S_T1)}, {s(S_T2)}
s_add_u32 {s(S_T1)}, {s(S_T1)}, {s(S_GB)}
s_add_u32 {s(S_T1)}, {s(S_T1)}, {G_ST}""")
swap_sum2(V_A, V_B)
by_mode(lambda f: A(f"buffer_store_dword {v(V_A)}, {v(V_STA)}, {srd(R_WS)}, {s(S_T1)} offen {f}"))
signal_last(SY_CX1, F_X1, V_A)
stamp("G_x1pub")
RW, GA, GBf, GACC, GCS = 32, 96, 112, 128, 192
V_TR0, V_TR1 = 27, 28
A(f"""v_add_u32 {v(V_TR0)}, {s(S_RING)}, {v(V_TP)}
v_xor_b32 {v(V_TR1)}, 64, {v(V_TR0)}""")
def blk_reads(dst, slot, second):
    trread(dst, V_TR0, 2048*slot); trread(dst + 2, V_TR0, 2048*slot + second)
    trread(dst + 4, V_TR1, 2048*slot); trread(dst + 6, V_TR1, 2048*slot + second)
def to_regs(slots, second):
    for i, sl in enumerate(slots):
        blk_reads(RW + 8*i, sl, second)
        if i % 2 == 1: A("s_waitcnt lgkmcnt(4)")
    A("s_waitcnt lgkmcnt(0)")
to_regs(range(4, 12), 512)
poll_group(F_X1, 7, V_A, V_B)
stamp("G_x1flags")
STL = 96
A(f"""s_lshl_b32 {s(S_T1)}, {s(S_HI)}, 12
s_lshl_b32 {s(S_T2)}, {s(S_LO)}, 10
s_add_u32 {s(S_T1)}, {s(S_T1)}, {s(S_T2)}
s_add_u32 {s(S_T1)}, {s(S_T1)}, {s(S_GB)}
s_add_u32 {s(S_T1)}, {s(S_T1)}, {G_ST}
buffer_load_dwordx4 {v(STL,4)}, {v(V_STA)}, {srd(R_WS)}, {s(S_T1)} offen sc1
buffer_load_dwordx4 {v(STL+4,4)}, {v(V_STA)}, {srd(R_WS)}, {s(S_T1)} offen offset:512 sc1
s_mul_i32 {s(S_T1)}, {s(S_W4)}, 14336
s_mov_b32 m0, {s(S_T1)}
s_add_u32 {s(S_T1)}, {s(S_T1)}, {s(S_GB)}
s_add_u32 {s(S_T1)}, {s(S_T1)}, {G_X1}""")
for i in range(14):
    A(f"buffer_load_dwordx4 {v(V_L16)}, {srd(R_WS)}, {s(S_T1)} offen offset:{1024*(i%4)} sc1 lds")
    if i % 4 == 3:
        A(f"s_add_u32 m0, m0, 4096\ns_add_u32 {s(S_T1)}, {s(S_T1)}, 4096")
l0 = lab("pq")
A(f"""s_lshl_b32 {s(S_T1)}, {s(S_W4)}, 8
s_add_u32 {s(S_T1)}, {s(S_T1)}, {L_STX}
v_lshl_add_u32 {v(V_A)}, {v(V_LANE)}, 2, {s(S_T1)}
s_waitcnt vmcnt(14)
s_cmp_eq_u32 {s(S_LO)}, 0
s_cbranch_scc1 {l0}
v_mov_b32 {v(STL+6)}, 0
v_mov_b32 {v(STL+7)}, 0
{l0}:""")
for w_ in (4, 2, 1):
    for i in range(w_): A(f"v_add_f32 {v(STL+i)}, {v(STL+i)}, {v(STL+w_+i)}")
A(f"ds_write_b32 {v(V_A)}, {v(STL)}")
lds_wait(SY_ABAR, 16, V_C)
vq = VMQ(); vq.issue("x1", 14)
for i in range(4):
    w3_block(i); vq.issue(("w3", 8 + i), 2)
vq.wait("x1")
lds_arrive(SY_GBAR)
for i in range(4, 12):
    w3_block(i); vq.issue(("w3", 8 + i), 2)
M1, R1, C0R, C1R = (24, 25), (30, 31), (5, 6), (7, 9)
S_HB, S_P = S_PASS, S_NF
A(f"""v_lshlrev_b32 {v(V_A)}, 2, {v(V_LANE)}
v_add_u32 {v(V_A)}, {L_STX}, {v(V_A)}""")
lds_wait(SY_GBAR, 8, V_C)
stamp("G_x1landed")
ST2 = 200
for q in range(4): A(f"ds_read_b32 {v(ST2+q)}, {v(V_A)} offset:{256*q}")
def x1_reads(ks):
    b = GBf + 8*(ks % 2)
    A(f"ds_read_b128 {v(b,4)}, {v(V_CH)} offset:{2048*ks}\nds_read_b128 {v(b+4,4)}, {v(V_CH)} offset:{2048*ks + 512}")
def row_constants():
    for tt in range(2):
        b = ST2 + 2*tt
        A(f"""v_add_f32 {v(b)}, {v(b)}, {v(b+1)}
        v_mul_f32 {v(b)}, {fh(1/448)}, {v(b)}
        v_mov_b32 {v(b+1)}, {v(b)}
        v_permlane32_swap_b32 {v(b)}, {v(b+1)}
        v_mov_b32 {v(M1[tt])}, {v(b)}
        v_fma_f32 {v(b+1)}, -{v(b)}, {v(b)}, {v(b+1)}
        v_max_f32 {v(b+1)}, 0, {v(b+1)}
        v_add_f32 {v(b+1)}, {fh(1e-5)}, {v(b+1)}
        v_rsq_f32 {v(R1[tt])}, {v(b+1)}
        v_mul_f32 {v(C0R[tt])}, {s(S_C0)}, {v(R1[tt])}
        v_mul_f32 {v(b)}, {v(R1[tt])}, {v(R1[tt])}
        v_mul_f32 {v(b)}, {v(b)}, {v(R1[tt])}
        v_mul_f32 {v(C1R[tt])}, {s(S_C1)}, {v(b)}""")
def producer(c, dst):
    A(f"""s_add_u32 {s(dst)}, {s(S_J)}, {(c % 14) // 2}
    s_cmp_ge_u32 {s(dst)}, 7
    s_cselect_b32 {s(S_T4)}, 7, 0
    s_sub_u32 {s(dst)}, {s(dst)}, {s(S_T4)}""")
def w4_block(c):
    if c % 2 == 0:
        producer(c, S_SOFF)
        A(f"s_mul_i32 {s(S_SOFF)}, {s(S_SOFF)}, {256*896}\ns_add_u32 {s(S_SOFF)}, {s(S_SOFF)}, {s(S_CNT)}")
        if c >= 14: A(f"s_add_u32 {s(S_SOFF)}, {s(S_SOFF)}, {32*896}")
    dma_block((20 + c) % 12, R_W4, V_B896, 8*896, 16*896)
    vq.issue(("w4", c), 2)
A(f"""s_mul_i32 {s(S_CNT)}, {s(S_W4)}, {64*896}
s_lshl_b32 {s(S_T1)}, {s(S_J)}, 7
s_add_u32 {s(S_CNT)}, {s(S_CNT)}, {s(S_T1)}""")
x1_reads(0)
for ks in range(28):
    nxt = ks + 1
    n = 0
    if nxt < 28:
        if nxt >= 8:
            vq.wait(("w3", nxt)); blk_reads(GA + 8*(nxt % 2), (nxt - 8) % 12, 512); n += 4
        x1_reads(nxt); n += 2
    A(f"s_waitcnt lgkmcnt({n})")
    a = RW + 8*ks if ks < 8 else GA + 8*(ks % 2)
    b = GBf + 8*(ks % 2)
    z = "0" if ks == 0 else None
    mfma(GACC, a, b, z)
    mfma(GACC + 16, a, b + 4, z)
    if ks >= 8:
        if ks + 12 < 28:
            w3_block((ks - 8) % 12); vq.issue(("w3", ks + 12), 2)
        else:
            w4_block(ks + 12 - 28)
    mfma16(GCS, a, V_SEL, z)
    mfma(GACC + 32, a + 4, b, z)
    mfma(GACC + 48, a + 4, b + 4, z)
    mfma16(GCS + 4, a + 4, V_SEL, z)
    if ks == 1: row_constants()
lds_arrive(SY_X1D)
stamp("G_g3mm")
CSY, GT, HP = 96, 112, 200
HBLK = 4096 + OPT["hpad"]
FSH, FBE = (7, 1024) if OPT["sepflag"] else (2, 128)
A(f"""v_lshlrev_b32 {v(V_A)}, 9, {v(V_H)}
v_sub_u32 {v(V_TR0)}, {v(V_TR0)}, {v(V_A)}
v_xor_b32 {v(V_TR1)}, 64, {v(V_TR0)}
s_mul_i32 {s(S_HB)}, {s(S_W4)}, {2*HBLK}
s_add_u32 {s(S_HB)}, {s(S_HB)}, {s(S_GB)}
s_add_u32 {s(S_HB)}, {s(S_HB)}, {G_HH}
s_mul_i32 {s(S_NN)}, {s(S_W4)}, {2*FBE}
s_add_u32 {s(S_NN)}, {s(S_NN)}, {s(S_FG)}
s_add_u32 {s(S_NN)}, {s(S_NN)}, {F_M}
v_lshlrev_b32 v29, {FSH}, {v(V_LANE)}""")
hp = lambda be, mm: HP + 16*be + 8*mm
def gelu_tile(be, tt):
    acc = GACC + 32*be + 16*tt
    for i in range(16): A(f"v_fma_f32 {v(acc+i)}, -{v(M1[tt])}, {v(CSY+i)}, {v(acc+i)}")
    for i in range(16): A(f"v_mul_f32 {v(GT+i)}, {v(acc+i)}, {v(acc+i)}")
    for i in range(16): A(f"v_fma_f32 {v(GT+i)}, {v(GT+i)}, {v(C1R[tt])}, {v(C0R[tt])}")
    for i in range(16): A(f"v_mul_f32 {v(GT+i)}, {v(GT+i)}, {v(acc+i)}")
    for i in range(16): A(f"v_exp_f32 {v(GT+i)}, {v(GT+i)}")
    for i in range(16): A(f"v_add_f32 {v(GT+i)}, 1.0, {v(GT+i)}")
    for i in range(16): A(f"v_rcp_f32 {v(GT+i)}, {v(GT+i)}")
    for i in range(16): A(f"v_mul_f32 {v(acc+i)}, {v(acc+i)}, {v(GT+i)}")
    for k in range(8): A(f"v_cvt_pk_bf16_f32 {v(hp(be, k // 4) + 4*tt + k % 4)}, {v(acc+2*k)}, {v(acc+2*k+1)}")
def h_stores(be):
    A(f"s_mul_i32 {s(S_T1)}, {s(S_J)}, {8*HBLK}\ns_add_u32 {s(S_T1)}, {s(S_T1)}, {s(S_HB)}")
    if be: A(f"s_add_u32 {s(S_T1)}, {s(S_T1)}, {HBLK}")
    def em(f):
        for mm in range(2):
            for tt in range(2):
                A(f"buffer_store_dwordx4 {v(hp(be, mm) + 4*tt,4)}, {v(V_L16)}, {srd(R_WS)}, {s(S_T1)} offen offset:{2048*mm + 1024*tt} {f}")
    by_mode(em, OPT["hflag"] > 0, "nt" if OPT["hflag"] == 1 else "")
    vq.issue(("st", be), 4)
def m_flag(be):
    vq.wait(("st", be))
    A(f"s_lshl_b32 {s(S_T1)}, {s(S_J)}, {FSH}\nv_mov_b32 {v(V_A)}, {s(S_T1)}\ns_mov_b64 exec, 1")
    by_mode(lambda f: A(f"buffer_store_dword {v(V_ONE)}, {v(V_A)}, {srd(R_WS)}, {s(S_NN)} offen offset:{FBE*be} {f}"), OPT["hflag"] > 0, "")
    exec_all()
    vq.issue(("fl", be))
colsum_spread(GCS, CSY, V_A)
gelu_tile(0, 0); gelu_tile(0, 1)
h_stores(0)
vq.wait(("w4", 7))
to_regs([(20 + c) % 12 for c in range(8)], 1024)
for c in range(12, 20): w4_block(c)
colsum_spread(GCS + 4, CSY, V_A)
m_flag(0)
gelu_tile(1, 0); gelu_tile(1, 1)
stamp("G_gemm3")
poll_flags(29, s(S_NN), 7, V_B)
vq.drained()
stamp("G_m0flags")
free_sets = [112, 120, 192]
pending = list(range(2, 14)) + list(range(16, 28))
bset = {0: hp(0, 0), 1: hp(0, 1), 14: hp(1, 0), 15: hp(1, 1)}
allow = [14]
def b_loads(limit):
    while pending and free_sets and pending[0] <= limit and pending[0] < allow[0]:
        c = pending.pop(0); r_ = free_sets.pop(0); bset[c] = r_
        if c % 2 == 0:
            producer(c, S_P)
            A(f"s_mul_i32 {s(S_P)}, {s(S_P)}, {8*HBLK}\ns_add_u32 {s(S_P)}, {s(S_P)}, {s(S_HB)}")
            if c >= 14: A(f"s_add_u32 {s(S_P)}, {s(S_P)}, {HBLK}")
        for tt in range(2):
            A(f"buffer_load_dwordx4 {v(r_+4*tt,4)}, {v(V_L16)}, {srd(R_WS)}, {s(S_P)} offen offset:{2048*(c % 2) + 1024*tt} sc1")
        vq.issue(("B", c), 2)
b_loads(4)
h_stores(1)
LOOK = 7
for c in range(28):
    nxt = c + 1
    n = 0
    if 8 <= nxt < 28:
        vq.wait(("w4", nxt)); blk_reads(GA + 8*(nxt % 2), (20 + nxt) % 12, 1024); n = 4
    vq.wait(("B", c), extra=f"lgkmcnt({n})" if c >= 8 else "")
    a = RW + 8*c if c < 8 else GA + 8*(c % 2)
    b = bset[c]
    z = "0" if c == 0 else None
    mfma(GACC, a, b, z)
    mfma(GACC + 16, a, b + 4, z)
    if c == 4: m_flag(1)
    if c == 9:
        A(f"s_mov_b64 exec, 0x7f\nbuffer_load_dword {v(V_B)}, v29, {srd(R_WS)}, {s(S_NN)} offen offset:{FBE} sc1\ns_mov_b64 exec, -1")
        vq.issue("chk")
    if c == 11:
        l0 = lab("m1ok")
        vq.wait("chk")
        A(f"""s_mov_b64 exec, 0x7f
        v_cmp_eq_u32 vcc, 0, {v(V_B)}
        s_mov_b64 exec, -1
        s_add_u32 {s(S_T3)}, {s(S_NN)}, {FBE}
        s_cbranch_vccz {l0}""")
        poll_flags(29, s(S_T3), 7, V_B)
        A(f"{l0}:")
        allow[0] = 28
    if 8 <= c < 16: w4_block(c + 12)
    mfma(GACC + 32, a + 4, b, z)
    mfma(GACC + 48, a + 4, b + 4, z)
    if c < 8: free_sets.append(a)
    free_sets.append(b)
    b_loads(c + LOOK)
stamp("G_gemm4")
lbls = [lab("gr") for _ in range(4)]
l_done = lab("grd")
OT4 = 96
A(f"v_add_u32 {v(V_A)}, {s(S_RING)}, {v(V_L16)}\ns_nop 9")
for w_ in range(4):
    A(f"{lbls[w_]}:")
    if w_ < 3:
        A(f"s_cmp_lg_u32 {s(S_W4)}, {w_}\ns_cbranch_scc1 {lbls[w_+1]}")
    tile = lambda u: GACC + 32*(u & 1) + 16*(u >> 1)
    for u in range(4):
        if u == w_: continue
        for k in range(4):
            A(f"ds_write_b128 {v(V_A)}, {v(tile(u)+4*k,4)} offset:{4096*u + 1024*k}")
    for i in range(16): A(f"v_mov_b32 {v(OT4+i)}, {v(tile(w_)+i)}")
    A(f"v_mov_b32 {v(V_D)}, {v(R1[w_ >> 1])}")
    if w_ < 3: A(f"s_branch {l_done}")
A(f"{l_done}:")
lds_arrive(SY_GBAR)
for u in range(1, 4):
    A(f"""s_add_u32 {s(S_T1)}, {s(S_W4)}, {u}
    s_and_b32 {s(S_T1)}, {s(S_T1)}, 3
    s_mul_i32 {s(S_T1)}, {s(S_T1)}, {RING_B}
    s_lshl_b32 {s(S_T2)}, {s(S_W4)}, 12
    s_add_u32 {s(S_T1)}, {s(S_T1)}, {s(S_T2)}
    s_add_u32 {s(S_T1)}, {s(S_T1)}, {L_RING}
    v_add_u32 {v(23+u)}, {s(S_T1)}, {v(V_L16)}""")
XU = 112
for k in range(8):
    A(f"v_lshlrev_b32 {v(XU+2*k)}, 16, {v(XC+k)}\nv_and_b32 {v(XU+2*k+1)}, 0xffff0000, {v(XC+k)}")
lds_wait(SY_GBAR, 12, V_C)
for u in range(3):
    for k in range(4):
        A(f"ds_read_b128 {v(32+16*u+4*k,4)}, {v(24+u)} offset:{1024*k}")
for u in range(3):
    for k in range(4):
        A(f"s_waitcnt lgkmcnt({11 - 4*u - k})")
        for i in range(4): A(f"v_add_f32 {v(OT4+4*k+i)}, {v(OT4+4*k+i)}, {v(32+16*u+4*k+i)}")
GT2 = 144
for i in range(16): A(f"v_fma_f32 {v(X1+i)}, {v(OT4+i)}, {v(V_D)}, {v(X1+i)}")
for i in range(16): A(f"v_mul_f32 {v(GT2+i)}, {fh(-LOG2E)}, {v(X1+i)}")
for i in range(16): A(f"v_exp_f32 {v(GT2+i)}, {v(GT2+i)}")
for i in range(16): A(f"v_add_f32 {v(GT2+i)}, 1.0, {v(GT2+i)}")
for i in range(16): A(f"v_rcp_f32 {v(GT2+i)}, {v(GT2+i)}")
for i in range(16): A(f"v_mul_f32 {v(X1+i)}, {v(X1+i)}, {v(GT2+i)}")
stamp("G_gate")
A(f"""s_lshl_b32 {s(S_T1)}, {s(S_W4)}, 13
v_add_u32 {v(V_A)}, {s(S_T1)}, {v(V_L16)}
v_mul_u32_u24 {v(V_B)}, 896, {v(V_T)}
v_lshl_add_u32 {v(V_B)}, {v(V_H)}, 4, {v(V_B)}
s_lshl_b32 {s(S_T1)}, {s(S_G)}, 1
s_add_u32 {s(S_T1)}, {s(S_T1)}, {s(S_HI)}
s_mul_i32 {s(S_T1)}, {s(S_T1)}, {32*896}
s_lshl_b32 {s(S_T2)}, {s(S_J)}, 1
s_add_u32 {s(S_T2)}, {s(S_T2)}, {s(S_LO)}
s_lshl_b32 {s(S_T2)}, {s(S_T2)}, 6
s_add_u32 {s(S_T1)}, {s(S_T1)}, {s(S_T2)}""")
lds_wait(SY_S, 4, V_C)
stamp("G_sready")
for q in range(4):
    A(f"ds_read_b128 {v(32+4*q,4)}, {v(V_A)} offset:{1024*q}\nds_read_b128 {v(48+4*q,4)}, {v(V_A)} offset:{4096 + 1024*q}")
for q in range(4):
    A(f"s_waitcnt lgkmcnt({6 - 2*q})")
    for i in range(4): A(f"v_add_f32 {v(32+4*q+i)}, {v(32+4*q+i)}, {v(48+4*q+i)}")
    for i in range(4): A(f"v_fma_f32 {v(X1+4*q+i)}, {v(X1+4*q+i)}, {v(32+4*q+i)}, {v(XU+4*q+i)}")
pack16(X1, GT2)
packed_to_chunks(GT2)
A(f"""buffer_store_dwordx4 {v(GT2,4)}, {v(V_B)}, {srd(R_OUT)}, {s(S_T1)} offen nt
buffer_store_dwordx4 {v(GT2+4,4)}, {v(V_B)}, {srd(R_OUT)}, {s(S_T1)} offen offset:32 nt""")
stamp("G_end", True)
A("s_endpgm")
STAMPS_G = list(STAMPS)

A(f"""L_g_kv:
s_mul_i32 {s(S_T1)}, {s(S_LO)}, 25088
s_add_u32 {s(S_T1)}, {s(S_T1)}, {L_S1}
v_add_u32 {v(V_WA)}, {s(S_T1)}, {v(V_WA2)}
s_lshl_b32 {s(S_N0)}, {s(S_G)}, 1
s_add_u32 {s(S_N0)}, {s(S_N0)}, {s(S_HI)}
s_lshl_b32 {s(S_N0)}, {s(S_N0)}, 12
s_add_u32 {s(S_N0)}, {s(S_N0)}, {W_KV}
s_cmp_eq_u32 {s(S_LO)}, 1
s_cbranch_scc1 L_g_v""")
phaseA1("K")
colsum_spread(CS4, CSX, V_A)
center_scale(ACC, CSX, V_R)
zero_pad_dims(ACC)
pack16(ACC, TMP)
exec_hi()
A(f"v_mov_b32 {v(TMP+6)}, {ONES}\nv_mov_b32 {v(TMP+7)}, 0x3f80")
exec_all()
A(f"""buffer_store_dwordx4 {v(TMP,4)}, {v(V_L16)}, {srd(R_WS)}, {s(S_N0)} offen sc1
buffer_store_dwordx4 {v(TMP+4,4)}, {v(V_L16)}, {srd(R_WS)}, {s(S_N0)} offen offset:1024 sc1""")
norm2(ACC, V_A, V_B)
for sh in (1, 2, 4, 8):
    A(f"v_max_f32_dpp {v(V_A)}, {v(V_A)}, {v(V_A)} row_shr:{sh} row_mask:0xf bank_mask:0xf")
A(f"""s_mov_b64 exec, 0x80008000
ds_max_u32 {v(V_SY)}, {v(V_A)} offset:{SY_KMAX}
s_mov_b64 exec, -1
s_branch L_g_kvpub
L_g_v:""")
phaseA1("V")
A(f"""v_mul_f32 {v(V_A)}, {v(V_M)}, {v(V_R)}
v_cmp_eq_u32 vcc, 0, {v(V_H)}
s_lshl_b32 {s(S_T1)}, {s(S_HI)}, 8
s_add_u32 {s(S_T1)}, {s(S_T1)}, {L_VST}
v_lshl_add_u32 {v(V_B)}, {v(V_LANE)}, 2, {s(S_T1)}
v_cndmask_b32 {v(V_A)}, {v(V_A)}, {v(V_R)}, vcc
ds_write_b32 {v(V_B)}, {v(V_A)}
v_lshl_add_u32 {v(V_B)}, {v(V_H)}, 4, {s(S_T1)}""")
for jj in range(4):
    A(f"ds_read_b128 {v(CSX+4*jj,4)}, {v(V_B)} offset:{32*jj}")
    A(f"ds_read_b128 {v(TMP+4*jj,4)}, {v(V_B)} offset:{128 + 32*jj}")
A(f"""v_and_b32 {v(V_A)}, 16, {v(V_LANE)}
v_cmp_eq_u32 vcc, 0, {v(V_A)}
v_cndmask_b32 {v(V_A)}, {v(CS4+1)}, {v(CS4)}, vcc
s_waitcnt lgkmcnt(0)""")
for i in range(16): A(f"v_mul_f32 {v(TMP+i)}, {v(TMP+i)}, {v(V_A)}")
for i in range(16): A(f"v_fma_f32 {v(ACC+i)}, {v(ACC+i)}, {v(CSX+i)}, -{v(TMP+i)}")
pack16(ACC, TMP)
A(f"v_cmp_eq_u32 vcc, 28, {v(V_T)}\nv_mov_b32 {v(V_A)}, {ONES}")
for k in range(8): A(f"v_cndmask_b32 {v(TMP+k)}, {v(TMP+k)}, {v(V_A)}, vcc")
A(f"""buffer_store_dwordx4 {v(TMP,4)}, {v(V_L16)}, {srd(R_WS)}, {s(S_N0)} offen offset:2048 sc1
buffer_store_dwordx4 {v(TMP+4,4)}, {v(V_L16)}, {srd(R_WS)}, {s(S_N0)} offen offset:3072 sc1
L_g_kvpub:""")
nstamp[0] = 2; stamp("kv_stored")
lds_arrive(SY_GBAR)
flags_cleared()
def kv_flags():
    A(f"""ds_read_b32 {v(V_C)}, {v(V_SY)} offset:{SY_KMAX}
    s_waitcnt lgkmcnt(0)
    v_or_b32 {v(V_C)}, 1, {v(V_C)}
    buffer_store_dword {v(V_C)}, {v(V_A)}, {srd(R_WS)}, {s(S_T3)} offen offset:{F_KV - F_H - 7*128} sc1""")
    h_flag()
signal_last(SY_CH, F_H, V_A, emit=kv_flags)
stamp("kv_pub")
A(f"s_lshl_b32 {s(S_T0)}, {s(S_G)}, 2\ns_add_u32 {s(S_T0)}, {s(S_T0)}, {s(S_W4)}")
for r_, n_ in ((R_W3, 1605632), (R_W4, 1605632), (R_WO, 401408)):
    touch(r_, n_, 128, S_T0)
if OPT["l2pf"]:
    A(f"""s_and_b32 {s(S_T0)}, {s(S_G)}, 3
    s_lshl_b32 {s(S_T0)}, {s(S_T0)}, 2
    s_add_u32 {s(S_T0)}, {s(S_T0)}, {s(S_W4)}""")
    for r_, n_ in ((R_W3, 1605632), (R_W4, 1605632), (R_WO, 401408))[:OPT["l2pf"]]:
        touch(r_, n_, 16, S_T0, throttle=1)
stamp("kv_touched")
poll_group(F_H, 8, V_A, V_B)
decide_local()
lds_arrive(SY_X1D)
nstamp[0] = len(STAMPS_G) - 1
stamp("G_end", True)
A("s_endpgm")

nstamp[0] = 1
del STAMPS[1:]
A(f"""L_role_A:
s_cmp_eq_u32 {s(S_KV)}, 1
s_cbranch_scc1 L_a_kvcopy
""")
slice_pieces(R_W1, L_S1, range(14))
A(f"""s_branch L_a_copied
L_a_kvcopy:
s_mov_b32 {s(R_STR+2)}, 25088""")
for st in range(3):
    for q in range(4):
        A(f"""s_add_u32 {s(S_T1)}, {s(S_W4)}, {4*q}
        s_min_u32 {s(S_T1)}, {s(S_T1)}, 13
        s_cmp_ge_u32 {s(S_T1)}, 7
        s_cselect_b64 {s(R_STR,2)}, {s(R_WV,2)}, {s(R_WK,2)}
        s_cselect_b32 {s(S_T2)}, 7, 0
        s_cselect_b32 {s(S_T3)}, 25088, 0
        s_sub_u32 {s(S_T1)}, {s(S_T1)}, {s(S_T2)}
        s_lshl_b32 {s(S_T1)}, {s(S_T1)}, 10
        s_add_u32 {s(S_T1)}, {s(S_T1)}, {7168*st}
        s_add_u32 {s(S_T3)}, {s(S_T3)}, {s(S_T1)}
        s_add_u32 m0, {s(S_T3)}, {L_S1}
        s_nop 0
        buffer_load_dwordx4 {v(V_L16)}, {srd(R_STR)}, {s(S_T1)} offen lds""")
A(f"""s_lshl_b32 {s(S_T1)}, {s(S_W4)}, 10
s_add_u32 {s(S_T1)}, {s(S_T1)}, 21504
s_add_u32 m0, {s(S_T1)}, {L_S1}
s_cmp_eq_u32 {s(S_W4)}, 3
s_cselect_b32 exec_hi, 0, -1
buffer_load_dwordx4 {v(V_L16)}, {srd(R_WK)}, {s(S_T1)} offen lds
s_add_u32 m0, m0, 25088
s_nop 0
buffer_load_dwordx4 {v(V_L16)}, {srd(R_WV)}, {s(S_T1)} offen lds
s_mov_b32 exec_hi, -1
L_a_copied:
s_waitcnt vmcnt(14)
s_barrier""")
stamp("x_landed")
A(f"""v_lshl_add_u32 v25, {s(S_W4)}, 6, {v(V_LANE)}
s_mul_i32 {s(S_RING)}, {s(S_KV)}, {50176 - 8192}
s_add_u32 {s(S_RING)}, {s(S_RING)}, {L_WQ6}""")
pattern(24, 25)
A("v_add_u32 v25, 256, v25")
pattern(25, 25)
A(f"s_add_u32 {s(S_T0)}, {s(S_W4)}, 4\ns_cmp_eq_u32 {s(S_W4)}, 3\ns_cbranch_scc1 L_a_wq3")
def wq_copy(two):
    ents = [(p, u) for u in range(7) for p in range(2)]
    cuts = [0, 5, 7, 9, 11, 14]
    done = 0
    for b in range(5):
        for p, u in ents[cuts[b]:cuts[b+1]]:
            if p == 1 and not two: continue
            dma_rows(R_WQ, 24 + p, S_T0 if p else S_W4, [(u, L_S2 + 7168*u if u < 6 else s(S_RING))])
            done += 1
        if b < 4:
            A(f"s_waitcnt vmcnt({[10, 6, 2, 0][b] + done})\ns_barrier")
            if b == 0:
                common_addresses()
                A(f"""v_lshlrev_b32 {v(V_D)}, 1, {v(V_H)}
                v_lshl_add_u32 {v(V_D)}, {v(V_A)}, 2, {v(V_D)}
                v_mul_u32_u24 {v(V_WA)}, 112, {v(V_D)}
                v_add_u32 {v(V_WA)}, {v(V_WA)}, {v(V_B)}
                v_cmp_le_u32 vcc, 56, {v(V_B)}
                s_lshl_b32 {s(S_T2)}, {s(S_LO)}, 5
                v_mov_b32 {v(V_A)}, {s(S_T2)}
                v_cndmask_b32 {v(V_A)}, 0, {v(V_A)}, vcc
                v_sub_u32 {v(V_WA)}, {v(V_WA)}, {v(V_A)}
                s_mul_i32 {s(S_T1)}, {s(S_LO)}, 56
                s_add_u32 {s(S_T2)}, {s(S_T1)}, {s(S_RING)}
                v_add_u32 {v(V_WA2)}, {s(S_T2)}, {v(V_WA)}
                s_add_u32 {s(S_T2)}, {s(S_T1)}, {L_S2}
                v_add_u32 {v(V_WA)}, {s(S_T2)}, {v(V_WA)}""")
            if b == 1: stats_final()
wq_copy(True)
A("s_branch L_a_wqdone\nL_a_wq3:")
wq_copy(False)
A("L_a_wqdone:")
for i in range(8):
    A(f"ds_read_b128 {v(BF+4*i,4)}, {v(V_XB)} offset:{32*i}")
A("s_waitcnt vmcnt(0)")
lds_arrive(SY_ABAR)
lds_wait(SY_ABAR, 4, V_C)
stamp("A_wq")
tile_steps("Q", False)
lds_arrive(SY_ABAR)
stamp("A_qgemm")
colsum_spread(CS4, CSX, V_A)
lds_wait(SY_GBAR, 4, V_C)
lds_wait(SY_ABAR, 8, V_C)
A(f"v_mul_f32 {v(V_RR)}, {fh(28 ** -0.5 * LOG2E)}, {v(V_R)}")
center_scale(ACC, CSX, V_RR)
zero_pad_dims(ACC)
pack16(ACC, TMP + 16)
norm2(ACC, V_A, V_B)
A(f"""s_lshl_b32 {s(S_T1)}, {s(S_W4)}, 7
s_add_u32 {s(S_T1)}, {s(S_T1)}, {L_QN}
v_lshl_add_u32 {v(V_B)}, {v(V_T)}, 2, {s(S_T1)}
ds_write_b32 {v(V_B)}, {v(V_A)}
s_mul_i32 {s(S_T1)}, {s(S_W4)}, {RING_B}
s_add_u32 {s(S_T1)}, {s(S_T1)}, {L_RING + 4096}
v_add_u32 {v(V_B)}, {s(S_T1)}, {v(V_L16)}
ds_write_b128 {v(V_B)}, {v(TMP+16,4)}
ds_write_b128 {v(V_B)}, {v(TMP+20,4)} offset:1024""")
lds_arrive(SY_ABAR)
QF, OA, SS, EE, PP, KV = 32, 64, 128, 160, 168, 176
A(f"""v_add_u32 {v(V_A)}, {s(S_XCD)}, {v(V_LANE)}
v_and_b32 {v(V_A)}, 7, {v(V_A)}
v_lshl_add_u32 {v(V_A)}, {v(V_A)}, 2, {s(S_W4)}
v_mul_u32_u24 {v(V_A)}, {FLAG_GS}, {v(V_A)}
s_mov_b32 {s(S_T3)}, {F_KV}
s_lshl_b32 {s(S_N0)}, {s(S_W4)}, 13
s_add_u32 {s(S_N0)}, {s(S_N0)}, {W_KV}""")
lds_wait(SY_CH, 4, V_C)
stamp("A_w2")
poll_flags(V_A, s(S_T3), 8, V_B)
stamp("A_kvflags")
def tile_soff(dst, d, ii):
    A(f"""s_add_u32 {s(dst)}, {s(S_XCD)}, {d}
    s_and_b32 {s(dst)}, {s(dst)}, 7
    s_lshl_b32 {s(dst)}, {s(dst)}, 15
    s_add_u32 {s(dst)}, {s(dst)}, {s(S_N0)}""")
    if ii: A(f"s_add_u32 {s(dst)}, {s(dst)}, 4096")
def ldK(set_, soff):
    if OPT["ldprio"]: A("s_setprio 3")
    ldK_(set_, soff)
    if OPT["ldprio"]: A(f"s_setprio {OPT['aprio']}")
def ldV(set_, soff):
    if OPT["ldprio"]: A("s_setprio 3")
    ldV_(set_, soff)
    if OPT["ldprio"]: A(f"s_setprio {OPT['aprio']}")
def ldK_(set_, soff):
    for m in range(2): A(f"buffer_load_dwordx4 {v(KV+16*set_+4*m,4)}, {v(V_L16)}, {srd(R_WS)}, {s(soff)} offen offset:{1024*m} sc1")
def ldV_(set_, soff):
    for m in range(2): A(f"buffer_load_dwordx4 {v(KV+16*set_+8+4*m,4)}, {v(V_L16)}, {srd(R_WS)}, {s(soff)} offen offset:{2048+1024*m} sc1")
def first_tiles(ns=(0, 1)):
    for n in ns:
        tile_soff(S_T1, n >> 1, n & 1)
        ldK(n, S_T1); ldV(n, S_T1)
first_tiles()
for sh in (1, 2, 4):
    A(f"v_max_f32_dpp {v(V_B)}, {v(V_B)}, {v(V_B)} row_shr:{sh} row_mask:0xf bank_mask:0xf")
A(f"v_readlane_b32 {s(S_KMAX)}, {v(V_B)}, 7")
lds_wait(SY_ABAR, 12, V_C)
A(f"v_add_u32 {v(V_B)}, {L_RING + 4096}, {v(V_L16)}\nv_add_u32 {v(V_D)}, {L_RING + 4096 + 2*RING_B}, {v(V_L16)}")
for q in range(4):
    r_ = V_B if q < 2 else V_D
    A(f"ds_read_b128 {v(QF+8*q,4)}, {v(r_)} offset:{RING_B*(q%2)}\nds_read_b128 {v(QF+8*q+4,4)}, {v(r_)} offset:{RING_B*(q%2)+1024}")
A(f"""v_lshlrev_b32 {v(V_B)}, 3, {v(V_LANE)}
v_add_u32 {v(V_B)}, {L_QN}, {v(V_B)}
ds_read_b64 v[24:25], {v(V_B)}
s_mov_b32 {s(S_PASS)}, 20
s_waitcnt lgkmcnt(0)
v_max_f32 v24, v24, v25
v_mul_f32 v24, {s(S_KMAX)}, v24
v_cmp_nge_f32 vcc, {fh(-1.0 if OPT['force_slow'] else 1600.0)}, v24
s_cmp_lg_u64 vcc, 0
s_cselect_b32 {s(S_T1)}, 1, 0
v_mov_b32 v24, {s(S_T1)}
s_mov_b64 exec, 1
ds_add_u32 {v(V_SY)}, v24 offset:{SY_BAD}
ds_add_u32 {v(V_SY)}, {v(V_ONE)} offset:{SY_ABAR}
s_mov_b64 exec, -1
L_attn:""")
for i in range(64): A(f"v_mov_b32 {v(OA+i)}, 0")
def qk(n, m):
    t_, q = (n // 4) % 4, n % 4
    mfma(SS + 16*(n % 2), KV + 16*t_ + 4*m, QF + 8*q + 4*m, "0" if m == 0 else None)
def pv(n, m):
    t_, q = (n // 4) % 4, n % 4
    mfma(OA + 16*q, KV + 16*t_ + 8 + 4*m, PP + 4*m)
def exps(n, qq):
    for i in range(4): A(f"v_exp_f32 {v(EE + 4*(qq % 2) + i)}, {v(SS + 16*(n % 2) + 4*qq + i)}")
def cvts(qq):
    e = EE + 4*(qq % 2)
    A(f"v_cvt_pk_bf16_f32 {v(PP+2*qq)}, {v(e)}, {v(e+1)}\nv_cvt_pk_bf16_f32 {v(PP+2*qq+1)}, {v(e+2)}, {v(e+3)}")
def slot_q12(n, first=False):
    if n % 4 == 3: A("s_waitcnt vmcnt(10)")
    qk(n + 1, 0)
    if n % 4 == 3: ldK((n // 4) % 4, S_T1 + ((n // 4) % 2))
    if not first: cvts(3)
    exps(n, 0)
    if not first: pv(n - 1, 1)
    cvts(0)
    exps(n, 1)
def slot_q34(n):
    qk(n + 1, 1)
    if n % 4 == 0 and n > 0: ldV(((n // 4) - 1) % 4, S_T1 + (((n // 4) - 1) % 2))
    cvts(1)
    exps(n, 2)
    if n % 4 == 0: A(f"s_waitcnt vmcnt(12)")
    pv(n, 0)
    cvts(2)
    exps(n, 3)
if OPT["fine"] > 1: stamp("a_q")
A("s_waitcnt vmcnt(4)")
if OPT["fine"] > 1: stamp("a_k0")
qk(0, 0); qk(0, 1)
first_tiles((2,))
slot_q12(0, first=True)
A(f"s_mov_b32 {s(S_CNT)}, 2")
A(".p2align 6\nL_att_loop:")
qk(1, 1)
l0 = lab("nov")
l1 = lab("v3")
A(f"s_cmp_eq_u32 {s(S_CNT)}, 2\ns_cbranch_scc0 {l1}")
tile_soff(S_T2, 1, 1)
ldK(3, S_T2)
A(f"{l1}:")
ldV(3, S_T2)
cvts(1); exps(0, 2)
A("s_waitcnt vmcnt(12)")
pv(0, 0); cvts(2); exps(0, 3)
def next_pair():
    A(f"""s_add_u32 {s(S_T1)}, {s(S_XCD)}, {s(S_CNT)}
    s_and_b32 {s(S_T1)}, {s(S_T1)}, 7
    s_lshl_b32 {s(S_T1)}, {s(S_T1)}, 15
    s_add_u32 {s(S_T1)}, {s(S_T1)}, {s(S_N0)}
    s_cmp_ge_u32 {s(S_CNT)}, 8
    s_cselect_b32 {s(S_T1)}, {OOB}, {s(S_T1)}
    s_add_u32 {s(S_T3)}, {s(S_T1)}, 4096
    s_add_u32 {s(S_CNT)}, {s(S_CNT)}, 1""")
for n in range(1, 16):
    if n in (2, 10): next_pair()
    if n in (5, 13): A(f"s_mov_b32 {s(S_T2)}, {s(S_T3)}")
    slot_q12(n); slot_q34(n)
    if OPT["fine"] > 2 and n in (3, 7, 11):
        A(f"s_lshl_b32 {s(S_T5)}, {s(S_CNT)}, 1")
        stamp_dyn(40 - 6 + (n == 7), S_T5)
slot_q12(16)
stamp_dyn(28, S_CNT)
A(f"s_cmp_lt_u32 {s(S_CNT)}, {4 if OPT['noA'] else 10}\ns_cbranch_scc1 L_att_loop")
stamp("A_attn")
lds_wait(SY_X1D, 4, V_C, nap=True)
if OPT["fine"] > 1: stamp("a_gok")
lbls = [lab("red") for _ in range(4)]
l_done = lab("redd")
OT = 128
for a_ in range(4):
    A(f"{lbls[a_]}:")
    if a_ < 3:
        A(f"s_cmp_lg_u32 {s(S_W4)}, {a_}\ns_cbranch_scc1 {lbls[a_+1]}")
    for q in range(4):
        if q == a_: continue
        slot = q * 3 + (a_ if a_ < q else a_ - 1)
        for k in range(4):
            A(f"ds_write_b128 {v(V_L16)}, {v(OA+16*q+4*k,4)} offset:{4096*slot + 1024*k}")
    for i in range(16): A(f"v_mov_b32 {v(OT+i)}, {v(OA+16*a_+i)}")
    if a_ < 3: A(f"s_branch {l_done}")
A(f"{l_done}:")
lds_arrive(SY_ABAR)
A(f"s_mul_i32 {s(S_T1)}, {s(S_W4)}, 12288\nv_add_u32 {v(V_A)}, {s(S_T1)}, {v(V_L16)}")
lds_wait(SY_ABAR, s(S_PASS), V_C)
A(f"ds_read_b64 v[24:25], {v(V_SY)} offset:{SY_BAD}")
for k in range(12):
    A(f"ds_read_b128 {v(OA+4*k,4)}, {v(V_A)} offset:{1024*k}")
A(f"""s_waitcnt lgkmcnt(12)
v_readfirstlane_b32 {s(S_T1)}, v24
v_readfirstlane_b32 {s(S_LOC)}, v25
s_cmp_eq_u32 {s(S_PASS)}, 20
s_cselect_b32 {s(S_T1)}, {s(S_T1)}, 0
s_cmp_lg_u32 {s(S_T1)}, 0
s_cbranch_scc1 L_slow""")
for k in range(12):
    A(f"s_waitcnt lgkmcnt({11-k})")
    for i in range(4): A(f"v_add_f32 {v(OT+4*(k%4)+i)}, {v(OT+4*(k%4)+i)}, {v(OA+4*k+i)}")
A(f"""v_mov_b32 {v(V_A)}, {v(OT+12)}
v_mov_b32 {v(V_B)}, {v(OT+12)}
v_permlane32_swap_b32 {v(V_A)}, {v(V_B)}
v_rcp_f32 {v(V_B)}, {v(V_B)}""")
for i in range(16): A(f"v_mul_f32 {v(OT+i)}, {v(OT+i)}, {v(V_B)}")
pack16(OT, OA)
A(f"""s_mul_i32 {s(S_T1)}, {s(S_LO)}, 7
v_add_u32 {v(V_A)}, {s(S_T1)}, {v(V_H)}
v_lshrrev_b32 {v(V_B)}, 1, {v(V_A)}
v_and_b32 {v(V_A)}, 1, {v(V_A)}
v_lshlrev_b32 {v(V_B)}, 10, {v(V_B)}
v_lshl_add_u32 {v(V_B)}, {v(V_A)}, 3, {v(V_B)}
v_lshl_add_u32 {v(V_B)}, {v(V_T)}, 4, {v(V_B)}
s_mul_i32 {s(S_T1)}, {s(S_J)}, 7168
s_lshl_b32 {s(S_T2)}, {s(S_HI)}, 9
s_add_u32 {s(S_T1)}, {s(S_T1)}, {s(S_T2)}
s_add_u32 {s(S_T1)}, {s(S_T1)}, {s(S_GB)}
s_add_u32 {s(S_T1)}, {s(S_T1)}, {G_O}""")
def o_stores(f):
    for jj in range(4):
        if jj == 3: exec_lo()
        A(f"buffer_store_dwordx2 {v(OA+2*jj,2)}, {v(V_B)}, {srd(R_WS)}, {s(S_T1)} offen offset:{1024*jj} {f}")
    exec_all()
if OPT["fine"] > 1: stamp("a_red")
by_mode(o_stores)
lds_arrive(SY_AB2)
signal_last(SY_CO, F_O, V_A)
stamp("A_opub")
A(f"s_cmp_eq_u32 {s(S_KV)}, 1\ns_cbranch_scc1 L_a_end")
lds_wait(SY_AB2, 4, V_C)
slice_pieces(R_WO, L_S1, range(14))
A(f"""v_bfe_u32 {v(V_A)}, {v(V_LANE)}, 2, 2
v_lshl_add_u32 {v(V_D)}, {v(V_H)}, 3, {v(V_A)}
v_and_b32 {v(V_B)}, 3, {v(V_LANE)}
v_lshlrev_b32 {v(V_B)}, 3, {v(V_B)}
v_lshl_add_u32 {v(V_TP)}, {v(V_D)}, 7, {v(V_B)}
v_lshlrev_b32 {v(V_A)}, 5, {v(V_A)}
v_and_b32 {v(V_A)}, 64, {v(V_A)}
v_lshlrev_b32 {v(V_B)}, 1, {v(V_LANE)}
v_and_b32 {v(V_B)}, 32, {v(V_B)}
v_add3_u32 {v(V_TP)}, {v(V_TP)}, {v(V_A)}, {v(V_B)}
v_lshlrev_b32 {v(V_CH)}, 4, {v(V_T)}
v_lshl_add_u32 {v(V_CH)}, {v(V_H)}, 10, {v(V_CH)}""")
poll_group(F_O, 8, V_A, V_B)
stamp("A_oflags")
lds_arrive(SY_AB2)
A(f"""s_mul_i32 {s(S_T1)}, {s(S_LO)}, {28*1024}
s_lshl_b32 {s(S_T2)}, {s(S_HI)}, 9
s_add_u32 {s(S_T1)}, {s(S_T1)}, {s(S_T2)}
s_add_u32 {s(S_T1)}, {s(S_T1)}, {s(S_GB)}
s_add_u32 {s(S_T1)}, {s(S_T1)}, {G_O}""")
ksplit_loads(V_CH, V_CH, S_T1)
lds_wait(SY_AB2, 8, V_C)
if OPT["fine"] > 1:
    stamp("o_wo"); A("s_waitcnt vmcnt(0)"); stamp("o_all")
ksplit_mm()
lds_arrive(SY_AB2)
A(f"""s_lshl_b32 {s(S_T1)}, {s(S_W4)}, 13
s_lshl_b32 {s(S_T2)}, {s(S_LO)}, 12
s_add_u32 {s(S_T1)}, {s(S_T1)}, {s(S_T2)}
v_add_u32 {v(V_A)}, {s(S_T1)}, {v(V_L16)}
v_xor_b32 {v(V_B)}, 8192, {v(V_A)}""")
lds_wait(SY_AB2, 12, V_C)
for q in range(4):
    A(f"ds_write_b128 {v(V_A)}, {v(AM+4*q,4)} offset:{1024*q}\nds_write_b128 {v(V_B)}, {v(AO+4*q,4)} offset:{1024*q}")
lds_arrive(SY_S)
A("L_a_end:")
stamp("A_end", True)
A("s_endpgm")

MXR = 24
A(f"""L_slow:
s_waitcnt vmcnt(0) lgkmcnt(0)
s_mov_b32 {s(S_CNT)}, 0""")
for q in range(4): A(f"v_mov_b32 {v(MXR+q)}, 0xff800000")
A("L_slow_loop:")
A(f"""s_lshr_b32 {s(S_T2)}, {s(S_CNT)}, 1
s_add_u32 {s(S_T1)}, {s(S_XCD)}, {s(S_T2)}
s_and_b32 {s(S_T1)}, {s(S_T1)}, 7
s_lshl_b32 {s(S_T1)}, {s(S_T1)}, 15
s_add_u32 {s(S_T1)}, {s(S_T1)}, {s(S_N0)}
s_and_b32 {s(S_T2)}, {s(S_CNT)}, 1
s_lshl_b32 {s(S_T2)}, {s(S_T2)}, 12
s_add_u32 {s(S_T1)}, {s(S_T1)}, {s(S_T2)}""")
for m in range(2): A(f"buffer_load_dwordx4 {v(OA+4*m,4)}, {v(V_L16)}, {srd(R_WS)}, {s(S_T1)} offen offset:{1024*m} sc1")
A("s_waitcnt vmcnt(0)")
for q in range(4):
    mfma(SS, OA, QF + 8*q, "0"); mfma(SS, OA + 4, QF + 8*q + 4)
    for i in range(8): A(f"v_max3_f32 {v(MXR+q)}, {v(SS+2*i)}, {v(SS+2*i+1)}, {v(MXR+q)}")
A(f"""s_add_u32 {s(S_CNT)}, {s(S_CNT)}, 1
s_cmp_lt_u32 {s(S_CNT)}, 16
s_cbranch_scc1 L_slow_loop
s_lshl_b32 {s(S_T1)}, {s(S_W4)}, 9
s_add_u32 {s(S_T1)}, {s(S_T1)}, {L_MX}
v_lshl_add_u32 {v(V_A)}, {v(V_T)}, 2, {s(S_T1)}""")
for q in range(4):
    A(f"""v_mov_b32 {v(V_B)}, {v(MXR+q)}
    v_permlane32_swap_b32 {v(MXR+q)}, {v(V_B)}
    v_max_f32 {v(MXR+q)}, {v(MXR+q)}, {v(V_B)}
    ds_write_b32 {v(V_A)}, {v(MXR+q)} offset:{128*q}""")
lds_arrive(SY_ABAR)
first_tiles()
lds_wait(SY_ABAR, 24, V_C)
A(f"v_lshlrev_b32 {v(V_A)}, 2, {v(V_T)}\nv_add_u32 {v(V_A)}, {L_MX}, {v(V_A)}")
for q in range(4):
    for w_ in range(4): A(f"ds_read_b32 {v(SS+4*q+w_)}, {v(V_A)} offset:{512*w_ + 128*q}")
    A("s_waitcnt lgkmcnt(0)")
exec_hi()
for q in range(4):
    b = SS + 4*q
    A(f"""v_max3_f32 {v(b)}, {v(b)}, {v(b+1)}, {v(b+2)}
    v_max_f32 {v(b)}, {v(b)}, {v(b+3)}
    v_sub_f32 {v(b)}, 0, {v(b)}
    v_and_b32 {v(b+1)}, 0xffff0000, {v(b)}
    v_sub_f32 {v(b)}, {v(b)}, {v(b+1)}
    v_and_b32 {v(b+2)}, 0xffff0000, {v(b)}
    v_sub_f32 {v(b)}, {v(b)}, {v(b+2)}
    v_lshrrev_b32 {v(b+1)}, 16, {v(b+1)}
    v_or_b32 {v(QF+8*q+6)}, {v(b+1)}, {v(b+2)}
    v_lshrrev_b32 {v(QF+8*q+7)}, 16, {v(b)}""")
exec_all()
A(f"s_mov_b32 {s(S_PASS)}, 28\ns_branch L_attn")
A("L_END:\ns_endpgm\nL_CODE_END:")

body = A.finalize()
hdr = open("recurrent_scan__grouped_kv_mqa__mixer_s_mlp__prompt.s.ref").read().split("; Override")[0]
out = hdr + f"""; @launch grid=(256,1,1) block=(512,1,1) lds=163840
.amdgcn_target "amdgcn-amd-amdhsa--gfx950"
.text
.globl {KNAME}
.p2align 8
.type {KNAME},@function
{KNAME}:
{body}
.section .rodata,"a"
.p2align 6
.amdhsa_kernel {KNAME}
  .amdhsa_next_free_vgpr 256
  .amdhsa_next_free_sgpr 96
  .amdhsa_accum_offset 256
  .amdhsa_group_segment_fixed_size 0
  .amdhsa_kernarg_size 104
  .amdhsa_user_sgpr_count 2
  .amdhsa_user_sgpr_kernarg_segment_ptr 1
  .amdhsa_system_sgpr_workgroup_id_x 1
.end_amdhsa_kernel
"""
open(sys.argv[1], "w").write(out)
if OPT["stamp"]:
    import json
    json.dump({"G": STAMPS_G, "A": STAMPS}, open(sys.argv[1] + ".stamps.json", "w"))
```

```python
import sys, struct
from asmlib import Asm, v, s

OPT = dict(stamp=0, force_slow=0, noG=0, noA=0, prio=2, local=1, touch=1, codepf=1, plocal=0, fine=0, nop=0, norefill=0, l2pf=1, nap=0, ldprio=1, aprio=0, hflag=1, hpad=0, sepflag=0, dbgout=0, probe=-1, plo=62, phi=63, pwave=4)
for a_ in sys.argv[2:]:
    k_, x_ = a_.split("="); OPT[k_] = int(x_)

KNAME = "recurrent_scan__grouped_kv_mqa__mixer_s_mlp__prompt_kernel"
def f2u(x): return struct.unpack("<I", struct.pack("<f", x))[0]
def fh(x): return hex(f2u(x))
LOG2E = 1.4426950408889634
ONES = 0x3F803F80
OOB = 0x40000000
SPIN = 400000

W_KV = 0x80000
W_GB0, W_GBS = 0x100000, 0x80000
G_H, G_X1, G_O, G_ST, G_HH = 0x0, 0xE000, 0x1C000, 0x2A000, 0x2C000
FLAG_GS = 0x3000
F_H, F_X1, F_M, F_O, F_KV = 0x0, 0x400, 0x1000 if OPT['sepflag'] else 0x800, 0xC00, 0x800 if OPT['sepflag'] else 0x1000
W_STAMP = 0x1500000
WS_USED = 0x1600000

L_S1 = 0
L_X = 57344
L_S2 = L_X + 58368
L_MISC = L_S2 + 43008
L_WQ6 = L_S1 + 8192
L_RING = L_X
RING_B = 24576
L_STATP = L_MISC
L_STX = L_STATP
L_QN = L_MISC + 1024
L_VST = L_QN + 512
L_SYNC = L_VST + 512
L_CS = L_SYNC + 128
L_MX = L_MISC + 3072
assert L_MX + 2048 <= 163840 and L_RING + 4 * RING_B <= L_MISC and L_CS + 896 <= L_MX
SY_GBAR, SY_ABAR, SY_CX1, SY_CP, SY_CO, SY_CH, SY_BAD, SY_LOC, SY_PF, SY_KMAX, SY_W2, SY_S, SY_AB2, SY_X1D = 0, 4, 8, 12, 16, 20, 24, 28, 32, 48, 52, 56, 60, 64

S_WAVE, S_G, S_J, S_XCD = 3, 4, 5, 6
R_X, R_WQ, R_WO, R_W1, R_W2, R_W3, R_W4, R_OUT, R_DBG, R_WS, R_WK, R_WV, R_STR = 8, 12, 16, 20, 24, 28, 32, 36, 40, 44, 48, 52, 56
S_GB = 60
S_W4 = 61
S_HI, S_LO = 62, 63
S_T0, S_T1, S_T2, S_T3, S_T4, S_T5 = 64, 65, 66, 67, 68, 69
S_SPIN = 70
S_KMAX = 71
S_SOFF, S_STRIDE, S_RING = 72, 73, 74
S_CNT, S_PASS, S_NF, S_NN, S_N0 = 75, 76, 77, 78, 79
S_FG, S_KV, S_LOC, S_RANK = 80, 81, 82, 83
S_TS = 84
S_C0, S_C1 = 86, 87
S_TOUCH = 90
srd = lambda r: s(r, 4)

V_LANE, V_L16, V_T, V_H = 1, 2, 3, 4
V_M, V_R, V_RR = 5, 6, 7
V_XB, V_WA, V_WA2, V_PAT, V_TRB = 8, 9, 10, 11, 12
V_A, V_B, V_C, V_D = 13, 14, 15, 16
V_ONE, V_SY = 17, 18
V_SEL = 20
V_DBG = 30
V_TCH = 31

A = Asm()
uid = [0]
def lab(p):
    uid[0] += 1
    return f"L_{p}_{uid[0]}"

nstamp = [0]
STAMPS = []
def stamp(name, last=False):
    if not OPT["stamp"]:
        return
    i = nstamp[0]; nstamp[0] += 1
    STAMPS.append(name)
    A(f"""s_memtime {s(S_TS,2)}
    s_memrealtime s[92:93]
    s_waitcnt lgkmcnt(0)
    v_writelane_b32 v0, {s(S_TS)}, {i}""")
    if not OPT["fine"]: A(f"v_writelane_b32 v0, s92, {32 + i}")
    if last:
        A(f"""s_memrealtime {s(S_TS,2)}
        s_lshl_b32 {s(S_T5)}, s2, 3
        s_add_u32 {s(S_T5)}, {s(S_T5)}, {s(S_WAVE)}
        s_lshl_b32 {s(S_T5)}, {s(S_T5)}, 8
        s_add_u32 {s(S_T5)}, {s(S_T5)}, {W_STAMP}
        s_waitcnt lgkmcnt(0)
        v_writelane_b32 v0, {s(S_TS)}, 63
        v_lshlrev_b32 v13, 2, {v(V_LANE)}
        buffer_store_dword v0, v13, {srd(R_WS)}, {s(S_T5)} offen""")
        if OPT["dbgout"]:
            l0 = lab("dbo")
            A(f"""v_readlane_b32 {s(S_T4)}, v0, 62
            s_sub_u32 {s(S_T4)}, 0, {s(S_T4)}
            v_mov_b32 v14, {s(S_TS)}
            v_mov_b32 v15, {s(S_T4)}
            v_mov_b32 v16, 0
            s_mov_b64 exec, 1
            buffer_atomic_umax v14, v16, {srd(R_DBG)}, 0 offen sc1
            buffer_atomic_umax v15, v16, {srd(R_DBG)}, 0 offen offset:4 sc1
            s_mov_b64 exec, -1
            s_lshl_b32 {s(S_T4)}, s2, 3
            s_add_u32 {s(S_T4)}, {s(S_T4)}, {s(S_WAVE)}
            s_cmp_eq_u32 {s(S_T4)}, {OPT["dbgout"]}
            s_cbranch_scc0 {l0}
            v_readlane_b32 {s(S_T4)}, v0, 0
            v_subrev_u32 v14, {s(S_T4)}, v0
            s_mov_b64 exec, 0x7ffe
            buffer_store_dword v14, v13, {srd(R_DBG)}, 0 offen offset:4 sc1
            s_mov_b64 exec, -1
            {l0}:""")
def stamp_dyn(base, sreg):
    if OPT["stamp"] and OPT["fine"]:
        A(f"""s_memtime {s(S_TS,2)}
        s_add_u32 m0, {s(sreg)}, {base}
        s_waitcnt lgkmcnt(0)
        v_writelane_b32 v0, {s(S_TS)}, m0""")
def stamp_rt0():
    if OPT["stamp"]:
        A(f"v_mov_b32 v0, 0\ns_memrealtime {s(S_TS,2)}\ns_waitcnt lgkmcnt(0)\nv_writelane_b32 v0, {s(S_TS)}, 62")

def exec_lo(): A("s_mov_b32 exec_lo, -1\ns_mov_b32 exec_hi, 0")
def exec_hi(): A("s_mov_b32 exec_lo, 0\ns_mov_b32 exec_hi, -1")
def exec_all(): A("s_mov_b64 exec, -1")

def poll_flags(vaddr, soff, nlanes, vdst):
    l0 = lab("poll")
    A(f"""s_mov_b64 exec, {hex((1 << nlanes) - 1)}
    s_mov_b32 {s(S_SPIN)}, 0
    {l0}:
    buffer_load_dword {v(vdst)}, {v(vaddr)}, {srd(R_WS)}, {soff} offen sc1
    s_add_u32 {s(S_SPIN)}, {s(S_SPIN)}, 1
    s_cmp_gt_u32 {s(S_SPIN)}, {SPIN}
    s_cbranch_scc1 L_END
    s_waitcnt vmcnt(0)
    v_cmp_ne_u32 vcc, 0, {v(vdst)}
    s_cmp_eq_u64 vcc, exec
    s_cbranch_scc1 {l0}_ok
    {"s_sleep 4" if OPT["nap"] & 4 else ""}
    s_branch {l0}
    {l0}_ok:
    s_mov_b64 exec, -1""")

def lds_arrive(word):
    A(f"""s_mov_b64 exec, 1
    ds_add_u32 {v(V_SY)}, {v(V_ONE)} offset:{word}
    s_mov_b64 exec, -1""")

def lds_wait(word, target, vtmp, vaddr=V_SY, nap=False):
    l0 = lab("lw")
    A(f"""s_mov_b32 {s(S_SPIN)}, 0
    {l0}:
    {"s_sleep 1" if (OPT["nap"] & 1 and nap) or OPT["nap"] & 2 else ""}
    ds_read_b32 {v(vtmp)}, {v(vaddr)} offset:{word}
    s_add_u32 {s(S_SPIN)}, {s(S_SPIN)}, 1
    s_cmp_gt_u32 {s(S_SPIN)}, {SPIN*8}
    s_cbranch_scc1 L_END
    s_waitcnt lgkmcnt(0)
    v_readfirstlane_b32 {s(S_T4)}, {v(vtmp)}
    s_cmp_ge_u32 {s(S_T4)}, {target}
    s_cbranch_scc0 {l0}""")

def by_mode(emit, local_ok=True, local_flag="nt"):
    if not (OPT["local"] and local_ok):
        emit("sc1"); return
    l0, l1 = lab("far"), lab("md")
    A(f"s_cmp_eq_u32 {s(S_LOC)}, 0\ns_cbranch_scc1 {l0}")
    emit(local_flag)
    A(f"s_branch {l1}\n{l0}:")
    emit("sc1")
    A(f"{l1}:")

def signal_last(word, flagbase, vtmp, local_ok=True, younger=0, emit=None):
    l0 = lab("sig")
    A(f"""s_waitcnt vmcnt({younger})
    s_mov_b64 exec, 1
    ds_add_rtn_u32 {v(vtmp)}, {v(V_SY)}, {v(V_ONE)} offset:{word}
    s_lshl_b32 {s(S_T3)}, {s(S_J)}, 7
    s_add_u32 {s(S_T3)}, {s(S_T3)}, {s(S_FG)}
    s_add_u32 {s(S_T3)}, {s(S_T3)}, {flagbase}
    s_waitcnt lgkmcnt(0)
    v_readfirstlane_b32 {s(S_T4)}, {v(vtmp)}
    v_mov_b32 {v(vtmp)}, 0
    s_cmp_eq_u32 {s(S_T4)}, 3
    s_cbranch_scc0 {l0}""")
    if emit: emit()
    else: by_mode(lambda f: A(f"buffer_store_dword {v(V_ONE)}, {v(vtmp)}, {srd(R_WS)}, {s(S_T3)} offen {f}"), local_ok, "")
    A(f"{l0}:\ns_mov_b64 exec, -1")

def poll_group(flagbase, n, vtmp, vtmp2):
    A(f"""s_add_u32 {s(S_T3)}, {s(S_FG)}, {flagbase}
    v_lshlrev_b32 {v(vtmp)}, 7, {v(V_LANE)}""")
    poll_flags(vtmp, s(S_T3), n, vtmp2)

def mfma(d, a, b, c=None):
    A(f"v_mfma_f32_32x32x16_bf16 {v(d,16)}, {v(a,4)}, {v(b,4)}, {v(d,16) if c is None else c}")
def mfma16(d, a, b, c=None):
    A(f"v_mfma_f32_16x16x32_bf16 {v(d,4)}, {v(a,4)}, {v(b,4)}, {v(d,4) if c is None else c}")
def trread(d, addr, off):
    A(f"ds_read_b64_tr_b16 {v(d,2)}, {v(addr)} offset:{off}")

def gelu16(src, n, t0):
    for i in range(n): A(f"v_mul_f32 {v(t0+i)}, {v(src+i)}, {v(src+i)}")
    for i in range(n): A(f"v_fma_f32 {v(t0+i)}, {v(t0+i)}, {s(S_C1)}, {v(V_D)}")
    for i in range(n): A(f"v_mul_f32 {v(t0+i)}, {v(t0+i)}, {v(src+i)}")
    for i in range(n): A(f"v_exp_f32 {v(t0+i)}, {v(t0+i)}")
    for i in range(n): A(f"v_add_f32 {v(t0+i)}, 1.0, {v(t0+i)}")
    for i in range(n): A(f"v_rcp_f32 {v(t0+i)}, {v(t0+i)}")
    for i in range(n): A(f"v_mul_f32 {v(src+i)}, {v(src+i)}, {v(t0+i)}")

def colsum_spread(cs4, dst16, vtmp):
    A(f"""s_lshl_b32 {s(S_T4)}, {s(S_WAVE)}, 7
    s_add_u32 {s(S_T4)}, {s(S_T4)}, {L_CS}
    v_and_b32 {v(vtmp)}, 15, {v(V_LANE)}
    v_cmp_gt_u32 vcc, 2, {v(vtmp)}
    v_lshlrev_b32 {v(vtmp)}, 6, {v(vtmp)}
    v_and_b32 {v(vtmp+1)}, 48, {v(V_LANE)}
    v_add3_u32 {v(vtmp)}, {v(vtmp)}, {v(vtmp+1)}, {s(S_T4)}
    s_mov_b64 exec, vcc
    ds_write_b128 {v(vtmp)}, {v(cs4,4)}
    s_mov_b64 exec, -1
    v_lshl_add_u32 {v(vtmp)}, {v(V_H)}, 4, {s(S_T4)}""")
    for jj in range(4):
        A(f"ds_read_b128 {v(dst16+4*jj,4)}, {v(vtmp)} offset:{32*jj}")
    A("s_waitcnt lgkmcnt(0)")

def swap_sum2(a, b):
    A(f"v_permlane32_swap_b32 {v(a)}, {v(b)}\nv_add_f32 {v(a)}, {v(a)}, {v(b)}")
def both_halves_sum(a, t):
    A(f"v_mov_b32 {v(t)}, {v(a)}\nv_permlane32_swap_b32 {v(a)}, {v(t)}\nv_add_f32 {v(a)}, {v(a)}, {v(t)}")

def pattern(dst, vslot):
    A(f"""v_mul_u32_u24 {v(V_A)}, 9363, {v(vslot)}
    v_lshrrev_b32 {v(V_A)}, 16, {v(V_A)}
    v_mul_u32_u24 {v(V_B)}, 7, {v(V_A)}
    v_sub_u32 {v(V_B)}, {v(vslot)}, {v(V_B)}
    v_and_b32 {v(V_C)}, 3, {v(V_A)}
    v_bfe_u32 {v(V_D)}, {v(V_A)}, 2, 2
    v_and_b32 {v(V_A)}, 48, {v(V_A)}
    v_lshl_add_u32 {v(V_A)}, {v(V_C)}, 2, {v(V_A)}
    v_add_u32 {v(V_A)}, {v(V_A)}, {v(V_D)}
    v_mul_u32_u24 {v(V_A)}, 896, {v(V_A)}
    v_lshl_add_u32 {v(dst)}, {v(V_B)}, 4, {v(V_A)}
    s_mul_i32 {s(S_T4)}, {s(S_J)}, 112
    v_add_u32 {v(dst)}, {s(S_T4)}, {v(dst)}""")

def dma_rows(rsrc, vpat, spat, chunks):
    A(f"s_lshl_b32 {s(S_T1)}, {s(spat)}, 10")
    for u, lds in chunks:
        A(f"""s_add_u32 m0, {s(S_T1)}, {lds if isinstance(lds, int) else lds}
        s_mov_b32 {s(S_T2)}, {u * 57344}
        buffer_load_dwordx4 {v(vpat)}, {srd(rsrc)}, {s(S_T2)} offen lds""")

def blk_voffset(dst, rowstride):
    A(f"""v_lshrrev_b32 {v(V_A)}, 3, {v(V_LANE)}
    v_lshlrev_b32 {v(V_B)}, 2, {v(V_LANE)}
    v_and_b32 {v(V_B)}, 64, {v(V_B)}
    v_and_b32 {v(V_C)}, 7, {v(V_LANE)}
    v_lshlrev_b32 {v(V_C)}, 4, {v(V_C)}
    v_xor_b32 {v(V_B)}, {v(V_B)}, {v(V_C)}
    v_mul_u32_u24 {v(dst)}, {rowstride}, {v(V_A)}
    v_add_u32 {v(dst)}, {v(dst)}, {v(V_B)}""")

def touch(rsrc, nbytes, shares=32, srank=S_RANK, throttle=None):
    if not OPT["touch"]:
        return 0
    per = -(-(nbytes // 128) // shares)
    n = (per + 63) // 64
    A(f"s_mul_i32 {s(S_T1)}, {s(srank)}, {per * 128}\nv_lshlrev_b32 {v(V_A)}, 7, {v(V_LANE)}")
    for i in range(n):
        rem = per - 64 * i
        if rem < 64:
            A(f"s_mov_b64 exec, {hex((1 << rem) - 1)}" if rem <= 31 else f"s_mov_b32 exec_hi, {hex((1 << (rem - 32)) - 1)}")
        A(f"buffer_load_dword {v(V_TCH)}, {v(V_A)}, {srd(rsrc)}, {s(S_T1)} offen sc1")
        if throttle is not None: A(f"s_waitcnt vmcnt({throttle})")
        if i < n - 1: A(f"s_add_u32 {s(S_T1)}, {s(S_T1)}, 8192")
    exec_all()
    return n


class VMQ:
    def __init__(self): self.q = []
    def issue(self, tag, n=1): self.q += [tag] * n
    def wait(self, *tags, extra=""):
        last = max((i for i, t in enumerate(self.q) if t in tags), default=-1)
        if last >= 0:
            n = len(self.q) - 1 - last
            assert n < 64
            A(f"s_waitcnt vmcnt({n}) {extra}".strip())
            self.q = self.q[last + 1:]
        elif extra:
            A(f"s_waitcnt {extra}")
    def drained(self): self.q = []

A(f"""s_cmp_ge_u32 s2, 256
s_cbranch_scc1 L_END
s_load_dwordx16 s[64:79], s[0:1], 0
s_load_dwordx8 s[80:87], s[0:1], 64
s_load_dwordx2 s[88:89], s[0:1], 96
v_and_b32 {v(V_LANE)}, 63, v0
v_lshrrev_b32 {v(V_A)}, 6, v0
v_lshlrev_b32 {v(V_L16)}, 4, {v(V_LANE)}
v_readfirstlane_b32 {s(S_WAVE)}, {v(V_A)}
v_and_b32 {v(V_T)}, 31, {v(V_LANE)}
v_lshrrev_b32 {v(V_H)}, 5, {v(V_LANE)}
s_and_b32 {s(S_XCD)}, s2, 7
s_lshr_b32 s7, s2, 3
s_and_b32 {s(S_J)}, s7, 7
s_lshr_b32 s7, s7, 3
s_lshl_b32 {s(S_G)}, {s(S_XCD)}, 2
s_add_u32 {s(S_G)}, {s(S_G)}, s7
s_mul_i32 {s(S_GB)}, {s(S_G)}, {W_GBS}
s_add_u32 {s(S_GB)}, {s(S_GB)}, {W_GB0}
s_and_b32 {s(S_W4)}, {s(S_WAVE)}, 3
s_lshr_b32 {s(S_HI)}, {s(S_W4)}, 1
s_and_b32 {s(S_LO)}, {s(S_W4)}, 1
s_mov_b32 {s(R_X+2)}, 1835008
s_mov_b32 {s(R_X+3)}, 0x20000
s_lshl_b32 s7, {s(S_G)}, 3
s_add_u32 s7, s7, {s(S_WAVE)}
s_mul_i32 s7, s7, {8*896}
s_mul_i32 m0, {s(S_WAVE)}, {8*912}
s_add_u32 m0, m0, {L_X}
s_mov_b32 exec_hi, 0x00ffffff
s_waitcnt lgkmcnt(0)
s_mov_b64 {s(R_X,2)}, s[64:65]""")
for i in range(8):
    A(f"buffer_load_dwordx4 {v(V_L16)}, {srd(R_X)}, s7 offen lds")
    if i < 7:
        A(f"s_add_u32 m0, m0, 912\ns_add_u32 s7, s7, 896")
exec_all()
kmap = {R_WQ: 66, R_WK: 68, R_WV: 70, R_WO: 72, R_W1: 76, R_W2: 78, R_W3: 80, R_W4: 82, R_OUT: 84, R_DBG: 86, R_WS: 88}
sizes = {R_WQ: 401408, R_WO: 401408, R_W1: 401408, R_W2: 401408, R_W3: 1605632, R_W4: 1605632,
         R_OUT: 1835008, R_DBG: 256, R_WS: WS_USED, R_WK: 25088, R_WV: 25088}
for r_, k_ in kmap.items():
    A(f"s_mov_b64 {s(r_,2)}, {s(k_,2)}\ns_mov_b32 {s(r_+2)}, {sizes[r_]}\ns_mov_b32 {s(r_+3)}, 0x20000")
A(f"s_mov_b64 {s(R_STR,2)}, {s(R_W3,2)}\ns_mov_b32 {s(R_STR+2)}, 1605632\ns_mov_b32 {s(R_STR+3)}, 0x20000")
stamp_rt0()
stamp("start")
V_B896, V_TP = V_PAT, V_TRB
A(f"""s_mul_i32 {s(S_FG)}, {s(S_G)}, {FLAG_GS}
s_cmp_eq_u32 {s(S_J)}, 7
s_cselect_b32 {s(S_KV)}, 1, 0
v_mov_b32 {v(V_ONE)}, 1
v_mov_b32 {v(V_SY)}, {L_SYNC}""")
blk_voffset(V_B896, 896)
def common_addresses():
    A(f"""v_lshl_add_u32 {v(V_XB)}, {s(S_HI)}, 5, {v(V_T)}
    v_mul_u32_u24 {v(V_XB)}, 912, {v(V_XB)}
    v_lshl_add_u32 {v(V_XB)}, {v(V_H)}, 4, {v(V_XB)}
    v_add_u32 {v(V_XB)}, {L_X}, {v(V_XB)}
    v_bfe_u32 {v(V_A)}, {v(V_LANE)}, 2, 2
    v_and_b32 {v(V_B)}, 3, {v(V_LANE)}
    v_bfe_u32 {v(V_C)}, {v(V_LANE)}, 4, 1
    v_lshlrev_b32 {v(V_B)}, 3, {v(V_B)}
    v_lshl_add_u32 {v(V_B)}, {v(V_C)}, 5, {v(V_B)}
    v_and_b32 {v(V_D)}, 1, {v(V_LANE)}
    v_cmp_eq_u32 vcc, {v(V_D)}, {v(V_C)}
    v_mov_b32 {v(V_D)}, {ONES}""")
    for i in range(4):
        A(f"v_cndmask_b32 {v(V_SEL+i)}, 0, {v(V_D)}, vcc")
A(f"s_cmp_ge_u32 {s(S_WAVE)}, 4\ns_cbranch_scc1 L_role_A")

BF, AF, ACC, CS4 = 32, 64, 96, 112
CSX = 120
TMP = 136
STAGES = [(0, 8), (8, 16), (16, 24), (24, 28)]

def stats_read():
    A(f"""v_lshl_add_u32 {v(V_A)}, {s(S_HI)}, 5, {v(V_T)}
    v_lshlrev_b32 {v(V_A)}, 3, {v(V_A)}
    v_add_u32 {v(V_A)}, {L_STATP}, {v(V_A)}
    ds_read_b64 {v(TMP,2)}, {v(V_A)}
    ds_read_b64 {v(TMP+2,2)}, {v(V_A)} offset:512""")
def stats_final(read=True):
    if read:
        stats_read(); A("s_waitcnt lgkmcnt(0)")
    A(f"""v_add_f32 {v(TMP)}, {v(TMP)}, {v(TMP+2)}
    v_add_f32 {v(TMP+1)}, {v(TMP+1)}, {v(TMP+3)}
    v_mul_f32 {v(V_M)}, {fh(1/448)}, {v(TMP)}
    v_mul_f32 {v(TMP+1)}, {fh(1/448)}, {v(TMP+1)}
    v_fma_f32 {v(TMP+1)}, -{v(V_M)}, {v(V_M)}, {v(TMP+1)}
    v_max_f32 {v(TMP+1)}, 0, {v(TMP+1)}
    v_add_f32 {v(TMP+2)}, {fh(1e-5)}, {v(TMP+1)}
    v_rsq_f32 {v(V_R)}, {v(TMP+2)}
    v_mul_f32 {v(TMP+1)}, {v(TMP+1)}, {v(V_R)}
    v_fmaak_f32 {v(TMP+1)}, {v(TMP+1)}, {v(V_R)}, {fh(1e-5)}
    v_rsq_f32 {v(TMP+1)}, {v(TMP+1)}
    v_mul_f32 {v(V_RR)}, {v(V_R)}, {v(TMP+1)}""")

def tile_steps(kind, barriers):
    def rd(ks):
        if barriers and ks in (8, 16, 24): A("s_barrier")
        for ii in range(2):
            d = AF + 4*(ks % 8) + 2*ii
            if kind == "W": trread(d, V_WA, 2048*ks + 512*ii)
            elif kind == "Q" and ks < 24: trread(d, V_WA, (16*ks + ii) * 112)
            elif kind == "Q": trread(d, V_WA2, (16*(ks - 24) + ii) * 112)
            else: trread(d, V_WA, (16*ks + 4*ii) * 56)
        if ks >= 8: A(f"ds_read_b128 {v(BF+4*(ks % 8),4)}, {v(V_XB)} offset:{32*ks}")
    cnt = lambda ks: 2 + (ks >= 8)
    ahead = 4
    if barriers: stats_read()
    for ks in range(ahead): rd(ks)
    for ks in range(28):
        if barriers and ks == 2: stats_final(False)
        left = sum(cnt(x) for x in range(ks + 1, min(28, ks + ahead)))
        A(f"s_waitcnt lgkmcnt({left})")
        z = "0" if ks == 0 else None
        a, b = AF + 4*(ks % 8), BF + 4*(ks % 8)
        if kind == "V":
            mfma(ACC, b, a, z); mfma16(CS4, V_SEL, a, z)
        else:
            mfma(ACC, a, b, z); mfma16(CS4, a, V_SEL, z)
        if ks + ahead < 28: rd(ks + ahead)

def phaseA1(kind):
    for i in range(8):
        A(f"ds_read_b128 {v(BF+4*i,4)}, {v(V_XB)} offset:{32*i}")
    A("s_waitcnt lgkmcnt(0)\ns_barrier")
    tile_steps(kind, True)
    A(f"""v_lshlrev_b32 {v(V_A)}, 2, {v(V_T)}
    buffer_load_dword {v(V_DBG)}, {v(V_A)}, {srd(R_DBG)}, 0 offen offset:128 sc1""")

def center_scale(acc, csx, vscale):
    for i in range(16): A(f"v_fma_f32 {v(acc+i)}, -{v(V_M)}, {v(csx+i)}, {v(acc+i)}")
    for i in range(16): A(f"v_mul_f32 {v(acc+i)}, {v(acc+i)}, {v(vscale)}")
def pack16(src, dst):
    for k in range(8): A(f"v_cvt_pk_bf16_f32 {v(dst+k)}, {v(src+2*k)}, {v(src+2*k+1)}")
def zero_pad_dims(acc):
    exec_hi()
    for i in range(12, 16): A(f"v_mov_b32 {v(acc+i)}, 0")
    exec_all()
def norm2(acc, dst, t):
    A(f"v_mul_f32 {v(dst)}, {v(acc)}, {v(acc)}\nv_mul_f32 {v(t)}, {v(acc+1)}, {v(acc+1)}")
    for i in range(2, 16): A(f"v_fmac_f32 {v(dst if i % 2 == 0 else t)}, {v(acc+i)}, {v(acc+i)}")
    A(f"v_add_f32 {v(dst)}, {v(dst)}, {v(t)}")
    both_halves_sum(dst, t)
def flags_cleared(younger=0):
    l0, l1 = lab("dbg"), lab("dbgok")
    A(f"""s_getreg_b32 {s(S_LOC)}, hwreg(HW_REG_XCC_ID)
    s_and_b32 {s(S_LOC)}, {s(S_LOC)}, 15
    s_add_u32 {s(S_LOC)}, {s(S_LOC)}, 1
    v_lshlrev_b32 {v(V_A)}, 2, {v(V_T)}
    s_mov_b32 {s(S_SPIN)}, 0
    s_waitcnt vmcnt({younger})
    {l0}:
    v_cmp_eq_u32 vcc, 0, {v(V_DBG)}
    s_cbranch_vccz {l1}
    buffer_load_dword {v(V_DBG)}, {v(V_A)}, {srd(R_DBG)}, 0 offen offset:128 sc1
    s_waitcnt vmcnt(0)
    s_add_u32 {s(S_SPIN)}, {s(S_SPIN)}, 1
    s_cmp_gt_u32 {s(S_SPIN)}, {SPIN}
    s_cbranch_scc1 L_END
    s_branch {l0}
    {l1}:""")

XC = 232
X1 = 240
if OPT["sepflag"]:
    CLEAR = f"""buffer_store_dword {v(V_B)}, {v(V_A)}, {srd(R_WS)}, {s(S_FG)} offen sc1
    s_add_u32 {s(S_T1)}, {s(S_FG)}, 8192
    s_mov_b32 exec_hi, 0
    buffer_store_dword {v(V_B)}, {v(V_A)}, {srd(R_WS)}, {s(S_T1)} offen sc1
    s_mov_b32 exec_hi, -1"""
else:
    CLEAR = f"""s_mov_b32 exec_hi, 1
    buffer_store_dword {v(V_B)}, {v(V_A)}, {srd(R_WS)}, {s(S_FG)} offen sc1
    s_mov_b32 exec_hi, -1
    v_lshrrev_b32 {v(V_A)}, 3, {v(V_LANE)}
    v_lshlrev_b32 {v(V_A)}, 7, {v(V_A)}
    v_and_b32 {v(V_C)}, 7, {v(V_LANE)}
    v_lshl_add_u32 {v(V_A)}, {v(V_C)}, 2, {v(V_A)}
    buffer_store_dword {v(V_B)}, {v(V_A)}, {srd(R_WS)}, {s(S_FG)} offen offset:{F_M} sc1"""
A(f"""s_setprio {OPT['prio']}
v_mov_b32 {v(V_B)}, 0
s_cmp_eq_u32 {s(S_W4)}, 1
s_cbranch_scc0 L_g_nozero
v_lshl_add_u32 {v(V_A)}, {v(V_T)}, 2, {v(V_SY)}
ds_write_b32 {v(V_A)}, {v(V_B)}
L_g_nozero:
s_lshl_b32 {s(S_T0)}, {s(S_KV)}, 2
s_add_u32 {s(S_T0)}, {s(S_T0)}, {s(S_W4)}
s_cmp_eq_u32 {s(S_T0)}, 4
s_cbranch_scc0 L_g_noclear
v_lshlrev_b32 {v(V_A)}, 7, {v(V_LANE)}
{CLEAR}
L_g_noclear:""")
if OPT["codepf"]:
    A(f"""s_cmp_eq_u32 {s(S_W4)}, 2
    s_cbranch_scc0 L_nocode
    L_pc:
    s_getpc_b64 {s(S_T2,2)}
    s_lshr_b32 {s(S_T1)}, s2, 3
    s_lshl_b32 {s(S_T1)}, {s(S_T1)}, 3
    v_and_b32 {v(V_A)}, 7, {v(V_LANE)}
    v_add_u32 {v(V_A)}, {s(S_T1)}, {v(V_A)}
    v_lshlrev_b32 {v(V_A)}, 7, {v(V_A)}
    v_mov_b32 v25, {s(S_T3)}
    v_add_co_u32 v24, vcc, {s(S_T2)}, {v(V_A)}
    v_addc_co_u32 v25, vcc, 0, v25, vcc
    v_cmp_gt_u32 vcc, L_CODE_END-L_pc-128, {v(V_A)}
    s_and_b64 exec, vcc, 0xff
    s_cbranch_execz L_nocode
    global_load_dword {v(V_TCH)}, v[24:25], off sc1
    L_nocode:
    s_mov_b64 exec, -1""")
common_addresses()
A(f"""v_lshl_add_u32 {v(V_D)}, {v(V_H)}, 3, {v(V_A)}
v_mul_u32_u24 {v(V_WA2)}, 56, {v(V_D)}
v_add_u32 {v(V_WA2)}, {v(V_WA2)}, {v(V_B)}
v_cmp_le_u32 vcc, 56, {v(V_B)}
v_lshl_add_u32 {v(V_TP)}, {v(V_D)}, 7, {v(V_B)}
v_lshlrev_b32 {v(V_A)}, 5, {v(V_A)}
v_and_b32 {v(V_A)}, 64, {v(V_A)}
v_add_u32 {v(V_TP)}, {v(V_TP)}, {v(V_A)}
v_cndmask_b32 {v(V_A)}, 0, 32, vcc
v_sub_u32 {v(V_WA2)}, {v(V_WA2)}, {v(V_A)}
s_lshl_b32 {s(S_T1)}, {s(S_LO)}, 6
v_xor_b32 {v(V_WA)}, {s(S_T1)}, {v(V_TP)}
v_add_u32 {v(V_WA)}, {L_S1}, {v(V_WA)}
s_mul_i32 {s(S_T1)}, {s(S_LO)}, 448
v_add_u32 {v(V_A)}, {s(S_T1)}, {v(V_XB)}
s_mov_b32 {s(S_C0)}, {fh(-2*0.7978845608028654*LOG2E)}
s_mov_b32 {s(S_C1)}, {fh(-2*0.7978845608028654*LOG2E*0.044715)}
s_mov_b32 {s(S_T3)}, {ONES}
v_mov_b32 v24, 0
v_mov_b32 v25, 0
v_mov_b32 v26, 0
v_mov_b32 v27, 0
s_waitcnt vmcnt(0) lgkmcnt(0)
s_cmp_eq_u32 {s(S_T0)}, 4
s_cbranch_scc0 L_g_b1
s_lshl_b32 {s(S_T1)}, {s(S_G)}, 2
s_mov_b64 exec, 1
buffer_store_dword {v(V_ONE)}, v24, {srd(R_DBG)}, {s(S_T1)} offen offset:128 sc1
s_mov_b64 exec, -1
L_g_b1:
s_barrier""")
stamp("x_landed")
for i in range(14):
    A(f"ds_read_b128 {v(32+4*i,4)}, {v(V_A)} offset:{32*i}")
for i in range(14):
    A(f"s_waitcnt lgkmcnt({13-i})")
    for d in range(4):
        r_ = 32 + 4*i + d
        A(f"v_dot2_f32_bf16 {v(24+(d&1))}, {v(r_)}, {s(S_T3)}, {v(24+(d&1))}")
        A(f"v_dot2_f32_bf16 {v(26+(d&1))}, {v(r_)}, {v(r_)}, {v(26+(d&1))}")
A(f"""v_lshl_add_u32 {v(V_B)}, {s(S_HI)}, 5, {v(V_T)}
v_lshlrev_b32 {v(V_B)}, 3, {v(V_B)}
v_lshl_add_u32 {v(V_B)}, {v(V_H)}, 2, {v(V_B)}
s_lshl_b32 {s(S_T2)}, {s(S_LO)}, 9
s_add_u32 {s(S_T2)}, {s(S_T2)}, {L_STATP}
v_add_u32 {v(V_B)}, {s(S_T2)}, {v(V_B)}
v_add_f32 v24, v24, v25
v_add_f32 v26, v26, v27""")
swap_sum2(24, 26)
A(f"""ds_write_b32 {v(V_B)}, v24
s_cmp_eq_u32 {s(S_KV)}, 1
s_cbranch_scc1 L_g_kv""")
phaseA1("W")
stamp("G_gemm1")
A(f"""s_lshl_b32 {s(S_T1)}, {s(S_J)}, 1
s_add_u32 {s(S_T1)}, {s(S_T1)}, {s(S_LO)}
s_lshl_b32 {s(S_T2)}, {s(S_T1)}, 6
v_lshlrev_b32 {v(V_A)}, 3, {v(V_H)}
v_sub_u32 {v(V_A)}, {v(V_XB)}, {v(V_A)}
v_add_u32 {v(V_A)}, {s(S_T2)}, {v(V_A)}""")
for jj in range(4): A(f"ds_read_b64 {v(XC+2*jj,2)}, {v(V_A)} offset:{16*jj}")
colsum_spread(CS4, CSX, V_A)
lds_arrive(SY_GBAR)
center_scale(ACC, CSX, V_RR)
A(f"v_mov_b32 {v(V_D)}, {s(S_C0)}")
gelu16(ACC, 16, TMP)
pack16(ACC, TMP)
V_CH = V_XB
A(f"""v_lshlrev_b32 {v(V_CH)}, 4, {v(V_T)}
v_lshl_add_u32 {v(V_CH)}, {v(V_H)}, 10, {v(V_CH)}
s_lshl_b32 {s(S_T1)}, {s(S_T1)}, 12
s_lshl_b32 {s(S_T2)}, {s(S_HI)}, 9
s_add_u32 {s(S_T1)}, {s(S_T1)}, {s(S_T2)}
s_add_u32 {s(S_N0)}, {s(S_T1)}, {s(S_GB)}""")
def store_chunks(src8, region, flag):
    A(f"""s_add_u32 {s(S_T1)}, {s(S_N0)}, {region}
    buffer_store_dwordx4 {v(src8,4)}, {v(V_CH)}, {srd(R_WS)}, {s(S_T1)} offen {flag}
    buffer_store_dwordx4 {v(src8+4,4)}, {v(V_CH)}, {srd(R_WS)}, {s(S_T1)} offen offset:2048 {flag}""")
def packed_to_chunks(p8):
    for a_ in range(2):
        for d in range(2):
            A(f"v_permlane32_swap_b32 {v(p8+4*a_+d)}, {v(p8+4*a_+2+d)}")
packed_to_chunks(TMP)
store_chunks(TMP, G_H, "sc1")
def slice_pieces(rsrc, lds, idx):
    A(f"""s_lshl_b32 {s(S_T0)}, {s(S_W4)}, 10
    s_mul_i32 {s(S_T2)}, {s(S_W4)}, {8*896}
    s_lshl_b32 {s(S_T1)}, {s(S_J)}, 7
    s_add_u32 {s(S_T2)}, {s(S_T2)}, {s(S_T1)}""")
    for i in idx:
        A(f"""s_add_u32 m0, {s(S_T0)}, {lds + 4096*i}
        s_add_u32 {s(S_T1)}, {s(S_T2)}, {32*896*i}
        buffer_load_dwordx4 {v(V_B896)}, {srd(rsrc)}, {s(S_T1)} offen lds""")
if OPT["fine"] > 1: stamp("h_stored")
lds_wait(SY_GBAR, 4, V_C)
slice_pieces(R_W2, L_S1, [0, 1] + list(range(4, 14)))
HA, HB_, HFL = 24, 25, 26
A(f"""s_lshl_b32 {s(S_T1)}, {s(S_G)}, 6
s_lshl_b32 {s(S_T2)}, {s(S_HI)}, 5
s_add_u32 {s(S_T1)}, {s(S_T1)}, {s(S_T2)}
s_add_u32 {s(S_T2)}, {s(S_LO)}, 1
s_sub_u32 {s(S_T3)}, {s(S_T1)}, {s(S_T2)}
s_add_u32 {s(S_T1)}, {s(S_T1)}, {s(S_T2)}
s_mov_b32 {s(S_T2)}, {W_GBS}""")
for dst, sb in ((HA, S_T3), (HB_, S_T1)):
    A(f"""v_add_u32 {v(V_B)}, {s(sb)}, {v(V_T)}
    v_cmp_gt_u32 vcc, 2048, {v(V_B)}
    v_lshrrev_b32 {v(V_C)}, 6, {v(V_B)}
    v_and_b32 {v(V_B)}, 63, {v(V_B)}
    v_mul_lo_u32 {v(V_C)}, {v(V_C)}, {s(S_T2)}
    v_lshl_add_u32 {v(V_C)}, {v(V_B)}, 4, {v(V_C)}
    v_lshl_add_u32 {v(V_C)}, {v(V_H)}, 10, {v(V_C)}
    v_mov_b32 {v(V_B)}, {OOB}
    v_cndmask_b32 {v(dst)}, {v(V_B)}, {v(V_C)}, vcc""")
A(f"""v_lshrrev_b32 {v(V_A)}, 3, {v(V_LANE)}
v_mul_u32_u24 {v(V_B)}, 3, {v(V_A)}
v_lshrrev_b32 {v(V_B)}, 1, {v(V_B)}
v_add_u32 {v(V_B)}, -2, {v(V_B)}
v_cmp_eq_u32 vcc, 0, {v(V_A)}
v_cndmask_b32 {v(V_B)}, {v(V_B)}, 0, vcc
v_add_u32 {v(V_B)}, {s(S_G)}, {v(V_B)}
v_mov_b32 {v(V_C)}, {s(S_G)}
v_cmp_gt_u32 vcc, 32, {v(V_B)}
v_cndmask_b32 {v(V_B)}, {v(V_C)}, {v(V_B)}, vcc
v_mul_u32_u24 {v(V_B)}, {FLAG_GS}, {v(V_B)}
v_and_b32 {v(V_A)}, 7, {v(V_LANE)}
v_lshl_add_u32 {v(HFL)}, {v(V_A)}, 7, {v(V_B)}""")
V_B3584 = V_WA2
blk_voffset(V_B3584, 3584)
def h_flag():
    A(f"""v_mov_b32 {v(V_B)}, {s(S_LOC)}
    buffer_store_dword {v(V_B)}, {v(V_A)}, {srd(R_WS)}, {s(S_T3)} offen sc1""")
if OPT["fine"] > 1: stamp("h_issued")
flags_cleared(12)
signal_last(SY_CH, F_H, V_A, younger=12, emit=h_flag)
stamp("G_hpub")
if OPT["noG"]:
    A(f"v_mov_b32 {v(V_B)}, 0\nds_write_b32 {v(V_SY)}, {v(V_B)} offset:{SY_LOC}")
    lds_arrive(SY_X1D)
    stamp("G_end", True)
    A("s_endpgm")
lds_wait(SY_ABAR, 8, V_C)
slice_pieces(R_W2, L_S1, [2, 3])
poll_flags(HFL, "0", 24, V_B)
stamp("G_hflags")
lds_arrive(SY_W2)
KB = 32
AM, AO, KA = 88, 104, 120
def ksplit_loads(addr_lo, addr_hi, sbase):
    for i in range(14):
        if i % 2 == 0:
            A(f"s_add_u32 {s(S_T2)}, {s(sbase)}, {2048*i}")
        A(f"buffer_load_dwordx4 {v(KB+4*i,4)}, {v(addr_lo if i < 7 else addr_hi)}, {srd(R_WS)}, {s(S_T2)} offen offset:{2048*(i%2)} sc1")
def ksplit_mm(extra=None):
    A(f"""s_mul_i32 {s(S_T1)}, {s(S_LO)}, {14*2048}
    s_lshl_b32 {s(S_T2)}, {s(S_LO)}, 6
    v_xor_b32 {v(V_A)}, {s(S_T2)}, {v(V_TP)}
    v_xor_b32 {v(V_B)}, 64, {v(V_A)}
    v_add_u32 {v(V_A)}, {s(S_T1)}, {v(V_A)}
    v_add_u32 {v(V_B)}, {s(S_T1)}, {v(V_B)}""")
    def rd(i):
        b = KA + 8 * (i % 2)
        trread(b, V_A, 2048*i); trread(b + 2, V_A, 2048*i + 512)
        trread(b + 4, V_B, 2048*i); trread(b + 6, V_B, 2048*i + 512)
    rd(0)
    young = 0
    for i in range(14):
        if i < 13: rd(i + 1)
        A(f"s_waitcnt vmcnt({13 - i + young}) lgkmcnt({4 if i < 13 else 0})")
        z = "0" if i == 0 else None
        b = KA + 8 * (i % 2)
        mfma(AO, b + 4, KB + 4*i, z); mfma(AM, b, KB + 4*i, z)
        if extra: young += extra(i)
def pair_reduce():
    A(f"""v_add_u32 {v(V_A)}, {s(S_RING)}, {v(V_L16)}
    s_xor_b32 {s(S_T1)}, {s(S_W4)}, 1
    s_mul_i32 {s(S_T2)}, {s(S_T1)}, {RING_B}
    s_add_u32 {s(S_T2)}, {s(S_T2)}, {L_RING}
    v_add_u32 {v(V_B)}, {s(S_T2)}, {v(V_L16)}
    v_lshl_add_u32 {v(V_C)}, {s(S_W4)}, 2, {v(V_SY)}
    v_lshl_add_u32 {v(V_D)}, {s(S_T1)}, 2, {v(V_SY)}""")
    for q in range(4):
        A(f"ds_write_b128 {v(V_A)}, {v(AO+4*q,4)} offset:{1024*q}")
    A(f"""s_mov_b64 exec, 1
    ds_add_u32 {v(V_C)}, {v(V_ONE)} offset:{SY_PF}
    s_mov_b64 exec, -1""")
    lds_wait(SY_PF, 1, V_C, V_D)
    for q in range(4):
        A(f"ds_read_b128 {v(AO+4*q,4)}, {v(V_B)} offset:{1024*q}")
    for q in range(4):
        A(f"s_waitcnt lgkmcnt({3-q})")
        for i in range(4): A(f"v_add_f32 {v(AM+4*q+i)}, {v(AM+4*q+i)}, {v(AO+4*q+i)}")
def decide_local():
    A(f"""s_mov_b64 exec, 0xff
    v_cmp_ne_u32 vcc, {s(S_LOC)}, {v(V_B)}
    s_mov_b64 exec, -1
    s_cmp_eq_u64 vcc, 0
    s_cselect_b32 {s(S_LOC)}, 1, 0
    v_mov_b32 {v(V_B)}, {s(S_LOC)}
    ds_write_b32 {v(V_SY)}, {v(V_B)} offset:{SY_LOC}""")

A(f"s_mul_i32 {s(S_T1)}, {s(S_LO)}, {28*1024}\ns_add_u32 {s(S_T1)}, {s(S_T1)}, {W_GB0 + G_H}")
ksplit_loads(HA, HB_, S_T1)
if OPT["fine"] > 1: stamp("g2_issued")
decide_local()
S_HALF = S_RANK
def dma_block(slot, rsrc, vsrc, half, advance):
    A(f"""s_add_u32 m0, {s(S_RING)}, {2048*slot}
    s_add_u32 {s(S_T5)}, {s(S_SOFF)}, {half}
    buffer_load_dwordx4 {v(vsrc)}, {srd(rsrc)}, {s(S_SOFF)} offen lds
    s_add_u32 m0, m0, 1024
    s_add_u32 {s(S_SOFF)}, {s(S_SOFF)}, {advance}
    buffer_load_dwordx4 {v(vsrc)}, {srd(rsrc)}, {s(S_T5)} offen lds""")
def w3_block(slot): dma_block(slot, R_W3, V_B3584, 8*3584, 16*3584)
A(f"""s_mul_i32 {s(S_RING)}, {s(S_W4)}, {RING_B}
s_add_u32 {s(S_RING)}, {s(S_RING)}, {L_RING}
s_lshl_b32 {s(S_SOFF)}, {s(S_J)}, 2
s_add_u32 {s(S_SOFF)}, {s(S_SOFF)}, {s(S_W4)}
s_lshl_b32 {s(S_SOFF)}, {s(S_SOFF)}, 7""")
lds_wait(SY_W2, 4, V_C)
if OPT["fine"] > 1: stamp("g2_w2ok")
def prefill(i):
    if i >= 8: return 0
    w3_block(4 + i)
    return 2
ksplit_mm(prefill)
if OPT["fine"] > 1: stamp("g2_mm")
pair_reduce()
stamp("G_gemm2")
A(f"v_mul_f32 {v(V_A)}, {v(V_M)}, {v(V_R)}")
for i in range(16): A(f"v_sub_f32 {v(AM+i)}, {v(AM+i)}, {v(V_A)}")
for k in range(8):
    A(f"v_lshlrev_b32 {v(TMP+2*k)}, 16, {v(XC+k)}\nv_and_b32 {v(TMP+2*k+1)}, 0xffff0000, {v(XC+k)}")
for i in range(16): A(f"v_fma_f32 {v(X1+i)}, {v(TMP+i)}, {v(V_R)}, {v(AM+i)}")
pack16(X1, TMP)
packed_to_chunks(TMP)
by_mode(lambda f: store_chunks(TMP, G_X1, f))
A(f"v_add_f32 {v(V_A)}, {v(X1)}, {v(X1+1)}\nv_mul_f32 {v(V_B)}, {v(X1)}, {v(X1)}\nv_mul_f32 {v(V_C)}, {v(X1+1)}, {v(X1+1)}\nv_add_f32 {v(V_D)}, {v(X1+2)}, {v(X1+3)}")
for i in range(2, 16):
    if i >= 4:
        A(f"v_add_f32 {v(V_A if i % 2 == 0 else V_D)}, {v(V_A if i % 2 == 0 else V_D)}, {v(X1+i)}")
    A(f"v_fmac_f32 {v(V_B if i % 2 == 0 else V_C)}, {v(X1+i)}, {v(X1+i)}")
A(f"v_add_f32 {v(V_A)}, {v(V_A)}, {v(V_D)}\nv_add_f32 {v(V_B)}, {v(V_B)}, {v(V_C)}")
V_STA = 26
A(f"""v_lshlrev_b32 {v(V_STA)}, 4, {v(V_T)}
v_lshl_add_u32 {v(V_STA)}, {v(V_H)}, 11, {v(V_STA)}
s_lshr_b32 {s(S_T1)}, {s(S_J)}, 1
s_lshl_b32 {s(S_T1)}, {s(S_T1)}, 9
s_and_b32 {s(S_T2)}, {s(S_J)}, 1
s_lshl_b32 {s(S_T2)}, {s(S_T2)}, 1
s_add_u32 {s(S_T2)}, {s(S_T2)}, {s(S_LO)}
s_lshl_b32 {s(S_T2)}, {s(S_T2)}, 2
s_add_u32 {s(S_T1)}, {s(S_T1)}, {s(S_T2)}
s_lshl_b32 {s(S_T2)}, {s(S_HI)}, 12
s_add_u32 {s(S_T1)}, {s(S_T1)}, {s(S_T2)}
s_add_u32 {s(S_T1)}, {s(S_T1)}, {s(S_GB)}
s_add_u32 {s(S_T1)}, {s(S_T1)}, {G_ST}""")
swap_sum2(V_A, V_B)
by_mode(lambda f: A(f"buffer_store_dword {v(V_A)}, {v(V_STA)}, {srd(R_WS)}, {s(S_T1)} offen {f}"))
signal_last(SY_CX1, F_X1, V_A)
stamp("G_x1pub")
RW, GA, GBf, GACC, GCS = 32, 96, 112, 128, 192
V_TR0, V_TR1 = 27, 28
A(f"""v_add_u32 {v(V_TR0)}, {s(S_RING)}, {v(V_TP)}
v_xor_b32 {v(V_TR1)}, 64, {v(V_TR0)}""")
def blk_reads(dst, slot, second):
    trread(dst, V_TR0, 2048*slot); trread(dst + 2, V_TR0, 2048*slot + second)
    trread(dst + 4, V_TR1, 2048*slot); trread(dst + 6, V_TR1, 2048*slot + second)
def to_regs(slots, second):
    for i, sl in enumerate(slots):
        blk_reads(RW + 8*i, sl, second)
        if i % 2 == 1: A("s_waitcnt lgkmcnt(4)")
    A("s_waitcnt lgkmcnt(0)")
to_regs(range(4, 12), 512)
poll_group(F_X1, 7, V_A, V_B)
stamp("G_x1flags")
STL = 96
A(f"""s_lshl_b32 {s(S_T1)}, {s(S_HI)}, 12
s_lshl_b32 {s(S_T2)}, {s(S_LO)}, 10
s_add_u32 {s(S_T1)}, {s(S_T1)}, {s(S_T2)}
s_add_u32 {s(S_T1)}, {s(S_T1)}, {s(S_GB)}
s_add_u32 {s(S_T1)}, {s(S_T1)}, {G_ST}
buffer_load_dwordx4 {v(STL,4)}, {v(V_STA)}, {srd(R_WS)}, {s(S_T1)} offen sc1
buffer_load_dwordx4 {v(STL+4,4)}, {v(V_STA)}, {srd(R_WS)}, {s(S_T1)} offen offset:512 sc1
s_mul_i32 {s(S_T1)}, {s(S_W4)}, 14336
s_mov_b32 m0, {s(S_T1)}
s_add_u32 {s(S_T1)}, {s(S_T1)}, {s(S_GB)}
s_add_u32 {s(S_T1)}, {s(S_T1)}, {G_X1}""")
for i in range(14):
    A(f"buffer_load_dwordx4 {v(V_L16)}, {srd(R_WS)}, {s(S_T1)} offen offset:{1024*(i%4)} sc1 lds")
    if i % 4 == 3:
        A(f"s_add_u32 m0, m0, 4096\ns_add_u32 {s(S_T1)}, {s(S_T1)}, 4096")
l0 = lab("pq")
A(f"""s_lshl_b32 {s(S_T1)}, {s(S_W4)}, 8
s_add_u32 {s(S_T1)}, {s(S_T1)}, {L_STX}
v_lshl_add_u32 {v(V_A)}, {v(V_LANE)}, 2, {s(S_T1)}
s_waitcnt vmcnt(14)
s_cmp_eq_u32 {s(S_LO)}, 0
s_cbranch_scc1 {l0}
v_mov_b32 {v(STL+6)}, 0
v_mov_b32 {v(STL+7)}, 0
{l0}:""")
for w_ in (4, 2, 1):
    for i in range(w_): A(f"v_add_f32 {v(STL+i)}, {v(STL+i)}, {v(STL+w_+i)}")
A(f"ds_write_b32 {v(V_A)}, {v(STL)}")
lds_wait(SY_ABAR, 16, V_C)
vq = VMQ(); vq.issue("x1", 14)
for i in range(4):
    w3_block(i); vq.issue(("w3", 8 + i), 2)
vq.wait("x1")
lds_arrive(SY_GBAR)
for i in range(4, 12):
    w3_block(i); vq.issue(("w3", 8 + i), 2)
M1, R1, C0R, C1R = (24, 25), (30, 31), (5, 6), (7, 9)
S_HB, S_P = S_PASS, S_NF
A(f"""v_lshlrev_b32 {v(V_A)}, 2, {v(V_LANE)}
v_add_u32 {v(V_A)}, {L_STX}, {v(V_A)}""")
lds_wait(SY_GBAR, 8, V_C)
stamp("G_x1landed")
ST2 = 200
for q in range(4): A(f"ds_read_b32 {v(ST2+q)}, {v(V_A)} offset:{256*q}")
def x1_reads(ks):
    b = GBf + 8*(ks % 2)
    A(f"ds_read_b128 {v(b,4)}, {v(V_CH)} offset:{2048*ks}\nds_read_b128 {v(b+4,4)}, {v(V_CH)} offset:{2048*ks + 512}")
def row_constants():
    for tt in range(2):
        b = ST2 + 2*tt
        A(f"""v_add_f32 {v(b)}, {v(b)}, {v(b+1)}
        v_mul_f32 {v(b)}, {fh(1/448)}, {v(b)}
        v_mov_b32 {v(b+1)}, {v(b)}
        v_permlane32_swap_b32 {v(b)}, {v(b+1)}
        v_mov_b32 {v(M1[tt])}, {v(b)}
        v_fma_f32 {v(b+1)}, -{v(b)}, {v(b)}, {v(b+1)}
        v_max_f32 {v(b+1)}, 0, {v(b+1)}
        v_add_f32 {v(b+1)}, {fh(1e-5)}, {v(b+1)}
        v_rsq_f32 {v(R1[tt])}, {v(b+1)}
        v_mul_f32 {v(C0R[tt])}, {s(S_C0)}, {v(R1[tt])}
        v_mul_f32 {v(b)}, {v(R1[tt])}, {v(R1[tt])}
        v_mul_f32 {v(b)}, {v(b)}, {v(R1[tt])}
        v_mul_f32 {v(C1R[tt])}, {s(S_C1)}, {v(b)}""")
def producer(c, dst):
    A(f"""s_add_u32 {s(dst)}, {s(S_J)}, {(c % 14) // 2}
    s_cmp_ge_u32 {s(dst)}, 7
    s_cselect_b32 {s(S_T4)}, 7, 0
    s_sub_u32 {s(dst)}, {s(dst)}, {s(S_T4)}""")
def w4_block(c):
    if c % 2 == 0:
        producer(c, S_SOFF)
        A(f"s_mul_i32 {s(S_SOFF)}, {s(S_SOFF)}, {256*896}\ns_add_u32 {s(S_SOFF)}, {s(S_SOFF)}, {s(S_CNT)}")
        if c >= 14: A(f"s_add_u32 {s(S_SOFF)}, {s(S_SOFF)}, {32*896}")
    dma_block((20 + c) % 12, R_W4, V_B896, 8*896, 16*896)
    vq.issue(("w4", c), 2)
A(f"""s_mul_i32 {s(S_CNT)}, {s(S_W4)}, {64*896}
s_lshl_b32 {s(S_T1)}, {s(S_J)}, 7
s_add_u32 {s(S_CNT)}, {s(S_CNT)}, {s(S_T1)}""")
x1_reads(0)
for ks in range(28):
    nxt = ks + 1
    n = 0
    if nxt < 28:
        if nxt >= 8:
            vq.wait(("w3", nxt)); blk_reads(GA + 8*(nxt % 2), (nxt - 8) % 12, 512); n += 4
        x1_reads(nxt); n += 2
    A(f"s_waitcnt lgkmcnt({n})")
    a = RW + 8*ks if ks < 8 else GA + 8*(ks % 2)
    b = GBf + 8*(ks % 2)
    z = "0" if ks == 0 else None
    mfma(GACC, a, b, z)
    mfma(GACC + 16, a, b + 4, z)
    if ks >= 8:
        if ks + 12 < 28:
            w3_block((ks - 8) % 12); vq.issue(("w3", ks + 12), 2)
        else:
            w4_block(ks + 12 - 28)
    mfma16(GCS, a, V_SEL, z)
    mfma(GACC + 32, a + 4, b, z)
    mfma(GACC + 48, a + 4, b + 4, z)
    mfma16(GCS + 4, a + 4, V_SEL, z)
    if ks == 1: row_constants()
lds_arrive(SY_X1D)
stamp("G_g3mm")
CSY, GT, HP = 96, 112, 200
HBLK = 4096 + OPT["hpad"]
FSH, FBE = (7, 1024) if OPT["sepflag"] else (2, 128)
A(f"""v_lshlrev_b32 {v(V_A)}, 9, {v(V_H)}
v_sub_u32 {v(V_TR0)}, {v(V_TR0)}, {v(V_A)}
v_xor_b32 {v(V_TR1)}, 64, {v(V_TR0)}
s_mul_i32 {s(S_HB)}, {s(S_W4)}, {2*HBLK}
s_add_u32 {s(S_HB)}, {s(S_HB)}, {s(S_GB)}
s_add_u32 {s(S_HB)}, {s(S_HB)}, {G_HH}
s_mul_i32 {s(S_NN)}, {s(S_W4)}, {2*FBE}
s_add_u32 {s(S_NN)}, {s(S_NN)}, {s(S_FG)}
s_add_u32 {s(S_NN)}, {s(S_NN)}, {F_M}
v_lshlrev_b32 v29, {FSH}, {v(V_LANE)}""")
hp = lambda be, mm: HP + 16*be + 8*mm
def gelu_tile(be, tt):
    acc = GACC + 32*be + 16*tt
    for i in range(16): A(f"v_fma_f32 {v(acc+i)}, -{v(M1[tt])}, {v(CSY+i)}, {v(acc+i)}")
    for i in range(16): A(f"v_mul_f32 {v(GT+i)}, {v(acc+i)}, {v(acc+i)}")
    for i in range(16): A(f"v_fma_f32 {v(GT+i)}, {v(GT+i)}, {v(C1R[tt])}, {v(C0R[tt])}")
    for i in range(16): A(f"v_mul_f32 {v(GT+i)}, {v(GT+i)}, {v(acc+i)}")
    for i in range(16): A(f"v_exp_f32 {v(GT+i)}, {v(GT+i)}")
    for i in range(16): A(f"v_add_f32 {v(GT+i)}, 1.0, {v(GT+i)}")
    for i in range(16): A(f"v_rcp_f32 {v(GT+i)}, {v(GT+i)}")
    for i in range(16): A(f"v_mul_f32 {v(acc+i)}, {v(acc+i)}, {v(GT+i)}")
    for k in range(8): A(f"v_cvt_pk_bf16_f32 {v(hp(be, k // 4) + 4*tt + k % 4)}, {v(acc+2*k)}, {v(acc+2*k+1)}")
def h_stores(be):
    A(f"s_mul_i32 {s(S_T1)}, {s(S_J)}, {8*HBLK}\ns_add_u32 {s(S_T1)}, {s(S_T1)}, {s(S_HB)}")
    if be: A(f"s_add_u32 {s(S_T1)}, {s(S_T1)}, {HBLK}")
    def em(f):
        for mm in range(2):
            for tt in range(2):
                A(f"buffer_store_dwordx4 {v(hp(be, mm) + 4*tt,4)}, {v(V_L16)}, {srd(R_WS)}, {s(S_T1)} offen offset:{2048*mm + 1024*tt} {f}")
    by_mode(em, OPT["hflag"] > 0, "nt" if OPT["hflag"] == 1 else "")
    vq.issue(("st", be), 4)
def m_flag(be):
    vq.wait(("st", be))
    A(f"s_lshl_b32 {s(S_T1)}, {s(S_J)}, {FSH}\nv_mov_b32 {v(V_A)}, {s(S_T1)}\ns_mov_b64 exec, 1")
    by_mode(lambda f: A(f"buffer_store_dword {v(V_ONE)}, {v(V_A)}, {srd(R_WS)}, {s(S_NN)} offen offset:{FBE*be} {f}"), OPT["hflag"] > 0, "")
    exec_all()
    vq.issue(("fl", be))
colsum_spread(GCS, CSY, V_A)
gelu_tile(0, 0); gelu_tile(0, 1)
h_stores(0)
vq.wait(("w4", 7))
to_regs([(20 + c) % 12 for c in range(8)], 1024)
for c in range(12, 20): w4_block(c)
colsum_spread(GCS + 4, CSY, V_A)
m_flag(0)
gelu_tile(1, 0); gelu_tile(1, 1)
stamp("G_gemm3")
poll_flags(29, s(S_NN), 7, V_B)
vq.drained()
stamp("G_m0flags")
free_sets = [112, 120, 192]
pending = list(range(2, 14)) + list(range(16, 28))
bset = {0: hp(0, 0), 1: hp(0, 1), 14: hp(1, 0), 15: hp(1, 1)}
allow = [14]
def b_loads(limit):
    while pending and free_sets and pending[0] <= limit and pending[0] < allow[0]:
        c = pending.pop(0); r_ = free_sets.pop(0); bset[c] = r_
        if c % 2 == 0:
            producer(c, S_P)
            A(f"s_mul_i32 {s(S_P)}, {s(S_P)}, {8*HBLK}\ns_add_u32 {s(S_P)}, {s(S_P)}, {s(S_HB)}")
            if c >= 14: A(f"s_add_u32 {s(S_P)}, {s(S_P)}, {HBLK}")
        for tt in range(2):
            A(f"buffer_load_dwordx4 {v(r_+4*tt,4)}, {v(V_L16)}, {srd(R_WS)}, {s(S_P)} offen offset:{2048*(c % 2) + 1024*tt} sc1")
        vq.issue(("B", c), 2)
b_loads(4)
h_stores(1)
LOOK = 7
for c in range(28):
    nxt = c + 1
    n = 0
    if 8 <= nxt < 28:
        vq.wait(("w4", nxt)); blk_reads(GA + 8*(nxt % 2), (20 + nxt) % 12, 1024); n = 4
    vq.wait(("B", c), extra=f"lgkmcnt({n})" if c >= 8 else "")
    a = RW + 8*c if c < 8 else GA + 8*(c % 2)
    b = bset[c]
    z = "0" if c == 0 else None
    mfma(GACC, a, b, z)
    mfma(GACC + 16, a, b + 4, z)
    if c == 4: m_flag(1)
    if c == 9:
        A(f"s_mov_b64 exec, 0x7f\nbuffer_load_dword {v(V_B)}, v29, {srd(R_WS)}, {s(S_NN)} offen offset:{FBE} sc1\ns_mov_b64 exec, -1")
        vq.issue("chk")
    if c == 11:
        l0 = lab("m1ok")
        vq.wait("chk")
        A(f"""s_mov_b64 exec, 0x7f
        v_cmp_eq_u32 vcc, 0, {v(V_B)}
        s_mov_b64 exec, -1
        s_add_u32 {s(S_T3)}, {s(S_NN)}, {FBE}
        s_cbranch_vccz {l0}""")
        poll_flags(29, s(S_T3), 7, V_B)
        A(f"{l0}:")
        allow[0] = 28
    if 8 <= c < 16: w4_block(c + 12)
    mfma(GACC + 32, a + 4, b, z)
    mfma(GACC + 48, a + 4, b + 4, z)
    if c < 8: free_sets.append(a)
    free_sets.append(b)
    b_loads(c + LOOK)
stamp("G_gemm4")
lbls = [lab("gr") for _ in range(4)]
l_done = lab("grd")
OT4 = 96
A(f"v_add_u32 {v(V_A)}, {s(S_RING)}, {v(V_L16)}\ns_nop 9")
for w_ in range(4):
    A(f"{lbls[w_]}:")
    if w_ < 3:
        A(f"s_cmp_lg_u32 {s(S_W4)}, {w_}\ns_cbranch_scc1 {lbls[w_+1]}")
    tile = lambda u: GACC + 32*(u & 1) + 16*(u >> 1)
    for u in range(4):
        if u == w_: continue
        for k in range(4):
            A(f"ds_write_b128 {v(V_A)}, {v(tile(u)+4*k,4)} offset:{4096*u + 1024*k}")
    for i in range(16): A(f"v_mov_b32 {v(OT4+i)}, {v(tile(w_)+i)}")
    A(f"v_mov_b32 {v(V_D)}, {v(R1[w_ >> 1])}")
    if w_ < 3: A(f"s_branch {l_done}")
A(f"{l_done}:")
lds_arrive(SY_GBAR)
for u in range(1, 4):
    A(f"""s_add_u32 {s(S_T1)}, {s(S_W4)}, {u}
    s_and_b32 {s(S_T1)}, {s(S_T1)}, 3
    s_mul_i32 {s(S_T1)}, {s(S_T1)}, {RING_B}
    s_lshl_b32 {s(S_T2)}, {s(S_W4)}, 12
    s_add_u32 {s(S_T1)}, {s(S_T1)}, {s(S_T2)}
    s_add_u32 {s(S_T1)}, {s(S_T1)}, {L_RING}
    v_add_u32 {v(23+u)}, {s(S_T1)}, {v(V_L16)}""")
XU = 112
for k in range(8):
    A(f"v_lshlrev_b32 {v(XU+2*k)}, 16, {v(XC+k)}\nv_and_b32 {v(XU+2*k+1)}, 0xffff0000, {v(XC+k)}")
lds_wait(SY_GBAR, 12, V_C)
for u in range(3):
    for k in range(4):
        A(f"ds_read_b128 {v(32+16*u+4*k,4)}, {v(24+u)} offset:{1024*k}")
for u in range(3):
    for k in range(4):
        A(f"s_waitcnt lgkmcnt({11 - 4*u - k})")
        for i in range(4): A(f"v_add_f32 {v(OT4+4*k+i)}, {v(OT4+4*k+i)}, {v(32+16*u+4*k+i)}")
GT2 = 144
for i in range(16): A(f"v_fma_f32 {v(X1+i)}, {v(OT4+i)}, {v(V_D)}, {v(X1+i)}")
for i in range(16): A(f"v_mul_f32 {v(GT2+i)}, {fh(-LOG2E)}, {v(X1+i)}")
for i in range(16): A(f"v_exp_f32 {v(GT2+i)}, {v(GT2+i)}")
for i in range(16): A(f"v_add_f32 {v(GT2+i)}, 1.0, {v(GT2+i)}")
for i in range(16): A(f"v_rcp_f32 {v(GT2+i)}, {v(GT2+i)}")
for i in range(16): A(f"v_mul_f32 {v(X1+i)}, {v(X1+i)}, {v(GT2+i)}")
stamp("G_gate")
A(f"""s_lshl_b32 {s(S_T1)}, {s(S_W4)}, 13
v_add_u32 {v(V_A)}, {s(S_T1)}, {v(V_L16)}
v_mul_u32_u24 {v(V_B)}, 896, {v(V_T)}
v_lshl_add_u32 {v(V_B)}, {v(V_H)}, 4, {v(V_B)}
s_lshl_b32 {s(S_T1)}, {s(S_G)}, 1
s_add_u32 {s(S_T1)}, {s(S_T1)}, {s(S_HI)}
s_mul_i32 {s(S_T1)}, {s(S_T1)}, {32*896}
s_lshl_b32 {s(S_T2)}, {s(S_J)}, 1
s_add_u32 {s(S_T2)}, {s(S_T2)}, {s(S_LO)}
s_lshl_b32 {s(S_T2)}, {s(S_T2)}, 6
s_add_u32 {s(S_T1)}, {s(S_T1)}, {s(S_T2)}""")
lds_wait(SY_S, 4, V_C)
stamp("G_sready")
for q in range(4):
    A(f"ds_read_b128 {v(32+4*q,4)}, {v(V_A)} offset:{1024*q}\nds_read_b128 {v(48+4*q,4)}, {v(V_A)} offset:{4096 + 1024*q}")
for q in range(4):
    A(f"s_waitcnt lgkmcnt({6 - 2*q})")
    for i in range(4): A(f"v_add_f32 {v(32+4*q+i)}, {v(32+4*q+i)}, {v(48+4*q+i)}")
    for i in range(4): A(f"v_fma_f32 {v(X1+4*q+i)}, {v(X1+4*q+i)}, {v(32+4*q+i)}, {v(XU+4*q+i)}")
pack16(X1, GT2)
packed_to_chunks(GT2)
A(f"""buffer_store_dwordx4 {v(GT2,4)}, {v(V_B)}, {srd(R_OUT)}, {s(S_T1)} offen nt
buffer_store_dwordx4 {v(GT2+4,4)}, {v(V_B)}, {srd(R_OUT)}, {s(S_T1)} offen offset:32 nt""")
stamp("G_end", True)
A("s_endpgm")
STAMPS_G = list(STAMPS)

A(f"""L_g_kv:
s_mul_i32 {s(S_T1)}, {s(S_LO)}, 25088
s_add_u32 {s(S_T1)}, {s(S_T1)}, {L_S1}
v_add_u32 {v(V_WA)}, {s(S_T1)}, {v(V_WA2)}
s_lshl_b32 {s(S_N0)}, {s(S_G)}, 1
s_add_u32 {s(S_N0)}, {s(S_N0)}, {s(S_HI)}
s_lshl_b32 {s(S_N0)}, {s(S_N0)}, 12
s_add_u32 {s(S_N0)}, {s(S_N0)}, {W_KV}
s_cmp_eq_u32 {s(S_LO)}, 1
s_cbranch_scc1 L_g_v""")
phaseA1("K")
colsum_spread(CS4, CSX, V_A)
center_scale(ACC, CSX, V_R)
zero_pad_dims(ACC)
pack16(ACC, TMP)
exec_hi()
A(f"v_mov_b32 {v(TMP+6)}, {ONES}\nv_mov_b32 {v(TMP+7)}, 0x3f80")
exec_all()
A(f"""buffer_store_dwordx4 {v(TMP,4)}, {v(V_L16)}, {srd(R_WS)}, {s(S_N0)} offen sc1
buffer_store_dwordx4 {v(TMP+4,4)}, {v(V_L16)}, {srd(R_WS)}, {s(S_N0)} offen offset:1024 sc1""")
norm2(ACC, V_A, V_B)
for sh in (1, 2, 4, 8):
    A(f"v_max_f32_dpp {v(V_A)}, {v(V_A)}, {v(V_A)} row_shr:{sh} row_mask:0xf bank_mask:0xf")
A(f"""s_mov_b64 exec, 0x80008000
ds_max_u32 {v(V_SY)}, {v(V_A)} offset:{SY_KMAX}
s_mov_b64 exec, -1
s_branch L_g_kvpub
L_g_v:""")
phaseA1("V")
A(f"""v_mul_f32 {v(V_A)}, {v(V_M)}, {v(V_R)}
v_cmp_eq_u32 vcc, 0, {v(V_H)}
s_lshl_b32 {s(S_T1)}, {s(S_HI)}, 8
s_add_u32 {s(S_T1)}, {s(S_T1)}, {L_VST}
v_lshl_add_u32 {v(V_B)}, {v(V_LANE)}, 2, {s(S_T1)}
v_cndmask_b32 {v(V_A)}, {v(V_A)}, {v(V_R)}, vcc
ds_write_b32 {v(V_B)}, {v(V_A)}
v_lshl_add_u32 {v(V_B)}, {v(V_H)}, 4, {s(S_T1)}""")
for jj in range(4):
    A(f"ds_read_b128 {v(CSX+4*jj,4)}, {v(V_B)} offset:{32*jj}")
    A(f"ds_read_b128 {v(TMP+4*jj,4)}, {v(V_B)} offset:{128 + 32*jj}")
A(f"""v_and_b32 {v(V_A)}, 16, {v(V_LANE)}
v_cmp_eq_u32 vcc, 0, {v(V_A)}
v_cndmask_b32 {v(V_A)}, {v(CS4+1)}, {v(CS4)}, vcc
s_waitcnt lgkmcnt(0)""")
for i in range(16): A(f"v_mul_f32 {v(TMP+i)}, {v(TMP+i)}, {v(V_A)}")
for i in range(16): A(f"v_fma_f32 {v(ACC+i)}, {v(ACC+i)}, {v(CSX+i)}, -{v(TMP+i)}")
pack16(ACC, TMP)
A(f"v_cmp_eq_u32 vcc, 28, {v(V_T)}\nv_mov_b32 {v(V_A)}, {ONES}")
for k in range(8): A(f"v_cndmask_b32 {v(TMP+k)}, {v(TMP+k)}, {v(V_A)}, vcc")
A(f"""buffer_store_dwordx4 {v(TMP,4)}, {v(V_L16)}, {srd(R_WS)}, {s(S_N0)} offen offset:2048 sc1
buffer_store_dwordx4 {v(TMP+4,4)}, {v(V_L16)}, {srd(R_WS)}, {s(S_N0)} offen offset:3072 sc1
L_g_kvpub:""")
nstamp[0] = 2; stamp("kv_stored")
lds_arrive(SY_GBAR)
flags_cleared()
def kv_flags():
    A(f"""ds_read_b32 {v(V_C)}, {v(V_SY)} offset:{SY_KMAX}
    s_waitcnt lgkmcnt(0)
    v_or_b32 {v(V_C)}, 1, {v(V_C)}
    buffer_store_dword {v(V_C)}, {v(V_A)}, {srd(R_WS)}, {s(S_T3)} offen offset:{F_KV - F_H - 7*128} sc1""")
    h_flag()
signal_last(SY_CH, F_H, V_A, emit=kv_flags)
stamp("kv_pub")
A(f"s_lshl_b32 {s(S_T0)}, {s(S_G)}, 2\ns_add_u32 {s(S_T0)}, {s(S_T0)}, {s(S_W4)}")
for r_, n_ in ((R_W3, 1605632), (R_W4, 1605632), (R_WO, 401408)):
    touch(r_, n_, 128, S_T0)
if OPT["l2pf"]:
    A(f"""s_and_b32 {s(S_T0)}, {s(S_G)}, 3
    s_lshl_b32 {s(S_T0)}, {s(S_T0)}, 2
    s_add_u32 {s(S_T0)}, {s(S_T0)}, {s(S_W4)}""")
    for r_, n_ in ((R_W3, 1605632), (R_W4, 1605632), (R_WO, 401408))[:OPT["l2pf"]]:
        touch(r_, n_, 16, S_T0, throttle=1)
stamp("kv_touched")
poll_group(F_H, 8, V_A, V_B)
decide_local()
lds_arrive(SY_X1D)
nstamp[0] = len(STAMPS_G) - 1
stamp("G_end", True)
A("s_endpgm")

nstamp[0] = 1
del STAMPS[1:]
A(f"""L_role_A:
s_cmp_eq_u32 {s(S_KV)}, 1
s_cbranch_scc1 L_a_kvcopy
""")
slice_pieces(R_W1, L_S1, range(14))
A(f"""s_branch L_a_copied
L_a_kvcopy:
s_mov_b32 {s(R_STR+2)}, 25088""")
for st in range(3):
    for q in range(4):
        A(f"""s_add_u32 {s(S_T1)}, {s(S_W4)}, {4*q}
        s_min_u32 {s(S_T1)}, {s(S_T1)}, 13
        s_cmp_ge_u32 {s(S_T1)}, 7
        s_cselect_b64 {s(R_STR,2)}, {s(R_WV,2)}, {s(R_WK,2)}
        s_cselect_b32 {s(S_T2)}, 7, 0
        s_cselect_b32 {s(S_T3)}, 25088, 0
        s_sub_u32 {s(S_T1)}, {s(S_T1)}, {s(S_T2)}
        s_lshl_b32 {s(S_T1)}, {s(S_T1)}, 10
        s_add_u32 {s(S_T1)}, {s(S_T1)}, {7168*st}
        s_add_u32 {s(S_T3)}, {s(S_T3)}, {s(S_T1)}
        s_add_u32 m0, {s(S_T3)}, {L_S1}
        s_nop 0
        buffer_load_dwordx4 {v(V_L16)}, {srd(R_STR)}, {s(S_T1)} offen lds""")
A(f"""s_lshl_b32 {s(S_T1)}, {s(S_W4)}, 10
s_add_u32 {s(S_T1)}, {s(S_T1)}, 21504
s_add_u32 m0, {s(S_T1)}, {L_S1}
s_cmp_eq_u32 {s(S_W4)}, 3
s_cselect_b32 exec_hi, 0, -1
buffer_load_dwordx4 {v(V_L16)}, {srd(R_WK)}, {s(S_T1)} offen lds
s_add_u32 m0, m0, 25088
s_nop 0
buffer_load_dwordx4 {v(V_L16)}, {srd(R_WV)}, {s(S_T1)} offen lds
s_mov_b32 exec_hi, -1
L_a_copied:
s_waitcnt vmcnt(14)
s_barrier""")
stamp("x_landed")
A(f"""v_lshl_add_u32 v25, {s(S_W4)}, 6, {v(V_LANE)}
s_mul_i32 {s(S_RING)}, {s(S_KV)}, {50176 - 8192}
s_add_u32 {s(S_RING)}, {s(S_RING)}, {L_WQ6}""")
pattern(24, 25)
A("v_add_u32 v25, 256, v25")
pattern(25, 25)
A(f"s_add_u32 {s(S_T0)}, {s(S_W4)}, 4\ns_cmp_eq_u32 {s(S_W4)}, 3\ns_cbranch_scc1 L_a_wq3")
def wq_copy(two):
    ents = [(p, u) for u in range(7) for p in range(2)]
    cuts = [0, 5, 7, 9, 11, 14]
    done = 0
    for b in range(5):
        for p, u in ents[cuts[b]:cuts[b+1]]:
            if p == 1 and not two: continue
            dma_rows(R_WQ, 24 + p, S_T0 if p else S_W4, [(u, L_S2 + 7168*u if u < 6 else s(S_RING))])
            done += 1
        if b < 4:
            A(f"s_waitcnt vmcnt({[10, 6, 2, 0][b] + done})\ns_barrier")
            if b == 0:
                common_addresses()
                A(f"""v_lshlrev_b32 {v(V_D)}, 1, {v(V_H)}
                v_lshl_add_u32 {v(V_D)}, {v(V_A)}, 2, {v(V_D)}
                v_mul_u32_u24 {v(V_WA)}, 112, {v(V_D)}
                v_add_u32 {v(V_WA)}, {v(V_WA)}, {v(V_B)}
                v_cmp_le_u32 vcc, 56, {v(V_B)}
                s_lshl_b32 {s(S_T2)}, {s(S_LO)}, 5
                v_mov_b32 {v(V_A)}, {s(S_T2)}
                v_cndmask_b32 {v(V_A)}, 0, {v(V_A)}, vcc
                v_sub_u32 {v(V_WA)}, {v(V_WA)}, {v(V_A)}
                s_mul_i32 {s(S_T1)}, {s(S_LO)}, 56
                s_add_u32 {s(S_T2)}, {s(S_T1)}, {s(S_RING)}
                v_add_u32 {v(V_WA2)}, {s(S_T2)}, {v(V_WA)}
                s_add_u32 {s(S_T2)}, {s(S_T1)}, {L_S2}
                v_add_u32 {v(V_WA)}, {s(S_T2)}, {v(V_WA)}""")
            if b == 1: stats_final()
wq_copy(True)
A("s_branch L_a_wqdone\nL_a_wq3:")
wq_copy(False)
A("L_a_wqdone:")
for i in range(8):
    A(f"ds_read_b128 {v(BF+4*i,4)}, {v(V_XB)} offset:{32*i}")
A("s_waitcnt vmcnt(0)")
lds_arrive(SY_ABAR)
lds_wait(SY_ABAR, 4, V_C)
stamp("A_wq")
tile_steps("Q", False)
lds_arrive(SY_ABAR)
stamp("A_qgemm")
colsum_spread(CS4, CSX, V_A)
lds_wait(SY_GBAR, 4, V_C)
lds_wait(SY_ABAR, 8, V_C)
A(f"v_mul_f32 {v(V_RR)}, {fh(28 ** -0.5 * LOG2E)}, {v(V_R)}")
center_scale(ACC, CSX, V_RR)
zero_pad_dims(ACC)
pack16(ACC, TMP + 16)
norm2(ACC, V_A, V_B)
A(f"""s_lshl_b32 {s(S_T1)}, {s(S_W4)}, 7
s_add_u32 {s(S_T1)}, {s(S_T1)}, {L_QN}
v_lshl_add_u32 {v(V_B)}, {v(V_T)}, 2, {s(S_T1)}
ds_write_b32 {v(V_B)}, {v(V_A)}
s_mul_i32 {s(S_T1)}, {s(S_W4)}, {RING_B}
s_add_u32 {s(S_T1)}, {s(S_T1)}, {L_RING + 4096}
v_add_u32 {v(V_B)}, {s(S_T1)}, {v(V_L16)}
ds_write_b128 {v(V_B)}, {v(TMP+16,4)}
ds_write_b128 {v(V_B)}, {v(TMP+20,4)} offset:1024""")
lds_arrive(SY_ABAR)
QF, OA, SS, EE, PP, KV = 32, 64, 128, 160, 168, 176
A(f"""v_add_u32 {v(V_A)}, {s(S_XCD)}, {v(V_LANE)}
v_and_b32 {v(V_A)}, 7, {v(V_A)}
v_lshl_add_u32 {v(V_A)}, {v(V_A)}, 2, {s(S_W4)}
v_mul_u32_u24 {v(V_A)}, {FLAG_GS}, {v(V_A)}
s_mov_b32 {s(S_T3)}, {F_KV}
s_lshl_b32 {s(S_N0)}, {s(S_W4)}, 13
s_add_u32 {s(S_N0)}, {s(S_N0)}, {W_KV}""")
lds_wait(SY_CH, 4, V_C)
stamp("A_w2")
poll_flags(V_A, s(S_T3), 8, V_B)
stamp("A_kvflags")
def tile_soff(dst, d, ii):
    A(f"""s_add_u32 {s(dst)}, {s(S_XCD)}, {d}
    s_and_b32 {s(dst)}, {s(dst)}, 7
    s_lshl_b32 {s(dst)}, {s(dst)}, 15
    s_add_u32 {s(dst)}, {s(dst)}, {s(S_N0)}""")
    if ii: A(f"s_add_u32 {s(dst)}, {s(dst)}, 4096")
def ldK(set_, soff):
    if OPT["ldprio"]: A("s_setprio 3")
    ldK_(set_, soff)
    if OPT["ldprio"]: A(f"s_setprio {OPT['aprio']}")
def ldV(set_, soff):
    if OPT["ldprio"]: A("s_setprio 3")
    ldV_(set_, soff)
    if OPT["ldprio"]: A(f"s_setprio {OPT['aprio']}")
def ldK_(set_, soff):
    for m in range(2): A(f"buffer_load_dwordx4 {v(KV+16*set_+4*m,4)}, {v(V_L16)}, {srd(R_WS)}, {s(soff)} offen offset:{1024*m} sc1")
def ldV_(set_, soff):
    for m in range(2): A(f"buffer_load_dwordx4 {v(KV+16*set_+8+4*m,4)}, {v(V_L16)}, {srd(R_WS)}, {s(soff)} offen offset:{2048+1024*m} sc1")
def first_tiles(ns=(0, 1)):
    for n in ns:
        tile_soff(S_T1, n >> 1, n & 1)
        ldK(n, S_T1); ldV(n, S_T1)
first_tiles()
for sh in (1, 2, 4):
    A(f"v_max_f32_dpp {v(V_B)}, {v(V_B)}, {v(V_B)} row_shr:{sh} row_mask:0xf bank_mask:0xf")
A(f"v_readlane_b32 {s(S_KMAX)}, {v(V_B)}, 7")
lds_wait(SY_ABAR, 12, V_C)
A(f"v_add_u32 {v(V_B)}, {L_RING + 4096}, {v(V_L16)}\nv_add_u32 {v(V_D)}, {L_RING + 4096 + 2*RING_B}, {v(V_L16)}")
for q in range(4):
    r_ = V_B if q < 2 else V_D
    A(f"ds_read_b128 {v(QF+8*q,4)}, {v(r_)} offset:{RING_B*(q%2)}\nds_read_b128 {v(QF+8*q+4,4)}, {v(r_)} offset:{RING_B*(q%2)+1024}")
A(f"""v_lshlrev_b32 {v(V_B)}, 3, {v(V_LANE)}
v_add_u32 {v(V_B)}, {L_QN}, {v(V_B)}
ds_read_b64 v[24:25], {v(V_B)}
s_mov_b32 {s(S_PASS)}, 20
s_waitcnt lgkmcnt(0)
v_max_f32 v24, v24, v25
v_mul_f32 v24, {s(S_KMAX)}, v24
v_cmp_nge_f32 vcc, {fh(-1.0 if OPT['force_slow'] else 1600.0)}, v24
s_cmp_lg_u64 vcc, 0
s_cselect_b32 {s(S_T1)}, 1, 0
v_mov_b32 v24, {s(S_T1)}
s_mov_b64 exec, 1
ds_add_u32 {v(V_SY)}, v24 offset:{SY_BAD}
ds_add_u32 {v(V_SY)}, {v(V_ONE)} offset:{SY_ABAR}
s_mov_b64 exec, -1
L_attn:""")
for i in range(64): A(f"v_mov_b32 {v(OA+i)}, 0")
def qk(n, m):
    t_, q = (n // 4) % 4, n % 4
    mfma(SS + 16*(n % 2), KV + 16*t_ + 4*m, QF + 8*q + 4*m, "0" if m == 0 else None)
def pv(n, m):
    t_, q = (n // 4) % 4, n % 4
    mfma(OA + 16*q, KV + 16*t_ + 8 + 4*m, PP + 4*m)
def exps(n, qq):
    for i in range(4): A(f"v_exp_f32 {v(EE + 4*(qq % 2) + i)}, {v(SS + 16*(n % 2) + 4*qq + i)}")
def cvts(qq):
    e = EE + 4*(qq % 2)
    A(f"v_cvt_pk_bf16_f32 {v(PP+2*qq)}, {v(e)}, {v(e+1)}\nv_cvt_pk_bf16_f32 {v(PP+2*qq+1)}, {v(e+2)}, {v(e+3)}")
def slot_q12(n, first=False):
    if n % 4 == 3: A("s_waitcnt vmcnt(10)")
    qk(n + 1, 0)
    if n % 4 == 3: ldK((n // 4) % 4, S_T1 + ((n // 4) % 2))
    if not first: cvts(3)
    exps(n, 0)
    if not first: pv(n - 1, 1)
    cvts(0)
    exps(n, 1)
def slot_q34(n):
    qk(n + 1, 1)
    if n % 4 == 0 and n > 0: ldV(((n // 4) - 1) % 4, S_T1 + (((n // 4) - 1) % 2))
    cvts(1)
    exps(n, 2)
    if n % 4 == 0: A(f"s_waitcnt vmcnt(12)")
    pv(n, 0)
    cvts(2)
    exps(n, 3)
if OPT["fine"] > 1: stamp("a_q")
A("s_waitcnt vmcnt(4)")
if OPT["fine"] > 1: stamp("a_k0")
qk(0, 0); qk(0, 1)
first_tiles((2,))
slot_q12(0, first=True)
A(f"s_mov_b32 {s(S_CNT)}, 2")
A(".p2align 6\nL_att_loop:")
qk(1, 1)
l0 = lab("nov")
l1 = lab("v3")
A(f"s_cmp_eq_u32 {s(S_CNT)}, 2\ns_cbranch_scc0 {l1}")
tile_soff(S_T2, 1, 1)
ldK(3, S_T2)
A(f"{l1}:")
ldV(3, S_T2)
cvts(1); exps(0, 2)
A("s_waitcnt vmcnt(12)")
pv(0, 0); cvts(2); exps(0, 3)
def next_pair():
    A(f"""s_add_u32 {s(S_T1)}, {s(S_XCD)}, {s(S_CNT)}
    s_and_b32 {s(S_T1)}, {s(S_T1)}, 7
    s_lshl_b32 {s(S_T1)}, {s(S_T1)}, 15
    s_add_u32 {s(S_T1)}, {s(S_T1)}, {s(S_N0)}
    s_cmp_ge_u32 {s(S_CNT)}, 8
    s_cselect_b32 {s(S_T1)}, {OOB}, {s(S_T1)}
    s_add_u32 {s(S_T3)}, {s(S_T1)}, 4096
    s_add_u32 {s(S_CNT)}, {s(S_CNT)}, 1""")
for n in range(1, 16):
    if n in (2, 10): next_pair()
    if n in (5, 13): A(f"s_mov_b32 {s(S_T2)}, {s(S_T3)}")
    slot_q12(n); slot_q34(n)
    if OPT["fine"] > 2 and n in (3, 7, 11):
        A(f"s_lshl_b32 {s(S_T5)}, {s(S_CNT)}, 1")
        stamp_dyn(40 - 6 + (n == 7), S_T5)
slot_q12(16)
stamp_dyn(28, S_CNT)
A(f"s_cmp_lt_u32 {s(S_CNT)}, {4 if OPT['noA'] else 10}\ns_cbranch_scc1 L_att_loop")
stamp("A_attn")
lds_wait(SY_X1D, 4, V_C, nap=True)
if OPT["fine"] > 1: stamp("a_gok")
lbls = [lab("red") for _ in range(4)]
l_done = lab("redd")
OT = 128
for a_ in range(4):
    A(f"{lbls[a_]}:")
    if a_ < 3:
        A(f"s_cmp_lg_u32 {s(S_W4)}, {a_}\ns_cbranch_scc1 {lbls[a_+1]}")
    for q in range(4):
        if q == a_: continue
        slot = q * 3 + (a_ if a_ < q else a_ - 1)
        for k in range(4):
            A(f"ds_write_b128 {v(V_L16)}, {v(OA+16*q+4*k,4)} offset:{4096*slot + 1024*k}")
    for i in range(16): A(f"v_mov_b32 {v(OT+i)}, {v(OA+16*a_+i)}")
    if a_ < 3: A(f"s_branch {l_done}")
A(f"{l_done}:")
lds_arrive(SY_ABAR)
A(f"s_mul_i32 {s(S_T1)}, {s(S_W4)}, 12288\nv_add_u32 {v(V_A)}, {s(S_T1)}, {v(V_L16)}")
lds_wait(SY_ABAR, s(S_PASS), V_C)
A(f"ds_read_b64 v[24:25], {v(V_SY)} offset:{SY_BAD}")
for k in range(12):
    A(f"ds_read_b128 {v(OA+4*k,4)}, {v(V_A)} offset:{1024*k}")
A(f"""s_waitcnt lgkmcnt(12)
v_readfirstlane_b32 {s(S_T1)}, v24
v_readfirstlane_b32 {s(S_LOC)}, v25
s_cmp_eq_u32 {s(S_PASS)}, 20
s_cselect_b32 {s(S_T1)}, {s(S_T1)}, 0
s_cmp_lg_u32 {s(S_T1)}, 0
s_cbranch_scc1 L_slow""")
for k in range(12):
    A(f"s_waitcnt lgkmcnt({11-k})")
    for i in range(4): A(f"v_add_f32 {v(OT+4*(k%4)+i)}, {v(OT+4*(k%4)+i)}, {v(OA+4*k+i)}")
A(f"""v_mov_b32 {v(V_A)}, {v(OT+12)}
v_mov_b32 {v(V_B)}, {v(OT+12)}
v_permlane32_swap_b32 {v(V_A)}, {v(V_B)}
v_rcp_f32 {v(V_B)}, {v(V_B)}""")
for i in range(16): A(f"v_mul_f32 {v(OT+i)}, {v(OT+i)}, {v(V_B)}")
pack16(OT, OA)
A(f"""s_mul_i32 {s(S_T1)}, {s(S_LO)}, 7
v_add_u32 {v(V_A)}, {s(S_T1)}, {v(V_H)}
v_lshrrev_b32 {v(V_B)}, 1, {v(V_A)}
v_and_b32 {v(V_A)}, 1, {v(V_A)}
v_lshlrev_b32 {v(V_B)}, 10, {v(V_B)}
v_lshl_add_u32 {v(V_B)}, {v(V_A)}, 3, {v(V_B)}
v_lshl_add_u32 {v(V_B)}, {v(V_T)}, 4, {v(V_B)}
s_mul_i32 {s(S_T1)}, {s(S_J)}, 7168
s_lshl_b32 {s(S_T2)}, {s(S_HI)}, 9
s_add_u32 {s(S_T1)}, {s(S_T1)}, {s(S_T2)}
s_add_u32 {s(S_T1)}, {s(S_T1)}, {s(S_GB)}
s_add_u32 {s(S_T1)}, {s(S_T1)}, {G_O}""")
def o_stores(f):
    for jj in range(4):
        if jj == 3: exec_lo()
        A(f"buffer_store_dwordx2 {v(OA+2*jj,2)}, {v(V_B)}, {srd(R_WS)}, {s(S_T1)} offen offset:{1024*jj} {f}")
    exec_all()
if OPT["fine"] > 1: stamp("a_red")
by_mode(o_stores)
lds_arrive(SY_AB2)
signal_last(SY_CO, F_O, V_A)
stamp("A_opub")
A(f"s_cmp_eq_u32 {s(S_KV)}, 1\ns_cbranch_scc1 L_a_end")
lds_wait(SY_AB2, 4, V_C)
slice_pieces(R_WO, L_S1, range(14))
A(f"""v_bfe_u32 {v(V_A)}, {v(V_LANE)}, 2, 2
v_lshl_add_u32 {v(V_D)}, {v(V_H)}, 3, {v(V_A)}
v_and_b32 {v(V_B)}, 3, {v(V_LANE)}
v_lshlrev_b32 {v(V_B)}, 3, {v(V_B)}
v_lshl_add_u32 {v(V_TP)}, {v(V_D)}, 7, {v(V_B)}
v_lshlrev_b32 {v(V_A)}, 5, {v(V_A)}
v_and_b32 {v(V_A)}, 64, {v(V_A)}
v_lshlrev_b32 {v(V_B)}, 1, {v(V_LANE)}
v_and_b32 {v(V_B)}, 32, {v(V_B)}
v_add3_u32 {v(V_TP)}, {v(V_TP)}, {v(V_A)}, {v(V_B)}
v_lshlrev_b32 {v(V_CH)}, 4, {v(V_T)}
v_lshl_add_u32 {v(V_CH)}, {v(V_H)}, 10, {v(V_CH)}""")
poll_group(F_O, 8, V_A, V_B)
stamp("A_oflags")
lds_arrive(SY_AB2)
A(f"""s_mul_i32 {s(S_T1)}, {s(S_LO)}, {28*1024}
s_lshl_b32 {s(S_T2)}, {s(S_HI)}, 9
s_add_u32 {s(S_T1)}, {s(S_T1)}, {s(S_T2)}
s_add_u32 {s(S_T1)}, {s(S_T1)}, {s(S_GB)}
s_add_u32 {s(S_T1)}, {s(S_T1)}, {G_O}""")
ksplit_loads(V_CH, V_CH, S_T1)
lds_wait(SY_AB2, 8, V_C)
if OPT["fine"] > 1:
    stamp("o_wo"); A("s_waitcnt vmcnt(0)"); stamp("o_all")
ksplit_mm()
lds_arrive(SY_AB2)
A(f"""s_lshl_b32 {s(S_T1)}, {s(S_W4)}, 13
s_lshl_b32 {s(S_T2)}, {s(S_LO)}, 12
s_add_u32 {s(S_T1)}, {s(S_T1)}, {s(S_T2)}
v_add_u32 {v(V_A)}, {s(S_T1)}, {v(V_L16)}
v_xor_b32 {v(V_B)}, 8192, {v(V_A)}""")
lds_wait(SY_AB2, 12, V_C)
for q in range(4):
    A(f"ds_write_b128 {v(V_A)}, {v(AM+4*q,4)} offset:{1024*q}\nds_write_b128 {v(V_B)}, {v(AO+4*q,4)} offset:{1024*q}")
lds_arrive(SY_S)
A("L_a_end:")
stamp("A_end", True)
A("s_endpgm")

MXR = 24
A(f"""L_slow:
s_waitcnt vmcnt(0) lgkmcnt(0)
s_mov_b32 {s(S_CNT)}, 0""")
for q in range(4): A(f"v_mov_b32 {v(MXR+q)}, 0xff800000")
A("L_slow_loop:")
A(f"""s_lshr_b32 {s(S_T2)}, {s(S_CNT)}, 1
s_add_u32 {s(S_T1)}, {s(S_XCD)}, {s(S_T2)}
s_and_b32 {s(S_T1)}, {s(S_T1)}, 7
s_lshl_b32 {s(S_T1)}, {s(S_T1)}, 15
s_add_u32 {s(S_T1)}, {s(S_T1)}, {s(S_N0)}
s_and_b32 {s(S_T2)}, {s(S_CNT)}, 1
s_lshl_b32 {s(S_T2)}, {s(S_T2)}, 12
s_add_u32 {s(S_T1)}, {s(S_T1)}, {s(S_T2)}""")
for m in range(2): A(f"buffer_load_dwordx4 {v(OA+4*m,4)}, {v(V_L16)}, {srd(R_WS)}, {s(S_T1)} offen offset:{1024*m} sc1")
A("s_waitcnt vmcnt(0)")
for q in range(4):
    mfma(SS, OA, QF + 8*q, "0"); mfma(SS, OA + 4, QF + 8*q + 4)
    for i in range(8): A(f"v_max3_f32 {v(MXR+q)}, {v(SS+2*i)}, {v(SS+2*i+1)}, {v(MXR+q)}")
A(f"""s_add_u32 {s(S_CNT)}, {s(S_CNT)}, 1
s_cmp_lt_u32 {s(S_CNT)}, 16
s_cbranch_scc1 L_slow_loop
s_lshl_b32 {s(S_T1)}, {s(S_W4)}, 9
s_add_u32 {s(S_T1)}, {s(S_T1)}, {L_MX}
v_lshl_add_u32 {v(V_A)}, {v(V_T)}, 2, {s(S_T1)}""")
for q in range(4):
    A(f"""v_mov_b32 {v(V_B)}, {v(MXR+q)}
    v_permlane32_swap_b32 {v(MXR+q)}, {v(V_B)}
    v_max_f32 {v(MXR+q)}, {v(MXR+q)}, {v(V_B)}
    ds_write_b32 {v(V_A)}, {v(MXR+q)} offset:{128*q}""")
lds_arrive(SY_ABAR)
first_tiles()
lds_wait(SY_ABAR, 24, V_C)
A(f"v_lshlrev_b32 {v(V_A)}, 2, {v(V_T)}\nv_add_u32 {v(V_A)}, {L_MX}, {v(V_A)}")
for q in range(4):
    for w_ in range(4): A(f"ds_read_b32 {v(SS+4*q+w_)}, {v(V_A)} offset:{512*w_ + 128*q}")
    A("s_waitcnt lgkmcnt(0)")
exec_hi()
for q in range(4):
    b = SS + 4*q
    A(f"""v_max3_f32 {v(b)}, {v(b)}, {v(b+1)}, {v(b+2)}
    v_max_f32 {v(b)}, {v(b)}, {v(b+3)}
    v_sub_f32 {v(b)}, 0, {v(b)}
    v_and_b32 {v(b+1)}, 0xffff0000, {v(b)}
    v_sub_f32 {v(b)}, {v(b)}, {v(b+1)}
    v_and_b32 {v(b+2)}, 0xffff0000, {v(b)}
    v_sub_f32 {v(b)}, {v(b)}, {v(b+2)}
    v_lshrrev_b32 {v(b+1)}, 16, {v(b+1)}
    v_or_b32 {v(QF+8*q+6)}, {v(b+1)}, {v(b+2)}
    v_lshrrev_b32 {v(QF+8*q+7)}, 16, {v(b)}""")
exec_all()
A(f"s_mov_b32 {s(S_PASS)}, 28\ns_branch L_attn")
A("L_END:\ns_endpgm\nL_CODE_END:")

body = A.finalize()
hdr = open("recurrent_scan__grouped_kv_mqa__mixer_s_mlp__prompt.s.ref").read().split("; Override")[0]
LAUNCH = "; @launch grid=(256,1,1) block=(512,1,1) lds=163840"
EXTRA_CODE = EXTRA_KD = ""
if OPT["probe"] >= 0:
    LAUNCH = f"; @launch kernel={KNAME} grid=(256,1,1) block=(512,1,1) lds=163840\n; @launch kernel=probe_kernel grid=(1,1,1) block=(64,1,1) lds=0"
    lo, hi = OPT["plo"], OPT["phi"]
    ld = "\n".join(f"""v_add_u32 v2, {i*64*2048}, v1
    buffer_load_dword v{4+2*i}, v2, s[8:11], 0 offen offset:{4*lo} sc1
    buffer_load_dword v{5+2*i}, v2, s[8:11], 0 offen offset:{4*hi} sc1""" for i in range(4))
    red = "\n".join(f"""v_readlane_b32 s14, v4, {l}
    v_readlane_b32 s15, v5, {l}
    s_nop 1
    s_min_u32 s12, s12, s14
    s_max_u32 s13, s13, s15""" for l in range(64))
    EXTRA_CODE = f"""
.p2align 8
.type probe_kernel,@function
probe_kernel:
    s_cmp_ge_u32 s2, 1
    s_cbranch_scc1 P_END
    s_load_dwordx2 s[8:9], s[0:1], 96
    s_mov_b32 s10, {WS_USED}
    s_mov_b32 s11, 0x20000
    v_lshlrev_b32 v1, 11, v0
    v_add_u32 v1, {W_STAMP + 256*OPT["pwave"]}, v1
    s_waitcnt lgkmcnt(0)
    {ld}
    s_waitcnt vmcnt(0)
    v_min_u32 v4, v4, v6
    v_min_u32 v8, v8, v10
    v_min_u32 v4, v4, v8
    v_max_u32 v5, v5, v7
    v_max_u32 v9, v9, v11
    v_max_u32 v5, v5, v9
    s_mov_b32 s12, -1
    s_mov_b32 s13, 0
    s_nop 1
    {red}
    s_sub_u32 s12, s13, s12
    s_min_u32 s12, s12, 20000
    s_mul_i32 s12, s12, {OPT["probe"]}
    s_memrealtime s[16:17]
    s_waitcnt lgkmcnt(0)
P_SPIN:
    s_memrealtime s[18:19]
    s_waitcnt lgkmcnt(0)
    s_sub_u32 s14, s18, s16
    s_cmp_lt_u32 s14, s12
    s_cbranch_scc1 P_SPIN
P_END:
    s_endpgm
"""
    EXTRA_KD = """
.p2align 6
.amdhsa_kernel probe_kernel
  .amdhsa_next_free_vgpr 16
  .amdhsa_next_free_sgpr 32
  .amdhsa_accum_offset 16
  .amdhsa_group_segment_fixed_size 0
  .amdhsa_kernarg_size 104
  .amdhsa_user_sgpr_count 2
  .amdhsa_user_sgpr_kernarg_segment_ptr 1
  .amdhsa_system_sgpr_workgroup_id_x 1
.end_amdhsa_kernel
"""
out = hdr + f"""{LAUNCH}
.amdgcn_target "amdgcn-amd-amdhsa--gfx950"
.text
.globl {KNAME}
.p2align 8
.type {KNAME},@function
{KNAME}:
{body}{EXTRA_CODE}
.section .rodata,"a"
.p2align 6
.amdhsa_kernel {KNAME}
  .amdhsa_next_free_vgpr 256
  .amdhsa_next_free_sgpr 96
  .amdhsa_accum_offset 256
  .amdhsa_group_segment_fixed_size 0
  .amdhsa_kernarg_size 104
  .amdhsa_user_sgpr_count 2
  .amdhsa_user_sgpr_kernarg_segment_ptr 1
  .amdhsa_system_sgpr_workgroup_id_x 1
.end_amdhsa_kernel{EXTRA_KD}
"""
open(sys.argv[1], "w").write(out)
if OPT["stamp"]:
    import json
    json.dump({"G": STAMPS_G, "A": STAMPS}, open(sys.argv[1] + ".stamps.json", "w"))
```

```python
import sys, struct
from asmlib import Asm, v, s

OPT = dict(stamp=0, force_slow=0, noG=0, noA=0, prio=2, local=1, touch=1, codepf=1, plocal=0, fine=0, nop=0, norefill=0, l2pf=0, nap=0, ldprio=1, aprio=0, hflag=1, hpad=0, sepflag=0, dbgout=0, probe=-1, plo=62, phi=63, pwave=4, tlb=1, tailprio=3, mall=0, thr=1, rot=1, ringlate=1, g4st=0, look=7, atouch=1, chk1=12, p3=2, pg=2, p4=2, now3=0, notail=0, nob=0)
for a_ in sys.argv[2:]:
    k_, x_ = a_.split("="); OPT[k_] = int(x_)

KNAME = "recurrent_scan__grouped_kv_mqa__mixer_s_mlp__prompt_kernel"
def f2u(x): return struct.unpack("<I", struct.pack("<f", x))[0]
def fh(x): return hex(f2u(x))
LOG2E = 1.4426950408889634
ONES = 0x3F803F80
OOB = 0x40000000
SPIN = 400000

W_KV = 0x80000
W_GB0, W_GBS = 0x100000, 0x80000
G_H, G_X1, G_O, G_ST, G_HH = 0x0, 0xE000, 0x1C000, 0x2A000, 0x2C000
FLAG_GS = 0x3000
F_H, F_X1, F_M, F_O, F_KV = 0x0, 0x400, 0x1000 if OPT['sepflag'] else 0x800, 0xC00, 0x800 if OPT['sepflag'] else 0x1000
W_CS = 0x70000
W_STAMP = 0x1500000
WS_USED = 0x1600000

L_S1 = 0
L_X = 57344
L_S2 = L_X + 58368
L_MISC = L_S2 + 43008
L_WQ6 = L_S1 + 8192
L_RING = L_X
RING_B = 24576
L_STATP = L_MISC
L_STX = L_STATP
L_QN = L_MISC + 1024
L_VST = L_QN + 512
L_SYNC = L_VST + 512
L_CS = L_SYNC + 128
L_MX = L_MISC + 3072
assert L_MX + 2048 <= 163840 and L_RING + 4 * RING_B <= L_MISC and L_CS + 896 <= L_MX
SY_GBAR, SY_ABAR, SY_CX1, SY_CP, SY_CO, SY_CH, SY_BAD, SY_LOC, SY_PF, SY_KMAX, SY_W2, SY_S, SY_AB2, SY_X1D = 0, 4, 8, 12, 16, 20, 24, 28, 32, 48, 52, 56, 60, 64

S_WAVE, S_G, S_J, S_XCD = 3, 4, 5, 6
R_X, R_WQ, R_WO, R_W1, R_W2, R_W3, R_W4, R_OUT, R_DBG, R_WS, R_WK, R_WV, R_STR = 8, 12, 16, 20, 24, 28, 32, 36, 40, 44, 48, 52, 56
S_GB = 60
S_W4 = 61
S_HI, S_LO = 62, 63
S_T0, S_T1, S_T2, S_T3, S_T4, S_T5 = 64, 65, 66, 67, 68, 69
S_SPIN = 70
S_KMAX = 71
S_SOFF, S_STRIDE, S_RING = 72, 73, 74
S_CNT, S_PASS, S_NF, S_NN, S_N0 = 75, 76, 77, 78, 79
S_FG, S_KV, S_LOC, S_RANK = 80, 81, 82, 83
S_TS = 84
S_C0, S_C1 = 86, 87
S_TOUCH = 90
srd = lambda r: s(r, 4)

V_LANE, V_L16, V_T, V_H = 1, 2, 3, 4
V_M, V_R, V_RR = 5, 6, 7
V_XB, V_WA, V_WA2, V_PAT, V_TRB = 8, 9, 10, 11, 12
V_A, V_B, V_C, V_D = 13, 14, 15, 16
V_ONE, V_SY = 17, 18
V_SEL = 20
V_DBG = 30
V_TCH = 31

A = Asm()
uid = [0]
def lab(p):
    uid[0] += 1
    return f"L_{p}_{uid[0]}"

nstamp = [0]
STAMPS = []
def stamp(name, last=False):
    if not OPT["stamp"]:
        return
    i = nstamp[0]; nstamp[0] += 1
    STAMPS.append(name)
    A(f"""s_memtime {s(S_TS,2)}
    s_memrealtime s[92:93]
    s_waitcnt lgkmcnt(0)
    v_writelane_b32 v0, {s(S_TS)}, {i}""")
    if not OPT["fine"]: A(f"v_writelane_b32 v0, s92, {32 + i}")
    if last:
        A(f"""s_memrealtime {s(S_TS,2)}
        s_lshl_b32 {s(S_T5)}, s2, 3
        s_add_u32 {s(S_T5)}, {s(S_T5)}, {s(S_WAVE)}
        s_lshl_b32 {s(S_T5)}, {s(S_T5)}, 8
        s_add_u32 {s(S_T5)}, {s(S_T5)}, {W_STAMP}
        s_waitcnt lgkmcnt(0)
        v_writelane_b32 v0, {s(S_TS)}, 63
        v_lshlrev_b32 v13, 2, {v(V_LANE)}
        buffer_store_dword v0, v13, {srd(R_WS)}, {s(S_T5)} offen""")
        if OPT["dbgout"]:
            l0 = lab("dbo")
            A(f"""v_readlane_b32 {s(S_T4)}, v0, 62
            s_sub_u32 {s(S_T4)}, 0, {s(S_T4)}
            v_mov_b32 v14, {s(S_TS)}
            v_mov_b32 v15, {s(S_T4)}
            v_mov_b32 v16, 0
            s_mov_b64 exec, 1
            buffer_atomic_umax v14, v16, {srd(R_DBG)}, 0 offen sc1
            buffer_atomic_umax v15, v16, {srd(R_DBG)}, 0 offen offset:4 sc1
            s_mov_b64 exec, -1
            s_lshl_b32 {s(S_T4)}, s2, 3
            s_add_u32 {s(S_T4)}, {s(S_T4)}, {s(S_WAVE)}
            s_cmp_eq_u32 {s(S_T4)}, {OPT["dbgout"]}
            s_cbranch_scc0 {l0}
            v_readlane_b32 {s(S_T4)}, v0, 0
            v_subrev_u32 v14, {s(S_T4)}, v0
            s_mov_b64 exec, 0x7ffe
            buffer_store_dword v14, v13, {srd(R_DBG)}, 0 offen offset:4 sc1
            s_mov_b64 exec, -1
            {l0}:""")
def stamp_dyn(base, sreg):
    if OPT["stamp"] and OPT["fine"]:
        A(f"""s_memtime {s(S_TS,2)}
        s_add_u32 m0, {s(sreg)}, {base}
        s_waitcnt lgkmcnt(0)
        v_writelane_b32 v0, {s(S_TS)}, m0""")
def stamp_rt0():
    if OPT["stamp"]:
        A(f"v_mov_b32 v0, 0\ns_memrealtime {s(S_TS,2)}\ns_waitcnt lgkmcnt(0)\nv_writelane_b32 v0, {s(S_TS)}, 62")

def exec_lo(): A("s_mov_b32 exec_lo, -1\ns_mov_b32 exec_hi, 0")
def exec_hi(): A("s_mov_b32 exec_lo, 0\ns_mov_b32 exec_hi, -1")
def exec_all(): A("s_mov_b64 exec, -1")

def poll_flags(vaddr, soff, nlanes, vdst):
    l0 = lab("poll")
    A(f"""s_mov_b64 exec, {hex((1 << nlanes) - 1)}
    s_mov_b32 {s(S_SPIN)}, 0
    {l0}:
    buffer_load_dword {v(vdst)}, {v(vaddr)}, {srd(R_WS)}, {soff} offen sc1
    s_add_u32 {s(S_SPIN)}, {s(S_SPIN)}, 1
    s_cmp_gt_u32 {s(S_SPIN)}, {SPIN}
    s_cbranch_scc1 L_END
    s_waitcnt vmcnt(0)
    v_cmp_ne_u32 vcc, 0, {v(vdst)}
    s_cmp_eq_u64 vcc, exec
    s_cbranch_scc1 {l0}_ok
    {"s_sleep 4" if OPT["nap"] & 4 else ""}
    s_branch {l0}
    {l0}_ok:
    s_mov_b64 exec, -1""")

def lds_arrive(word):
    A(f"""s_mov_b64 exec, 1
    ds_add_u32 {v(V_SY)}, {v(V_ONE)} offset:{word}
    s_mov_b64 exec, -1""")

def lds_wait(word, target, vtmp, vaddr=V_SY, nap=False):
    l0 = lab("lw")
    A(f"""s_mov_b32 {s(S_SPIN)}, 0
    {l0}:
    {"s_sleep 1" if (OPT["nap"] & 1 and nap) or OPT["nap"] & 2 else ""}
    ds_read_b32 {v(vtmp)}, {v(vaddr)} offset:{word}
    s_add_u32 {s(S_SPIN)}, {s(S_SPIN)}, 1
    s_cmp_gt_u32 {s(S_SPIN)}, {SPIN*8}
    s_cbranch_scc1 L_END
    s_waitcnt lgkmcnt(0)
    v_readfirstlane_b32 {s(S_T4)}, {v(vtmp)}
    s_cmp_ge_u32 {s(S_T4)}, {target}
    s_cbranch_scc0 {l0}""")

def by_mode(emit, local_ok=True, local_flag="nt"):
    if not (OPT["local"] and local_ok):
        emit("sc1"); return
    l0, l1 = lab("far"), lab("md")
    A(f"s_cmp_eq_u32 {s(S_LOC)}, 0\ns_cbranch_scc1 {l0}")
    emit(local_flag)
    A(f"s_branch {l1}\n{l0}:")
    emit("sc1")
    A(f"{l1}:")

def signal_last(word, flagbase, vtmp, local_ok=True, younger=0, emit=None):
    l0 = lab("sig")
    A(f"""s_waitcnt vmcnt({younger})
    s_mov_b64 exec, 1
    ds_add_rtn_u32 {v(vtmp)}, {v(V_SY)}, {v(V_ONE)} offset:{word}
    s_lshl_b32 {s(S_T3)}, {s(S_J)}, 7
    s_add_u32 {s(S_T3)}, {s(S_T3)}, {s(S_FG)}
    s_add_u32 {s(S_T3)}, {s(S_T3)}, {flagbase}
    s_waitcnt lgkmcnt(0)
    v_readfirstlane_b32 {s(S_T4)}, {v(vtmp)}
    v_mov_b32 {v(vtmp)}, 0
    s_cmp_eq_u32 {s(S_T4)}, 3
    s_cbranch_scc0 {l0}""")
    if emit: emit()
    else: by_mode(lambda f: A(f"buffer_store_dword {v(V_ONE)}, {v(vtmp)}, {srd(R_WS)}, {s(S_T3)} offen {f}"), local_ok, "")
    A(f"{l0}:\ns_mov_b64 exec, -1")

def poll_group(flagbase, n, vtmp, vtmp2):
    A(f"""s_add_u32 {s(S_T3)}, {s(S_FG)}, {flagbase}
    v_lshlrev_b32 {v(vtmp)}, 7, {v(V_LANE)}""")
    poll_flags(vtmp, s(S_T3), n, vtmp2)

def mfma(d, a, b, c=None):
    A(f"v_mfma_f32_32x32x16_bf16 {v(d,16)}, {v(a,4)}, {v(b,4)}, {v(d,16) if c is None else c}")
def mfma16(d, a, b, c=None):
    A(f"v_mfma_f32_16x16x32_bf16 {v(d,4)}, {v(a,4)}, {v(b,4)}, {v(d,4) if c is None else c}")
def trread(d, addr, off):
    A(f"ds_read_b64_tr_b16 {v(d,2)}, {v(addr)} offset:{off}")

def gelu16(src, n, t0):
    for i in range(n): A(f"v_mul_f32 {v(t0+i)}, {v(src+i)}, {v(src+i)}")
    for i in range(n): A(f"v_fma_f32 {v(t0+i)}, {v(t0+i)}, {s(S_C1)}, {v(V_D)}")
    for i in range(n): A(f"v_mul_f32 {v(t0+i)}, {v(t0+i)}, {v(src+i)}")
    for i in range(n): A(f"v_exp_f32 {v(t0+i)}, {v(t0+i)}")
    for i in range(n): A(f"v_add_f32 {v(t0+i)}, 1.0, {v(t0+i)}")
    for i in range(n): A(f"v_rcp_f32 {v(t0+i)}, {v(t0+i)}")
    for i in range(n): A(f"v_mul_f32 {v(src+i)}, {v(src+i)}, {v(t0+i)}")

def colsum_spread(cs4, dst16, vtmp):
    A(f"""s_lshl_b32 {s(S_T4)}, {s(S_WAVE)}, 7
    s_add_u32 {s(S_T4)}, {s(S_T4)}, {L_CS}
    v_and_b32 {v(vtmp)}, 15, {v(V_LANE)}
    v_cmp_gt_u32 vcc, 2, {v(vtmp)}
    v_lshlrev_b32 {v(vtmp)}, 6, {v(vtmp)}
    v_and_b32 {v(vtmp+1)}, 48, {v(V_LANE)}
    v_add3_u32 {v(vtmp)}, {v(vtmp)}, {v(vtmp+1)}, {s(S_T4)}
    s_mov_b64 exec, vcc
    ds_write_b128 {v(vtmp)}, {v(cs4,4)}
    s_mov_b64 exec, -1
    v_lshl_add_u32 {v(vtmp)}, {v(V_H)}, 4, {s(S_T4)}""")
    for jj in range(4):
        A(f"ds_read_b128 {v(dst16+4*jj,4)}, {v(vtmp)} offset:{32*jj}")
    A("s_waitcnt lgkmcnt(0)")

def swap_sum2(a, b):
    A(f"v_permlane32_swap_b32 {v(a)}, {v(b)}\nv_add_f32 {v(a)}, {v(a)}, {v(b)}")
def both_halves_sum(a, t):
    A(f"v_mov_b32 {v(t)}, {v(a)}\nv_permlane32_swap_b32 {v(a)}, {v(t)}\nv_add_f32 {v(a)}, {v(a)}, {v(t)}")

def pattern(dst, vslot):
    A(f"""v_mul_u32_u24 {v(V_A)}, 9363, {v(vslot)}
    v_lshrrev_b32 {v(V_A)}, 16, {v(V_A)}
    v_mul_u32_u24 {v(V_B)}, 7, {v(V_A)}
    v_sub_u32 {v(V_B)}, {v(vslot)}, {v(V_B)}
    v_and_b32 {v(V_C)}, 3, {v(V_A)}
    v_bfe_u32 {v(V_D)}, {v(V_A)}, 2, 2
    v_and_b32 {v(V_A)}, 48, {v(V_A)}
    v_lshl_add_u32 {v(V_A)}, {v(V_C)}, 2, {v(V_A)}
    v_add_u32 {v(V_A)}, {v(V_A)}, {v(V_D)}
    v_mul_u32_u24 {v(V_A)}, 896, {v(V_A)}
    v_lshl_add_u32 {v(dst)}, {v(V_B)}, 4, {v(V_A)}
    s_mul_i32 {s(S_T4)}, {s(S_J)}, 112
    v_add_u32 {v(dst)}, {s(S_T4)}, {v(dst)}""")

def dma_rows(rsrc, vpat, spat, chunks):
    A(f"s_lshl_b32 {s(S_T1)}, {s(spat)}, 10")
    for u, lds in chunks:
        A(f"""s_add_u32 m0, {s(S_T1)}, {lds if isinstance(lds, int) else lds}
        s_mov_b32 {s(S_T2)}, {u * 57344}
        buffer_load_dwordx4 {v(vpat)}, {srd(rsrc)}, {s(S_T2)} offen lds""")

def blk_voffset(dst, rowstride):
    A(f"""v_lshrrev_b32 {v(V_A)}, 3, {v(V_LANE)}
    v_lshlrev_b32 {v(V_B)}, 2, {v(V_LANE)}
    v_and_b32 {v(V_B)}, 64, {v(V_B)}
    v_and_b32 {v(V_C)}, 7, {v(V_LANE)}
    v_lshlrev_b32 {v(V_C)}, 4, {v(V_C)}
    v_xor_b32 {v(V_B)}, {v(V_B)}, {v(V_C)}
    v_mul_u32_u24 {v(dst)}, {rowstride}, {v(V_A)}
    v_add_u32 {v(dst)}, {v(dst)}, {v(V_B)}""")

def touch(rsrc, nbytes, shares=32, srank=S_RANK, throttle=None):
    if not OPT["touch"]:
        return 0
    per = -(-(nbytes // 128) // shares)
    n = (per + 63) // 64
    A(f"s_mul_i32 {s(S_T1)}, {s(srank)}, {per * 128}\nv_lshlrev_b32 {v(V_A)}, 7, {v(V_LANE)}")
    for i in range(n):
        rem = per - 64 * i
        if rem < 64:
            A(f"s_mov_b64 exec, {hex((1 << rem) - 1)}" if rem <= 31 else f"s_mov_b32 exec_hi, {hex((1 << (rem - 32)) - 1)}")
        A(f"buffer_load_dword {v(V_TCH)}, {v(V_A)}, {srd(rsrc)}, {s(S_T1)} offen sc1")
        if throttle is not None: A(f"s_waitcnt vmcnt({throttle})")
        if i < n - 1: A(f"s_add_u32 {s(S_T1)}, {s(S_T1)}, 8192")
    exec_all()
    return n


def sweep(rsrc, nbytes, shares, srank, throttle):
    npieces = -(-nbytes // 8192)
    trips = -(-npieces // shares)
    l0 = lab("sw")
    A(f"""v_lshlrev_b32 {v(V_A)}, 7, {v(V_LANE)}
    s_mul_i32 {s(S_T1)}, {s(S_XCD)}, {(npieces // 8) if OPT["rot"] else 0}
    s_add_u32 {s(S_T1)}, {s(S_T1)}, {s(srank)}
    s_mov_b32 {s(S_T2)}, {trips}
    {l0}:
    s_cmp_ge_u32 {s(S_T1)}, {npieces}
    s_cselect_b32 {s(S_T3)}, {npieces}, 0
    s_sub_u32 {s(S_T1)}, {s(S_T1)}, {s(S_T3)}
    s_lshl_b32 {s(S_T3)}, {s(S_T1)}, 13
    buffer_load_dword {v(V_TCH)}, {v(V_A)}, {srd(rsrc)}, {s(S_T3)} offen sc1
    s_add_u32 {s(S_T1)}, {s(S_T1)}, {shares}
    s_sub_u32 {s(S_T2)}, {s(S_T2)}, 1
    s_waitcnt vmcnt({throttle})
    s_cmp_lg_u32 {s(S_T2)}, 0
    s_cbranch_scc1 {l0}""")

class VMQ:
    def __init__(self): self.q = []
    def issue(self, tag, n=1): self.q += [tag] * n
    def wait(self, *tags, extra=""):
        last = max((i for i, t in enumerate(self.q) if t in tags), default=-1)
        if last >= 0:
            n = len(self.q) - 1 - last
            assert n < 64
            A(f"s_waitcnt vmcnt({n}) {extra}".strip())
            self.q = self.q[last + 1:]
        elif extra:
            A(f"s_waitcnt {extra}")
    def drained(self): self.q = []

A(f"""s_cmp_ge_u32 s2, 256
s_cbranch_scc1 L_END
s_load_dwordx16 s[64:79], s[0:1], 0
s_load_dwordx8 s[80:87], s[0:1], 64
s_load_dwordx2 s[88:89], s[0:1], 96
v_and_b32 {v(V_LANE)}, 63, v0
v_lshrrev_b32 {v(V_A)}, 6, v0
v_lshlrev_b32 {v(V_L16)}, 4, {v(V_LANE)}
v_readfirstlane_b32 {s(S_WAVE)}, {v(V_A)}
v_and_b32 {v(V_T)}, 31, {v(V_LANE)}
v_lshrrev_b32 {v(V_H)}, 5, {v(V_LANE)}
s_and_b32 {s(S_XCD)}, s2, 7
s_lshr_b32 s7, s2, 3
s_and_b32 {s(S_J)}, s7, 7
s_lshr_b32 s7, s7, 3
s_lshl_b32 {s(S_G)}, {s(S_XCD)}, 2
s_add_u32 {s(S_G)}, {s(S_G)}, s7
s_mul_i32 {s(S_GB)}, {s(S_G)}, {W_GBS}
s_add_u32 {s(S_GB)}, {s(S_GB)}, {W_GB0}
s_and_b32 {s(S_W4)}, {s(S_WAVE)}, 3
s_lshr_b32 {s(S_HI)}, {s(S_W4)}, 1
s_and_b32 {s(S_LO)}, {s(S_W4)}, 1
s_mov_b32 {s(R_X+2)}, 1835008
s_mov_b32 {s(R_X+3)}, 0x20000
s_lshl_b32 s7, {s(S_G)}, 3
s_add_u32 s7, s7, {s(S_WAVE)}
s_mul_i32 s7, s7, {8*896}
s_mul_i32 m0, {s(S_WAVE)}, {8*912}
s_add_u32 m0, m0, {L_X}
s_mov_b32 exec_hi, 0x00ffffff
s_waitcnt lgkmcnt(0)
s_mov_b64 {s(R_X,2)}, s[64:65]""")
for i in range(8):
    A(f"buffer_load_dwordx4 {v(V_L16)}, {srd(R_X)}, s7 offen lds")
    if i < 7:
        A(f"s_add_u32 m0, m0, 912\ns_add_u32 s7, s7, 896")
exec_all()
kmap = {R_WQ: 66, R_WK: 68, R_WV: 70, R_WO: 72, R_W1: 76, R_W2: 78, R_W3: 80, R_W4: 82, R_OUT: 84, R_DBG: 86, R_WS: 88}
sizes = {R_WQ: 401408, R_WO: 401408, R_W1: 401408, R_W2: 401408, R_W3: 1605632, R_W4: 1605632,
         R_OUT: 1835008, R_DBG: 256, R_WS: WS_USED, R_WK: 25088, R_WV: 25088}
for r_, k_ in kmap.items():
    A(f"s_mov_b64 {s(r_,2)}, {s(k_,2)}\ns_mov_b32 {s(r_+2)}, {sizes[r_]}\ns_mov_b32 {s(r_+3)}, 0x20000")
A(f"s_mov_b64 {s(R_STR,2)}, {s(R_W3,2)}\ns_mov_b32 {s(R_STR+2)}, 1605632\ns_mov_b32 {s(R_STR+3)}, 0x20000")
stamp_rt0()
stamp("start")
V_B896, V_TP = V_PAT, V_TRB
A(f"""s_mul_i32 {s(S_FG)}, {s(S_G)}, {FLAG_GS}
s_cmp_eq_u32 {s(S_J)}, 7
s_cselect_b32 {s(S_KV)}, 1, 0
v_mov_b32 {v(V_ONE)}, 1
v_mov_b32 {v(V_SY)}, {L_SYNC}""")
blk_voffset(V_B896, 896)
def common_addresses():
    A(f"""v_lshl_add_u32 {v(V_XB)}, {s(S_HI)}, 5, {v(V_T)}
    v_mul_u32_u24 {v(V_XB)}, 912, {v(V_XB)}
    v_lshl_add_u32 {v(V_XB)}, {v(V_H)}, 4, {v(V_XB)}
    v_add_u32 {v(V_XB)}, {L_X}, {v(V_XB)}
    v_bfe_u32 {v(V_A)}, {v(V_LANE)}, 2, 2
    v_and_b32 {v(V_B)}, 3, {v(V_LANE)}
    v_bfe_u32 {v(V_C)}, {v(V_LANE)}, 4, 1
    v_lshlrev_b32 {v(V_B)}, 3, {v(V_B)}
    v_lshl_add_u32 {v(V_B)}, {v(V_C)}, 5, {v(V_B)}
    v_and_b32 {v(V_D)}, 1, {v(V_LANE)}
    v_cmp_eq_u32 vcc, {v(V_D)}, {v(V_C)}
    v_mov_b32 {v(V_D)}, {ONES}""")
    for i in range(4):
        A(f"v_cndmask_b32 {v(V_SEL+i)}, 0, {v(V_D)}, vcc")
A(f"s_cmp_ge_u32 {s(S_WAVE)}, 4\ns_cbranch_scc1 L_role_A")

def dma_block(slot, rsrc, vsrc, half, advance):
    A(f"""s_add_u32 m0, {s(S_RING)}, {2048*slot}
    s_add_u32 {s(S_T5)}, {s(S_SOFF)}, {half}
    buffer_load_dwordx4 {v(vsrc)}, {srd(rsrc)}, {s(S_SOFF)} offen lds
    s_add_u32 m0, m0, 1024
    s_add_u32 {s(S_SOFF)}, {s(S_SOFF)}, {advance}
    buffer_load_dwordx4 {v(vsrc)}, {srd(rsrc)}, {s(S_T5)} offen lds""")
V_B3584 = V_WA2
def w3_block(slot):
    if OPT["now3"]: return
    dma_block(slot, R_W3, V_B3584, 8*3584, 16*3584)
def ring_setup():
    A(f"""s_mul_i32 {s(S_RING)}, {s(S_W4)}, {RING_B}
    s_add_u32 {s(S_RING)}, {s(S_RING)}, {L_RING}
    s_lshl_b32 {s(S_SOFF)}, {s(S_J)}, 2
    s_add_u32 {s(S_SOFF)}, {s(S_SOFF)}, {s(S_W4)}
    s_lshl_b32 {s(S_SOFF)}, {s(S_SOFF)}, 7""")
BF, AF, ACC, CS4 = 32, 64, 96, 112
CSX = 120
TMP = 136
STAGES = [(0, 8), (8, 16), (16, 24), (24, 28)]

def stats_read():
    A(f"""v_lshl_add_u32 {v(V_A)}, {s(S_HI)}, 5, {v(V_T)}
    v_lshlrev_b32 {v(V_A)}, 3, {v(V_A)}
    v_add_u32 {v(V_A)}, {L_STATP}, {v(V_A)}
    ds_read_b64 {v(TMP,2)}, {v(V_A)}
    ds_read_b64 {v(TMP+2,2)}, {v(V_A)} offset:512""")
def stats_final(read=True):
    if read:
        stats_read(); A("s_waitcnt lgkmcnt(0)")
    A(f"""v_add_f32 {v(TMP)}, {v(TMP)}, {v(TMP+2)}
    v_add_f32 {v(TMP+1)}, {v(TMP+1)}, {v(TMP+3)}
    v_mul_f32 {v(V_M)}, {fh(1/448)}, {v(TMP)}
    v_mul_f32 {v(TMP+1)}, {fh(1/448)}, {v(TMP+1)}
    v_fma_f32 {v(TMP+1)}, -{v(V_M)}, {v(V_M)}, {v(TMP+1)}
    v_max_f32 {v(TMP+1)}, 0, {v(TMP+1)}
    v_add_f32 {v(TMP+2)}, {fh(1e-5)}, {v(TMP+1)}
    v_rsq_f32 {v(V_R)}, {v(TMP+2)}
    v_mul_f32 {v(TMP+1)}, {v(TMP+1)}, {v(V_R)}
    v_fmaak_f32 {v(TMP+1)}, {v(TMP+1)}, {v(V_R)}, {fh(1e-5)}
    v_rsq_f32 {v(TMP+1)}, {v(TMP+1)}
    v_mul_f32 {v(V_RR)}, {v(V_R)}, {v(TMP+1)}""")

def tile_steps(kind, barriers, hook=None):
    def rd(ks):
        if barriers and ks in (8, 16, 24): A("s_barrier")
        for ii in range(2):
            d = AF + 4*(ks % 8) + 2*ii
            if kind == "W": trread(d, V_WA, 2048*ks + 512*ii)
            elif kind == "Q" and ks < 24: trread(d, V_WA, (16*ks + ii) * 112)
            elif kind == "Q": trread(d, V_WA2, (16*(ks - 24) + ii) * 112)
            else: trread(d, V_WA, (16*ks + 4*ii) * 56)
        if ks >= 8: A(f"ds_read_b128 {v(BF+4*(ks % 8),4)}, {v(V_XB)} offset:{32*ks}")
    cnt = lambda ks: 2 + (ks >= 8)
    ahead = 4
    if barriers: stats_read()
    for ks in range(ahead): rd(ks)
    for ks in range(28):
        if barriers and ks == 2: stats_final(False)
        left = sum(cnt(x) for x in range(ks + 1, min(28, ks + ahead)))
        A(f"s_waitcnt lgkmcnt({left})")
        z = "0" if ks == 0 else None
        a, b = AF + 4*(ks % 8), BF + 4*(ks % 8)
        if kind == "V":
            mfma(ACC, b, a, z); mfma16(CS4, V_SEL, a, z)
        else:
            mfma(ACC, a, b, z); mfma16(CS4, a, V_SEL, z)
        if ks + ahead < 28: rd(ks + ahead)
        if hook: hook(ks)

def phaseA1(kind):
    for i in range(8):
        A(f"ds_read_b128 {v(BF+4*i,4)}, {v(V_XB)} offset:{32*i}")
    A("s_waitcnt lgkmcnt(0)\ns_barrier")
    tile_steps(kind, True)
    A(f"""v_lshlrev_b32 {v(V_A)}, 2, {v(V_T)}
    buffer_load_dword {v(V_DBG)}, {v(V_A)}, {srd(R_DBG)}, 0 offen offset:128 sc1""")

def center_scale(acc, csx, vscale):
    for i in range(16): A(f"v_fma_f32 {v(acc+i)}, -{v(V_M)}, {v(csx+i)}, {v(acc+i)}")
    for i in range(16): A(f"v_mul_f32 {v(acc+i)}, {v(acc+i)}, {v(vscale)}")
def pack16(src, dst):
    for k in range(8): A(f"v_cvt_pk_bf16_f32 {v(dst+k)}, {v(src+2*k)}, {v(src+2*k+1)}")
def zero_pad_dims(acc):
    exec_hi()
    for i in range(12, 16): A(f"v_mov_b32 {v(acc+i)}, 0")
    exec_all()
def norm2(acc, dst, t):
    A(f"v_mul_f32 {v(dst)}, {v(acc)}, {v(acc)}\nv_mul_f32 {v(t)}, {v(acc+1)}, {v(acc+1)}")
    for i in range(2, 16): A(f"v_fmac_f32 {v(dst if i % 2 == 0 else t)}, {v(acc+i)}, {v(acc+i)}")
    A(f"v_add_f32 {v(dst)}, {v(dst)}, {v(t)}")
    both_halves_sum(dst, t)
def flags_cleared(younger=0):
    l0, l1 = lab("dbg"), lab("dbgok")
    A(f"""s_getreg_b32 {s(S_LOC)}, hwreg(HW_REG_XCC_ID)
    s_and_b32 {s(S_LOC)}, {s(S_LOC)}, 15
    s_add_u32 {s(S_LOC)}, {s(S_LOC)}, 1
    v_lshlrev_b32 {v(V_A)}, 2, {v(V_T)}
    s_mov_b32 {s(S_SPIN)}, 0
    s_waitcnt vmcnt({younger})
    {l0}:
    v_cmp_eq_u32 vcc, 0, {v(V_DBG)}
    s_cbranch_vccz {l1}
    buffer_load_dword {v(V_DBG)}, {v(V_A)}, {srd(R_DBG)}, 0 offen offset:128 sc1
    s_waitcnt vmcnt(0)
    s_add_u32 {s(S_SPIN)}, {s(S_SPIN)}, 1
    s_cmp_gt_u32 {s(S_SPIN)}, {SPIN}
    s_cbranch_scc1 L_END
    s_branch {l0}
    {l1}:""")

XC = 232
X1 = 240
if OPT["sepflag"]:
    CLEAR = f"""buffer_store_dword {v(V_B)}, {v(V_A)}, {srd(R_WS)}, {s(S_FG)} offen sc1
    s_add_u32 {s(S_T1)}, {s(S_FG)}, 8192
    s_mov_b32 exec_hi, 0
    buffer_store_dword {v(V_B)}, {v(V_A)}, {srd(R_WS)}, {s(S_T1)} offen sc1
    s_mov_b32 exec_hi, -1"""
else:
    CLEAR = f"""s_mov_b32 exec_hi, 1
    buffer_store_dword {v(V_B)}, {v(V_A)}, {srd(R_WS)}, {s(S_FG)} offen sc1
    s_mov_b32 exec_hi, -1
    v_lshrrev_b32 {v(V_A)}, 3, {v(V_LANE)}
    v_lshlrev_b32 {v(V_A)}, 7, {v(V_A)}
    v_and_b32 {v(V_C)}, 7, {v(V_LANE)}
    v_lshl_add_u32 {v(V_A)}, {v(V_C)}, 2, {v(V_A)}
    buffer_store_dword {v(V_B)}, {v(V_A)}, {srd(R_WS)}, {s(S_FG)} offen offset:{F_M} sc1"""
A(f"""s_setprio {OPT['prio']}
v_mov_b32 {v(V_B)}, 0
s_cmp_eq_u32 {s(S_W4)}, 1
s_cbranch_scc0 L_g_nozero
v_lshl_add_u32 {v(V_A)}, {v(V_T)}, 2, {v(V_SY)}
ds_write_b32 {v(V_A)}, {v(V_B)}
L_g_nozero:
s_lshl_b32 {s(S_T0)}, {s(S_KV)}, 2
s_add_u32 {s(S_T0)}, {s(S_T0)}, {s(S_W4)}
s_cmp_eq_u32 {s(S_T0)}, 4
s_cbranch_scc0 L_g_noclear
v_lshlrev_b32 {v(V_A)}, 7, {v(V_LANE)}
{CLEAR}
L_g_noclear:""")
if OPT["codepf"]:
    A(f"""s_cmp_eq_u32 {s(S_W4)}, 2
    s_cbranch_scc0 L_nocode
    L_pc:
    s_getpc_b64 {s(S_T2,2)}
    s_lshr_b32 {s(S_T1)}, s2, 3
    s_lshl_b32 {s(S_T1)}, {s(S_T1)}, 3
    v_and_b32 {v(V_A)}, 7, {v(V_LANE)}
    v_add_u32 {v(V_A)}, {s(S_T1)}, {v(V_A)}
    v_lshlrev_b32 {v(V_A)}, 7, {v(V_A)}
    v_mov_b32 v25, {s(S_T3)}
    v_add_co_u32 v24, vcc, {s(S_T2)}, {v(V_A)}
    v_addc_co_u32 v25, vcc, 0, v25, vcc
    v_cmp_gt_u32 vcc, L_CODE_END-L_pc-128, {v(V_A)}
    s_and_b64 exec, vcc, 0xff
    s_cbranch_execz L_nocode
    global_load_dword {v(V_TCH)}, v[24:25], off sc1
    L_nocode:
    s_mov_b64 exec, -1""")
if OPT["tlb"]:
    l0 = lab("tlb")
    A(f"""s_cmp_eq_u32 {s(S_W4)}, 3
    s_cbranch_scc0 {l0}
    s_mov_b64 exec, 1
    v_mov_b32 {v(V_A)}, 0
    s_mov_b32 {s(S_T1)}, 0x7ff80
    buffer_load_dword {v(V_TCH)}, {v(V_A)}, {srd(R_WS)}, {s(S_T1)} offen sc1
    s_add_u32 {s(S_T1)}, {s(S_GB)}, {W_GBS - 128}
    buffer_load_dword {v(V_TCH)}, {v(V_A)}, {srd(R_WS)}, {s(S_T1)} offen sc1
    s_mul_i32 {s(S_T1)}, {s(S_G)}, {64*896}
    buffer_load_dword {v(V_TCH)}, {v(V_A)}, {srd(R_OUT)}, {s(S_T1)} offen sc1
    buffer_load_dword {v(V_TCH)}, {v(V_A)}, {srd(R_W2)}, 0 offen
    buffer_load_dword {v(V_TCH)}, {v(V_A)}, {srd(R_W3)}, 0 offen
    buffer_load_dword {v(V_TCH)}, {v(V_A)}, {srd(R_W4)}, 0 offen
    buffer_load_dword {v(V_TCH)}, {v(V_A)}, {srd(R_WO)}, 0 offen
    buffer_load_dword {v(V_TCH)}, {v(V_A)}, {srd(R_DBG)}, 0 offen sc1
    s_mov_b64 exec, -1
    {l0}:""")
common_addresses()
A(f"""v_lshl_add_u32 {v(V_D)}, {v(V_H)}, 3, {v(V_A)}
v_mul_u32_u24 {v(V_WA2)}, 56, {v(V_D)}
v_add_u32 {v(V_WA2)}, {v(V_WA2)}, {v(V_B)}
v_cmp_le_u32 vcc, 56, {v(V_B)}
v_lshl_add_u32 {v(V_TP)}, {v(V_D)}, 7, {v(V_B)}
v_lshlrev_b32 {v(V_A)}, 5, {v(V_A)}
v_and_b32 {v(V_A)}, 64, {v(V_A)}
v_add_u32 {v(V_TP)}, {v(V_TP)}, {v(V_A)}
v_cndmask_b32 {v(V_A)}, 0, 32, vcc
v_sub_u32 {v(V_WA2)}, {v(V_WA2)}, {v(V_A)}
s_lshl_b32 {s(S_T1)}, {s(S_LO)}, 6
v_xor_b32 {v(V_WA)}, {s(S_T1)}, {v(V_TP)}
v_add_u32 {v(V_WA)}, {L_S1}, {v(V_WA)}
s_mul_i32 {s(S_T1)}, {s(S_LO)}, 448
v_add_u32 {v(V_A)}, {s(S_T1)}, {v(V_XB)}
s_mov_b32 {s(S_C0)}, {fh(-2*0.7978845608028654*LOG2E)}
s_mov_b32 {s(S_C1)}, {fh(-2*0.7978845608028654*LOG2E*0.044715)}
s_mov_b32 {s(S_T3)}, {ONES}
v_mov_b32 v24, 0
v_mov_b32 v25, 0
v_mov_b32 v26, 0
v_mov_b32 v27, 0
s_cmp_eq_u32 {s(S_W4)}, 3
s_cbranch_scc0 L_g_wall
s_waitcnt vmcnt({8 if OPT["tlb"] else 0})
s_branch L_g_b1
L_g_wall:
s_waitcnt vmcnt(0) lgkmcnt(0)
s_cmp_eq_u32 {s(S_T0)}, 4
s_cbranch_scc0 L_g_b1
s_lshl_b32 {s(S_T1)}, {s(S_G)}, 2
s_mov_b64 exec, 1
buffer_store_dword {v(V_ONE)}, v24, {srd(R_DBG)}, {s(S_T1)} offen offset:128 sc1
s_mov_b64 exec, -1
L_g_b1:
s_barrier""")
stamp("x_landed")
for i in range(14):
    A(f"ds_read_b128 {v(32+4*i,4)}, {v(V_A)} offset:{32*i}")
for i in range(14):
    A(f"s_waitcnt lgkmcnt({13-i})")
    for d in range(4):
        r_ = 32 + 4*i + d
        A(f"v_dot2_f32_bf16 {v(24+(d&1))}, {v(r_)}, {s(S_T3)}, {v(24+(d&1))}")
        A(f"v_dot2_f32_bf16 {v(26+(d&1))}, {v(r_)}, {v(r_)}, {v(26+(d&1))}")
A(f"""v_lshl_add_u32 {v(V_B)}, {s(S_HI)}, 5, {v(V_T)}
v_lshlrev_b32 {v(V_B)}, 3, {v(V_B)}
v_lshl_add_u32 {v(V_B)}, {v(V_H)}, 2, {v(V_B)}
s_lshl_b32 {s(S_T2)}, {s(S_LO)}, 9
s_add_u32 {s(S_T2)}, {s(S_T2)}, {L_STATP}
v_add_u32 {v(V_B)}, {s(S_T2)}, {v(V_B)}
v_add_f32 v24, v24, v25
v_add_f32 v26, v26, v27""")
swap_sum2(24, 26)
A(f"""ds_write_b32 {v(V_B)}, v24
s_cmp_eq_u32 {s(S_KV)}, 1
s_cbranch_scc1 L_g_kv""")
phaseA1("W")
stamp("G_gemm1")
A(f"""s_lshl_b32 {s(S_T1)}, {s(S_J)}, 1
s_add_u32 {s(S_T1)}, {s(S_T1)}, {s(S_LO)}
s_lshl_b32 {s(S_T2)}, {s(S_T1)}, 6
v_lshlrev_b32 {v(V_A)}, 3, {v(V_H)}
v_sub_u32 {v(V_A)}, {v(V_XB)}, {v(V_A)}
v_add_u32 {v(V_A)}, {s(S_T2)}, {v(V_A)}""")
for jj in range(4): A(f"ds_read_b64 {v(XC+2*jj,2)}, {v(V_A)} offset:{16*jj}")
colsum_spread(CS4, CSX, V_A)
lds_arrive(SY_GBAR)
center_scale(ACC, CSX, V_RR)
A(f"v_mov_b32 {v(V_D)}, {s(S_C0)}")
gelu16(ACC, 16, TMP)
pack16(ACC, TMP)
V_CH = V_XB
A(f"""v_lshlrev_b32 {v(V_CH)}, 4, {v(V_T)}
v_lshl_add_u32 {v(V_CH)}, {v(V_H)}, 10, {v(V_CH)}
s_lshl_b32 {s(S_T1)}, {s(S_T1)}, 12
s_lshl_b32 {s(S_T2)}, {s(S_HI)}, 9
s_add_u32 {s(S_T1)}, {s(S_T1)}, {s(S_T2)}
s_add_u32 {s(S_N0)}, {s(S_T1)}, {s(S_GB)}""")
def store_chunks(src8, region, flag):
    A(f"""s_add_u32 {s(S_T1)}, {s(S_N0)}, {region}
    buffer_store_dwordx4 {v(src8,4)}, {v(V_CH)}, {srd(R_WS)}, {s(S_T1)} offen {flag}
    buffer_store_dwordx4 {v(src8+4,4)}, {v(V_CH)}, {srd(R_WS)}, {s(S_T1)} offen offset:2048 {flag}""")
def packed_to_chunks(p8):
    for a_ in range(2):
        for d in range(2):
            A(f"v_permlane32_swap_b32 {v(p8+4*a_+d)}, {v(p8+4*a_+2+d)}")
packed_to_chunks(TMP)
store_chunks(TMP, G_H, "sc1")
def slice_pieces(rsrc, lds, idx):
    A(f"""s_lshl_b32 {s(S_T0)}, {s(S_W4)}, 10
    s_mul_i32 {s(S_T2)}, {s(S_W4)}, {8*896}
    s_lshl_b32 {s(S_T1)}, {s(S_J)}, 7
    s_add_u32 {s(S_T2)}, {s(S_T2)}, {s(S_T1)}""")
    for i in idx:
        A(f"""s_add_u32 m0, {s(S_T0)}, {lds + 4096*i}
        s_add_u32 {s(S_T1)}, {s(S_T2)}, {32*896*i}
        buffer_load_dwordx4 {v(V_B896)}, {srd(rsrc)}, {s(S_T1)} offen lds""")
HA, HB_, HFL = 24, 25, 26
A(f"""s_lshl_b32 {s(S_T1)}, {s(S_G)}, 6
s_lshl_b32 {s(S_T2)}, {s(S_HI)}, 5
s_add_u32 {s(S_T1)}, {s(S_T1)}, {s(S_T2)}
s_add_u32 {s(S_T2)}, {s(S_LO)}, 1
s_sub_u32 {s(S_T3)}, {s(S_T1)}, {s(S_T2)}
s_add_u32 {s(S_T1)}, {s(S_T1)}, {s(S_T2)}
s_mov_b32 {s(S_T2)}, {W_GBS}""")
for dst, sb in ((HA, S_T3), (HB_, S_T1)):
    A(f"""v_add_u32 {v(V_B)}, {s(sb)}, {v(V_T)}
    v_cmp_gt_u32 vcc, 2048, {v(V_B)}
    v_lshrrev_b32 {v(V_C)}, 6, {v(V_B)}
    v_and_b32 {v(V_B)}, 63, {v(V_B)}
    v_mul_lo_u32 {v(V_C)}, {v(V_C)}, {s(S_T2)}
    v_lshl_add_u32 {v(V_C)}, {v(V_B)}, 4, {v(V_C)}
    v_lshl_add_u32 {v(V_C)}, {v(V_H)}, 10, {v(V_C)}
    v_mov_b32 {v(V_B)}, {OOB}
    v_cndmask_b32 {v(dst)}, {v(V_B)}, {v(V_C)}, vcc""")
A(f"""v_lshrrev_b32 {v(V_A)}, 3, {v(V_LANE)}
v_mul_u32_u24 {v(V_B)}, 3, {v(V_A)}
v_lshrrev_b32 {v(V_B)}, 1, {v(V_B)}
v_add_u32 {v(V_B)}, -2, {v(V_B)}
v_cmp_eq_u32 vcc, 0, {v(V_A)}
v_cndmask_b32 {v(V_B)}, {v(V_B)}, 0, vcc
v_add_u32 {v(V_B)}, {s(S_G)}, {v(V_B)}
v_mov_b32 {v(V_C)}, {s(S_G)}
v_cmp_gt_u32 vcc, 32, {v(V_B)}
v_cndmask_b32 {v(V_B)}, {v(V_C)}, {v(V_B)}, vcc
v_mul_u32_u24 {v(V_B)}, {FLAG_GS}, {v(V_B)}
v_and_b32 {v(V_A)}, 7, {v(V_LANE)}
v_lshl_add_u32 {v(HFL)}, {v(V_A)}, 7, {v(V_B)}""")
blk_voffset(V_B3584, 3584)
def h_flag():
    A(f"""v_mov_b32 {v(V_B)}, {s(S_LOC)}
    buffer_store_dword {v(V_B)}, {v(V_A)}, {srd(R_WS)}, {s(S_T3)} offen sc1""")
flags_cleared()
signal_last(SY_CH, F_H, V_A, emit=h_flag)
stamp("G_hpub")
if OPT["noG"]:
    A(f"v_mov_b32 {v(V_B)}, 0\nds_write_b32 {v(V_SY)}, {v(V_B)} offset:{SY_LOC}")
    lds_arrive(SY_X1D)
    stamp("G_end", True)
    A("s_endpgm")
lds_wait(SY_ABAR, 8, V_C)
slice_pieces(R_W2, L_S1, [2, 3])
ring_setup()
for i in range(8): w3_block(4 + i)
if OPT["fine"] > 1: stamp("r1_issued")
poll_flags(HFL, "0", 24, V_B)
stamp("G_hflags")
lds_arrive(SY_W2)
KB = 32
AM, AO, KA = 88, 104, 120
def ksplit_loads(addr_lo, addr_hi, sbase):
    for i in range(0 if OPT["now3"] > 1 else 14):
        if i % 2 == 0:
            A(f"s_add_u32 {s(S_T2)}, {s(sbase)}, {2048*i}")
        A(f"buffer_load_dwordx4 {v(KB+4*i,4)}, {v(addr_lo if i < 7 else addr_hi)}, {srd(R_WS)}, {s(S_T2)} offen offset:{2048*(i%2)} sc1")
def ksplit_mm(extra=None):
    A(f"""s_mul_i32 {s(S_T1)}, {s(S_LO)}, {14*2048}
    s_lshl_b32 {s(S_T2)}, {s(S_LO)}, 6
    v_xor_b32 {v(V_A)}, {s(S_T2)}, {v(V_TP)}
    v_xor_b32 {v(V_B)}, 64, {v(V_A)}
    v_add_u32 {v(V_A)}, {s(S_T1)}, {v(V_A)}
    v_add_u32 {v(V_B)}, {s(S_T1)}, {v(V_B)}""")
    def rd(i):
        b = KA + 8 * (i % 2)
        trread(b, V_A, 2048*i); trread(b + 2, V_A, 2048*i + 512)
        trread(b + 4, V_B, 2048*i); trread(b + 6, V_B, 2048*i + 512)
    rd(0)
    young = 0
    for i in range(14):
        if i < 13: rd(i + 1)
        A(f"s_waitcnt vmcnt({13 - i + young}) lgkmcnt({4 if i < 13 else 0})")
        z = "0" if i == 0 else None
        b = KA + 8 * (i % 2)
        mfma(AO, b + 4, KB + 4*i, z); mfma(AM, b, KB + 4*i, z)
        if extra: young += extra(i)
def pair_reduce():
    A(f"""v_add_u32 {v(V_A)}, {s(S_RING)}, {v(V_L16)}
    s_xor_b32 {s(S_T1)}, {s(S_W4)}, 1
    s_mul_i32 {s(S_T2)}, {s(S_T1)}, {RING_B}
    s_add_u32 {s(S_T2)}, {s(S_T2)}, {L_RING}
    v_add_u32 {v(V_B)}, {s(S_T2)}, {v(V_L16)}
    v_lshl_add_u32 {v(V_C)}, {s(S_W4)}, 2, {v(V_SY)}
    v_lshl_add_u32 {v(V_D)}, {s(S_T1)}, 2, {v(V_SY)}""")
    for q in range(4):
        A(f"ds_write_b128 {v(V_A)}, {v(AO+4*q,4)} offset:{1024*q}")
    A(f"""s_mov_b64 exec, 1
    ds_add_u32 {v(V_C)}, {v(V_ONE)} offset:{SY_PF}
    s_mov_b64 exec, -1""")
    lds_wait(SY_PF, 1, V_C, V_D)
    for q in range(4):
        A(f"ds_read_b128 {v(AO+4*q,4)}, {v(V_B)} offset:{1024*q}")
    for q in range(4):
        A(f"s_waitcnt lgkmcnt({3-q})")
        for i in range(4): A(f"v_add_f32 {v(AM+4*q+i)}, {v(AM+4*q+i)}, {v(AO+4*q+i)}")
def decide_local():
    A(f"""s_mov_b64 exec, 0xff
    v_cmp_ne_u32 vcc, {s(S_LOC)}, {v(V_B)}
    s_mov_b64 exec, -1
    s_cmp_eq_u64 vcc, 0
    s_cselect_b32 {s(S_LOC)}, 1, 0
    v_mov_b32 {v(V_B)}, {s(S_LOC)}
    ds_write_b32 {v(V_SY)}, {v(V_B)} offset:{SY_LOC}""")

A(f"s_mul_i32 {s(S_T1)}, {s(S_LO)}, {28*1024}\ns_add_u32 {s(S_T1)}, {s(S_T1)}, {W_GB0 + G_H}")
ksplit_loads(HA, HB_, S_T1)
if OPT["fine"] > 1: stamp("g2_issued")
decide_local()
RW, GA, GBf, GACC = 136, 32, 48, 64
V_TR0, V_TR1 = 27, 28
A(f"""v_add_u32 {v(V_TR0)}, {s(S_RING)}, {v(V_TP)}
v_xor_b32 {v(V_TR1)}, 64, {v(V_TR0)}""")
def blk_reads(dst, slot, second):
    trread(dst, V_TR0, 2048*slot); trread(dst + 2, V_TR0, 2048*slot + second)
    trread(dst + 4, V_TR1, 2048*slot); trread(dst + 6, V_TR1, 2048*slot + second)
def to_regs(slots, second):
    for i, sl in enumerate(slots):
        blk_reads(RW + 8*i, sl, second)
        if i % 2 == 1: A("s_waitcnt lgkmcnt(4)")
    A("s_waitcnt lgkmcnt(0)")
lds_wait(SY_W2, 8, V_C)
if OPT["fine"] > 1: stamp("g2_w2ok")
to_regs(range(4, 12), 512)
if OPT["fine"] > 1: stamp("g2_regs")
ksplit_mm()
if OPT["fine"] > 1: stamp("g2_mm")
pair_reduce()
stamp("G_gemm2")
TX = 200
A(f"v_mul_f32 {v(V_A)}, {v(V_M)}, {v(V_R)}")
for i in range(16): A(f"v_sub_f32 {v(AM+i)}, {v(AM+i)}, {v(V_A)}")
for k in range(8):
    A(f"v_lshlrev_b32 {v(TX+2*k)}, 16, {v(XC+k)}\nv_and_b32 {v(TX+2*k+1)}, 0xffff0000, {v(XC+k)}")
for i in range(16): A(f"v_fma_f32 {v(X1+i)}, {v(TX+i)}, {v(V_R)}, {v(AM+i)}")
pack16(X1, TX)
packed_to_chunks(TX)
by_mode(lambda f: store_chunks(TX, G_X1, f))
A(f"v_add_f32 {v(V_A)}, {v(X1)}, {v(X1+1)}\nv_mul_f32 {v(V_B)}, {v(X1)}, {v(X1)}\nv_mul_f32 {v(V_C)}, {v(X1+1)}, {v(X1+1)}\nv_add_f32 {v(V_D)}, {v(X1+2)}, {v(X1+3)}")
for i in range(2, 16):
    if i >= 4:
        A(f"v_add_f32 {v(V_A if i % 2 == 0 else V_D)}, {v(V_A if i % 2 == 0 else V_D)}, {v(X1+i)}")
    A(f"v_fmac_f32 {v(V_B if i % 2 == 0 else V_C)}, {v(X1+i)}, {v(X1+i)}")
A(f"v_add_f32 {v(V_A)}, {v(V_A)}, {v(V_D)}\nv_add_f32 {v(V_B)}, {v(V_B)}, {v(V_C)}")
V_STA = 26
A(f"""v_lshlrev_b32 {v(V_STA)}, 4, {v(V_T)}
v_lshl_add_u32 {v(V_STA)}, {v(V_H)}, 11, {v(V_STA)}
s_lshr_b32 {s(S_T1)}, {s(S_J)}, 1
s_lshl_b32 {s(S_T1)}, {s(S_T1)}, 9
s_and_b32 {s(S_T2)}, {s(S_J)}, 1
s_lshl_b32 {s(S_T2)}, {s(S_T2)}, 1
s_add_u32 {s(S_T2)}, {s(S_T2)}, {s(S_LO)}
s_lshl_b32 {s(S_T2)}, {s(S_T2)}, 2
s_add_u32 {s(S_T1)}, {s(S_T1)}, {s(S_T2)}
s_lshl_b32 {s(S_T2)}, {s(S_HI)}, 12
s_add_u32 {s(S_T1)}, {s(S_T1)}, {s(S_T2)}
s_add_u32 {s(S_T1)}, {s(S_T1)}, {s(S_GB)}
s_add_u32 {s(S_T1)}, {s(S_T1)}, {G_ST}""")
swap_sum2(V_A, V_B)
by_mode(lambda f: A(f"buffer_store_dword {v(V_A)}, {v(V_STA)}, {srd(R_WS)}, {s(S_T1)} offen {f}"))
vq = VMQ()
slot3 = lambda b: (b - 4) % 12
def w3_next(b):
    w3_block(slot3(b)); vq.issue(("w3", b), 2)
for b in (8, 9, 10): w3_next(b)
signal_last(SY_CX1, F_X1, V_A, younger=6)
stamp("G_x1pub")
for b in (11, 12, 13, 14): w3_next(b)
poll_group(F_X1, 7, V_A, V_B)
vq.drained()
stamp("G_x1flags")
STL = 32
A(f"""s_lshl_b32 {s(S_T1)}, {s(S_HI)}, 12
s_lshl_b32 {s(S_T2)}, {s(S_LO)}, 10
s_add_u32 {s(S_T1)}, {s(S_T1)}, {s(S_T2)}
s_add_u32 {s(S_T1)}, {s(S_T1)}, {s(S_GB)}
s_add_u32 {s(S_T1)}, {s(S_T1)}, {G_ST}
buffer_load_dwordx4 {v(STL,4)}, {v(V_STA)}, {srd(R_WS)}, {s(S_T1)} offen sc1
buffer_load_dwordx4 {v(STL+4,4)}, {v(V_STA)}, {srd(R_WS)}, {s(S_T1)} offen offset:512 sc1
s_mul_i32 {s(S_T2)}, {s(S_W4)}, 7168
s_add_u32 {s(S_T3)}, {s(S_T2)}, {s(S_GB)}""")
vq.issue("st", 2)
for hf in range(2):
    for i in range(0 if OPT["now3"] > 1 else 7):
        if i % 4 == 0:
            A(f"s_add_u32 m0, {s(S_T2)}, {28672*hf + 1024*i}\ns_add_u32 {s(S_T1)}, {s(S_T3)}, {G_X1 + 28672*hf + 1024*i}")
        A(f"buffer_load_dwordx4 {v(V_L16)}, {srd(R_WS)}, {s(S_T1)} offen offset:{1024*(i%4)} sc1 lds")
    vq.issue(("x1", hf), 7)
l0 = lab("pq")
A(f"""s_lshl_b32 {s(S_T1)}, {s(S_W4)}, 8
s_add_u32 {s(S_T1)}, {s(S_T1)}, {L_STX}
v_lshl_add_u32 {v(V_A)}, {v(V_LANE)}, 2, {s(S_T1)}""")
vq.wait("st")
A(f"""s_cmp_eq_u32 {s(S_LO)}, 0
s_cbranch_scc1 {l0}
v_mov_b32 {v(STL+6)}, 0
v_mov_b32 {v(STL+7)}, 0
{l0}:""")
for w_ in (4, 2, 1):
    for i in range(w_): A(f"v_add_f32 {v(STL+i)}, {v(STL+i)}, {v(STL+w_+i)}")
A(f"ds_write_b32 {v(V_A)}, {v(STL)}")
vq.wait(("x1", 0))
lds_arrive(SY_GBAR)
S_CS = S_RANK
A(f"""s_lshl_b32 {s(S_CS)}, {s(S_J)}, 2
s_add_u32 {s(S_CS)}, {s(S_CS)}, {s(S_W4)}
s_mul_i32 {s(S_NN)}, {s(S_CS)}, {FLAG_GS}
s_add_u32 {s(S_NN)}, {s(S_NN)}, {F_X1 + 7*128}
s_lshl_b32 {s(S_CS)}, {s(S_CS)}, 8
s_add_u32 {s(S_CS)}, {s(S_CS)}, {W_CS}
v_mov_b32 v29, 0
buffer_load_dword v19, v29, {srd(R_WS)}, {s(S_NN)} offen sc1""")
vq.issue("cschk")
w3_next(15)
lds_wait(SY_ABAR, 16, V_C)
M1, R1, C0R, C1R = (24, 25), (30, 31), (5, 6), (7, 9)
S_HB, S_P = S_PASS, S_NF
A(f"""v_lshlrev_b32 {v(V_A)}, 2, {v(V_LANE)}
v_add_u32 {v(V_A)}, {L_STX}, {v(V_A)}""")
lds_wait(SY_GBAR, 8, V_C)
stamp("G_x1landed")
ST2 = 128
for q in range(4): A(f"ds_read_b32 {v(ST2+q)}, {v(V_A)} offset:{256*q}")
def x1_reads(ks):
    b = GBf + 8*(ks % 2)
    A(f"ds_read_b128 {v(b,4)}, {v(V_CH)} offset:{2048*ks}\nds_read_b128 {v(b+4,4)}, {v(V_CH)} offset:{2048*ks + 512}")
def row_constants():
    for tt in range(2):
        b = ST2 + 2*tt
        A(f"""v_add_f32 {v(b)}, {v(b)}, {v(b+1)}
        v_mul_f32 {v(b)}, {fh(1/448)}, {v(b)}
        v_mov_b32 {v(b+1)}, {v(b)}
        v_permlane32_swap_b32 {v(b)}, {v(b+1)}
        v_mov_b32 {v(M1[tt])}, {v(b)}
        v_fma_f32 {v(b+1)}, -{v(b)}, {v(b)}, {v(b+1)}
        v_max_f32 {v(b+1)}, 0, {v(b+1)}
        v_add_f32 {v(b+1)}, {fh(1e-5)}, {v(b+1)}
        v_rsq_f32 {v(R1[tt])}, {v(b+1)}
        v_mul_f32 {v(C0R[tt])}, {s(S_C0)}, {v(R1[tt])}
        v_mul_f32 {v(b)}, {v(R1[tt])}, {v(R1[tt])}
        v_mul_f32 {v(b)}, {v(b)}, {v(R1[tt])}
        v_mul_f32 {v(C1R[tt])}, {s(S_C1)}, {v(b)}""")
def step_of(c):
    return (c // 2, 0, c % 2) if c < 4 else ((c - 4) // 12, 1 + ((c - 4) % 12) // 2, c % 2)
def producer(d, dst):
    A(f"""s_add_u32 {s(dst)}, {s(S_J)}, {d}
    s_cmp_ge_u32 {s(dst)}, 7
    s_cselect_b32 {s(S_T4)}, 7, 0
    s_sub_u32 {s(dst)}, {s(dst)}, {s(S_T4)}""")
def w4_block(c):
    be, d, mm = step_of(c)
    if mm == 0:
        producer(d, S_SOFF)
        A(f"s_mul_i32 {s(S_SOFF)}, {s(S_SOFF)}, {256*896}\ns_add_u32 {s(S_SOFF)}, {s(S_SOFF)}, {s(S_CNT)}")
        if be: A(f"s_add_u32 {s(S_SOFF)}, {s(S_SOFF)}, {32*896}")
    dma_block(c % 12, R_W4, V_B896, 8*896, 16*896)
    vq.issue(("w4", c), 2)
def check_flags(tag, vreg, vaddr, soff_plus, nlanes):
    l0 = lab("ok")
    vq.wait(tag)
    A(f"""s_mov_b64 exec, {hex((1 << nlanes) - 1)}
    v_cmp_eq_u32 vcc, 0, {v(vreg)}
    s_mov_b64 exec, -1
    s_add_u32 {s(S_T3)}, {s(S_NN)}, {soff_plus}
    s_cbranch_vccz {l0}""")
    poll_flags(vaddr, s(S_T3), nlanes, vreg)
    A(f"{l0}:")
A(f"""s_mul_i32 {s(S_CNT)}, {s(S_W4)}, {64*896}
s_lshl_b32 {s(S_T1)}, {s(S_J)}, 7
s_add_u32 {s(S_CNT)}, {s(S_CNT)}, {s(S_T1)}""")
CSV = HP = 200
A(f"s_setprio {OPT['p3']}")
x1_reads(0)
for ks in range(28):
    nxt = ks + 1
    n = 0
    if ks == 12: lds_wait(SY_GBAR, 12, V_C)
    if nxt < 28:
        if nxt >= 8:
            vq.wait(("w3", nxt)); blk_reads(GA + 8*(nxt % 2), slot3(nxt), 512); n += 4
        x1_reads(nxt); n += 2
    A(f"s_waitcnt lgkmcnt({n})")
    a = RW + 8*ks if ks < 8 else GA + 8*(ks % 2)
    b = GBf + 8*(ks % 2)
    z = "0" if ks == 0 else None
    mfma(GACC, a, b, z)
    mfma(GACC + 16, a, b + 4, z)
    if ks == 0:
        vq.wait(("x1", 1)); lds_arrive(SY_GBAR)
    if ks < 4: w3_next(16 + ks)
    if ks == 5:
        check_flags("cschk", 19, 29, 0, 1)
        A(f"v_lshlrev_b32 {v(V_A)}, 4, {v(V_H)}")
        for q in range(8):
            A(f"buffer_load_dwordx4 {v(CSV+4*q,4)}, {v(V_A)}, {srd(R_WS)}, {s(S_CS)} offen offset:{32*q} sc1")
        vq.issue("cs", 8)
    if ks >= 8:
        if ks + 12 < 28: w3_next(ks + 12)
        else: w4_block(ks - 16)
    mfma(GACC + 32, a + 4, b, z)
    mfma(GACC + 48, a + 4, b + 4, z)
    if ks == 1: row_constants()
    if OPT["g4st"] and ks in (4, 7, 15): stamp(f"k{ks}")
lds_arrive(SY_X1D)
A(f"s_setprio {OPT['pg']}")
stamp("G_g3mm")
GT = 32
HBLK = 4096 + OPT["hpad"]
FSH, FBE = (7, 1024) if OPT["sepflag"] else (2, 128)
A(f"""v_lshlrev_b32 {v(V_A)}, 9, {v(V_H)}
v_sub_u32 {v(V_TR0)}, {v(V_TR0)}, {v(V_A)}
v_xor_b32 {v(V_TR1)}, 64, {v(V_TR0)}
s_mul_i32 {s(S_HB)}, {s(S_W4)}, {2*HBLK}
s_add_u32 {s(S_HB)}, {s(S_HB)}, {s(S_GB)}
s_add_u32 {s(S_HB)}, {s(S_HB)}, {G_HH}
s_mul_i32 {s(S_NN)}, {s(S_W4)}, {2*FBE}
s_add_u32 {s(S_NN)}, {s(S_NN)}, {s(S_FG)}
s_add_u32 {s(S_NN)}, {s(S_NN)}, {F_M}
v_lshlrev_b32 v29, {FSH}, {v(V_LANE)}""")
hp = lambda be, mm: HP + 16*be + 8*mm
def center(be):
    for tt in range(2):
        for i in range(16): A(f"v_fma_f32 {v(GACC+32*be+16*tt+i)}, -{v(M1[tt])}, {v(CSV+16*be+i)}, {v(GACC+32*be+16*tt+i)}")
def gelu_tile(be, tt):
    acc = GACC + 32*be + 16*tt
    for i in range(16): A(f"v_mul_f32 {v(GT+i)}, {v(acc+i)}, {v(acc+i)}")
    for i in range(16): A(f"v_fma_f32 {v(GT+i)}, {v(GT+i)}, {v(C1R[tt])}, {v(C0R[tt])}")
    for i in range(16): A(f"v_mul_f32 {v(GT+i)}, {v(GT+i)}, {v(acc+i)}")
    for i in range(16): A(f"v_exp_f32 {v(GT+i)}, {v(GT+i)}")
    for i in range(16): A(f"v_add_f32 {v(GT+i)}, 1.0, {v(GT+i)}")
    for i in range(16): A(f"v_rcp_f32 {v(GT+i)}, {v(GT+i)}")
    for i in range(16): A(f"v_mul_f32 {v(acc+i)}, {v(acc+i)}, {v(GT+i)}")
    for k in range(8): A(f"v_cvt_pk_bf16_f32 {v(hp(be, k // 4) + 4*tt + k % 4)}, {v(acc+2*k)}, {v(acc+2*k+1)}")
def h_stores(be):
    A(f"s_mul_i32 {s(S_T1)}, {s(S_J)}, {8*HBLK}\ns_add_u32 {s(S_T1)}, {s(S_T1)}, {s(S_HB)}")
    if be: A(f"s_add_u32 {s(S_T1)}, {s(S_T1)}, {HBLK}")
    def em(f):
        for mm in range(2):
            for tt in range(2):
                A(f"buffer_store_dwordx4 {v(hp(be, mm) + 4*tt,4)}, {v(V_L16)}, {srd(R_WS)}, {s(S_T1)} offen offset:{2048*mm + 1024*tt} {f}")
    by_mode(em, OPT["hflag"] > 0, "nt" if OPT["hflag"] == 1 else "")
    vq.issue(("st", be), 4)
def m_flag(be):
    vq.wait(("st", be))
    A(f"s_lshl_b32 {s(S_T1)}, {s(S_J)}, {FSH}\nv_mov_b32 {v(V_A)}, {s(S_T1)}\ns_mov_b64 exec, 1")
    by_mode(lambda f: A(f"buffer_store_dword {v(V_ONE)}, {v(V_A)}, {srd(R_WS)}, {s(S_NN)} offen offset:{FBE*be} {f}"), OPT["hflag"] > 0, "")
    exec_all()
    vq.issue(("fl", be))
def m_probe(be):
    A(f"s_mov_b64 exec, 0x7f\nbuffer_load_dword v19, v29, {srd(R_WS)}, {s(S_NN)} offen offset:{FBE*be} sc1\ns_mov_b64 exec, -1")
    vq.issue(("chk", be))
free_sets = [48, 56, 128]
pending = list(range(4, 28))
bset = {c: hp(c // 2, c % 2) for c in range(4)}
allow = [16]
def b_loads(limit):
    while pending and free_sets and pending[0] <= limit and pending[0] < allow[0]:
        c = pending.pop(0); r_ = free_sets.pop(0); bset[c] = r_
        be, d, mm = step_of(c)
        if mm == 0:
            producer(d, S_P)
            A(f"s_mul_i32 {s(S_P)}, {s(S_P)}, {8*HBLK}\ns_add_u32 {s(S_P)}, {s(S_P)}, {s(S_HB)}")
            if be: A(f"s_add_u32 {s(S_P)}, {s(S_P)}, {HBLK}")
        if OPT["nob"] == 1: continue
        for tt in range(2):
            A(f"buffer_load_dwordx4 {v(r_+4*tt,4)}, {v(V_L16)}, {srd(R_WS)}, {s(S_P)} offen offset:{2048*mm + 1024*tt} {'sc1' if OPT['nob'] == 0 else ''}")
        vq.issue(("B", c), 2)
vq.wait("cs")
center(0)
gelu_tile(0, 0); gelu_tile(0, 1)
h_stores(0)
center(1)
vq.wait(("w4", 7))
to_regs(range(8), 1024)
m_flag(0)
for c in range(12, 16): w4_block(c)
gelu_tile(1, 0)
m_probe(0)
for c in range(16, 20): w4_block(c)
check_flags(("chk", 0), 19, 29, 0, 7)
b_loads(6)
gelu_tile(1, 1)
stamp("G_gemm3")
A(f"s_setprio {OPT['p4']}")
h_stores(1)
LOOK = OPT['look']
for c in range(28):
    nxt = c + 1
    n = 0
    if 8 <= nxt < 28:
        vq.wait(("w4", nxt)); blk_reads(GA + 8*(nxt % 2), nxt % 12, 1024); n = 4
    vq.wait(("B", c), extra=f"lgkmcnt({n})" if c >= 8 else "")
    a = RW + 8*c if c < 8 else GA + 8*(c % 2)
    b = bset[c]
    z = "0" if c == 0 else None
    mfma(GACC, a, b, z)
    mfma(GACC + 16, a, b + 4, z)
    if c == 2: m_flag(1)
    if c == OPT["chk1"] - 2: m_probe(1)
    if c == OPT["chk1"]:
        check_flags(("chk", 1), 19, 29, FBE, 7)
        allow[0] = 28
    if 8 <= c < 16: w4_block(c + 12)
    mfma(GACC + 32, a + 4, b, z)
    mfma(GACC + 48, a + 4, b + 4, z)
    if c < 8: free_sets.append(a)
    if c != 2 and c != 3: free_sets.append(b)
    if c == 3: free_sets.extend([bset[2], bset[3]])
    b_loads(c + LOOK)
    if OPT["g4st"] and c in (1, 4, 7, 10, 12, 15, 19, 23): stamp(f"c{c}")
stamp("G_gemm4")
lbls = [lab("gr") for _ in range(4)]
l_done = lab("grd")
OT4 = 136
A(f"v_add_u32 {v(V_A)}, {s(S_RING)}, {v(V_L16)}\ns_nop 9")
for w_ in range(4):
    A(f"{lbls[w_]}:")
    if w_ < 3:
        A(f"s_cmp_lg_u32 {s(S_W4)}, {w_}\ns_cbranch_scc1 {lbls[w_+1]}")
    tile = lambda u: GACC + 32*(u & 1) + 16*(u >> 1)
    for u in range(4):
        if u == w_: continue
        for k in range(4):
            A(f"ds_write_b128 {v(V_A)}, {v(tile(u)+4*k,4)} offset:{4096*u + 1024*k}")
    for i in range(16): A(f"v_mov_b32 {v(OT4+i)}, {v(tile(w_)+i)}")
    A(f"v_mov_b32 {v(V_D)}, {v(R1[w_ >> 1])}")
    if w_ < 3: A(f"s_branch {l_done}")
A(f"{l_done}:")
lds_arrive(SY_GBAR)
for u in range(1, 4):
    A(f"""s_add_u32 {s(S_T1)}, {s(S_W4)}, {u}
    s_and_b32 {s(S_T1)}, {s(S_T1)}, 3
    s_mul_i32 {s(S_T1)}, {s(S_T1)}, {RING_B}
    s_lshl_b32 {s(S_T2)}, {s(S_W4)}, 12
    s_add_u32 {s(S_T1)}, {s(S_T1)}, {s(S_T2)}
    s_add_u32 {s(S_T1)}, {s(S_T1)}, {L_RING}
    v_add_u32 {v(23+u)}, {s(S_T1)}, {v(V_L16)}""")
XU = 152
for k in range(8):
    A(f"v_lshlrev_b32 {v(XU+2*k)}, 16, {v(XC+k)}\nv_and_b32 {v(XU+2*k+1)}, 0xffff0000, {v(XC+k)}")
lds_wait(SY_GBAR, 16, V_C)
for u in range(3):
    for k in range(4):
        A(f"ds_read_b128 {v(168+16*u+4*k,4)}, {v(24+u)} offset:{1024*k}")
for u in range(3):
    for k in range(4):
        A(f"s_waitcnt lgkmcnt({11 - 4*u - k})")
        for i in range(4): A(f"v_add_f32 {v(OT4+4*k+i)}, {v(OT4+4*k+i)}, {v(168+16*u+4*k+i)}")
GT2 = 64
for i in range(16): A(f"v_fma_f32 {v(X1+i)}, {v(OT4+i)}, {v(V_D)}, {v(X1+i)}")
for i in range(16): A(f"v_mul_f32 {v(GT2+i)}, {fh(-LOG2E)}, {v(X1+i)}")
for i in range(16): A(f"v_exp_f32 {v(GT2+i)}, {v(GT2+i)}")
for i in range(16): A(f"v_add_f32 {v(GT2+i)}, 1.0, {v(GT2+i)}")
for i in range(16): A(f"v_rcp_f32 {v(GT2+i)}, {v(GT2+i)}")
for i in range(16): A(f"v_mul_f32 {v(X1+i)}, {v(X1+i)}, {v(GT2+i)}")
stamp("G_gate")
A(f"""s_lshl_b32 {s(S_T1)}, {s(S_W4)}, 13
v_add_u32 {v(V_A)}, {s(S_T1)}, {v(V_L16)}
v_mul_u32_u24 {v(V_B)}, 896, {v(V_T)}
v_lshl_add_u32 {v(V_B)}, {v(V_H)}, 4, {v(V_B)}
s_lshl_b32 {s(S_T1)}, {s(S_G)}, 1
s_add_u32 {s(S_T1)}, {s(S_T1)}, {s(S_HI)}
s_mul_i32 {s(S_T1)}, {s(S_T1)}, {32*896}
s_lshl_b32 {s(S_T2)}, {s(S_J)}, 1
s_add_u32 {s(S_T2)}, {s(S_T2)}, {s(S_LO)}
s_lshl_b32 {s(S_T2)}, {s(S_T2)}, 6
s_add_u32 {s(S_T1)}, {s(S_T1)}, {s(S_T2)}""")
lds_wait(SY_S, 4, V_C)
stamp("G_sready")
for q in range(4):
    A(f"ds_read_b128 {v(32+4*q,4)}, {v(V_A)} offset:{1024*q}\nds_read_b128 {v(48+4*q,4)}, {v(V_A)} offset:{4096 + 1024*q}")
for q in range(4):
    A(f"s_waitcnt lgkmcnt({6 - 2*q})")
    for i in range(4): A(f"v_add_f32 {v(32+4*q+i)}, {v(32+4*q+i)}, {v(48+4*q+i)}")
    for i in range(4): A(f"v_fma_f32 {v(X1+4*q+i)}, {v(X1+4*q+i)}, {v(32+4*q+i)}, {v(XU+4*q+i)}")
pack16(X1, GT2)
packed_to_chunks(GT2)
A(f"""buffer_store_dwordx4 {v(GT2,4)}, {v(V_B)}, {srd(R_OUT)}, {s(S_T1)} offen nt
buffer_store_dwordx4 {v(GT2+4,4)}, {v(V_B)}, {srd(R_OUT)}, {s(S_T1)} offen offset:32 nt""")
stamp("G_end", True)
A("s_endpgm")
STAMPS_G = list(STAMPS)

A(f"""L_g_kv:
s_mul_i32 {s(S_T1)}, {s(S_LO)}, 25088
s_add_u32 {s(S_T1)}, {s(S_T1)}, {L_S1}
v_add_u32 {v(V_WA)}, {s(S_T1)}, {v(V_WA2)}
s_lshl_b32 {s(S_N0)}, {s(S_G)}, 1
s_add_u32 {s(S_N0)}, {s(S_N0)}, {s(S_HI)}
s_lshl_b32 {s(S_N0)}, {s(S_N0)}, 12
s_add_u32 {s(S_N0)}, {s(S_N0)}, {W_KV}
s_cmp_eq_u32 {s(S_LO)}, 1
s_cbranch_scc1 L_g_v""")
phaseA1("K")
colsum_spread(CS4, CSX, V_A)
center_scale(ACC, CSX, V_R)
zero_pad_dims(ACC)
pack16(ACC, TMP)
exec_hi()
A(f"v_mov_b32 {v(TMP+6)}, {ONES}\nv_mov_b32 {v(TMP+7)}, 0x3f80")
exec_all()
A(f"""buffer_store_dwordx4 {v(TMP,4)}, {v(V_L16)}, {srd(R_WS)}, {s(S_N0)} offen sc1
buffer_store_dwordx4 {v(TMP+4,4)}, {v(V_L16)}, {srd(R_WS)}, {s(S_N0)} offen offset:1024 sc1""")
norm2(ACC, V_A, V_B)
for sh in (1, 2, 4, 8):
    A(f"v_max_f32_dpp {v(V_A)}, {v(V_A)}, {v(V_A)} row_shr:{sh} row_mask:0xf bank_mask:0xf")
A(f"""s_mov_b64 exec, 0x80008000
ds_max_u32 {v(V_SY)}, {v(V_A)} offset:{SY_KMAX}
s_mov_b64 exec, -1
s_branch L_g_kvpub
L_g_v:""")
phaseA1("V")
A(f"""v_mul_f32 {v(V_A)}, {v(V_M)}, {v(V_R)}
v_cmp_eq_u32 vcc, 0, {v(V_H)}
s_lshl_b32 {s(S_T1)}, {s(S_HI)}, 8
s_add_u32 {s(S_T1)}, {s(S_T1)}, {L_VST}
v_lshl_add_u32 {v(V_B)}, {v(V_LANE)}, 2, {s(S_T1)}
v_cndmask_b32 {v(V_A)}, {v(V_A)}, {v(V_R)}, vcc
ds_write_b32 {v(V_B)}, {v(V_A)}
v_lshl_add_u32 {v(V_B)}, {v(V_H)}, 4, {s(S_T1)}""")
for jj in range(4):
    A(f"ds_read_b128 {v(CSX+4*jj,4)}, {v(V_B)} offset:{32*jj}")
    A(f"ds_read_b128 {v(TMP+4*jj,4)}, {v(V_B)} offset:{128 + 32*jj}")
A(f"""v_and_b32 {v(V_A)}, 16, {v(V_LANE)}
v_cmp_eq_u32 vcc, 0, {v(V_A)}
v_cndmask_b32 {v(V_A)}, {v(CS4+1)}, {v(CS4)}, vcc
s_waitcnt lgkmcnt(0)""")
for i in range(16): A(f"v_mul_f32 {v(TMP+i)}, {v(TMP+i)}, {v(V_A)}")
for i in range(16): A(f"v_fma_f32 {v(ACC+i)}, {v(ACC+i)}, {v(CSX+i)}, -{v(TMP+i)}")
pack16(ACC, TMP)
A(f"v_cmp_eq_u32 vcc, 28, {v(V_T)}\nv_mov_b32 {v(V_A)}, {ONES}")
for k in range(8): A(f"v_cndmask_b32 {v(TMP+k)}, {v(TMP+k)}, {v(V_A)}, vcc")
A(f"""buffer_store_dwordx4 {v(TMP,4)}, {v(V_L16)}, {srd(R_WS)}, {s(S_N0)} offen offset:2048 sc1
buffer_store_dwordx4 {v(TMP+4,4)}, {v(V_L16)}, {srd(R_WS)}, {s(S_N0)} offen offset:3072 sc1
L_g_kvpub:""")
nstamp[0] = 2; stamp("kv_stored")
lds_arrive(SY_GBAR)
flags_cleared()
def kv_flags():
    A(f"""ds_read_b32 {v(V_C)}, {v(V_SY)} offset:{SY_KMAX}
    s_waitcnt lgkmcnt(0)
    v_or_b32 {v(V_C)}, 1, {v(V_C)}
    buffer_store_dword {v(V_C)}, {v(V_A)}, {srd(R_WS)}, {s(S_T3)} offen offset:{F_KV - F_H - 7*128} sc1""")
    h_flag()
signal_last(SY_CH, F_H, V_A, emit=kv_flags)
stamp("kv_pub")
if OPT["mall"]:
    A(f"s_lshl_b32 {s(S_T0)}, {s(S_G)}, 2\ns_add_u32 {s(S_T0)}, {s(S_T0)}, {s(S_W4)}")
    for r_, n_ in ((R_W3, 1605632), (R_W4, 1605632), (R_WO, 401408)):
        touch(r_, n_, 128, S_T0)
l_nocs = lab("nocs")
A(f"s_cmp_ge_u32 {s(S_G)}, 28\ns_cbranch_scc1 {l_nocs}")
blk_voffset(V_B3584, 3584)
A(f"""s_mul_i32 {s(S_RING)}, {s(S_W4)}, 14336
s_mul_i32 {s(S_SOFF)}, {s(S_W4)}, {112*3584}
s_lshl_b32 {s(S_T1)}, {s(S_G)}, 7
s_add_u32 {s(S_SOFF)}, {s(S_SOFF)}, {s(S_T1)}
v_add_u32 {v(V_TR0)}, {s(S_RING)}, {v(V_TP)}
v_xor_b32 {v(V_TR1)}, 64, {v(V_TR0)}""")
lds_wait(SY_GBAR, 4, V_C)
lds_wait(SY_ABAR, 8, V_C)
for i in range(7): w3_block(i)
for i in range(7):
    A(f"s_waitcnt vmcnt({12 - 2*i})")
    blk_reads(32 + 8*i, i, 512)
    A("s_waitcnt lgkmcnt(0)")
    mfma16(96, 32 + 8*i, V_SEL, "0" if i == 0 else None)
    mfma16(100, 36 + 8*i, V_SEL, "0" if i == 0 else None)
A(f"""s_lshl_b32 {s(S_T4)}, {s(S_W4)}, 8
s_add_u32 {s(S_T4)}, {s(S_T4)}, {L_STX}
v_and_b32 {v(V_A)}, 15, {v(V_LANE)}
v_cmp_gt_u32 vcc, 2, {v(V_A)}
v_lshlrev_b32 {v(V_A)}, 6, {v(V_A)}
v_and_b32 {v(V_B)}, 48, {v(V_LANE)}
v_add3_u32 {v(V_A)}, {v(V_A)}, {v(V_B)}, {s(S_T4)}
s_mov_b64 exec, vcc
ds_write_b128 {v(V_A)}, v[96:99]
ds_write_b128 {v(V_A)}, v[100:103] offset:128
s_mov_b64 exec, -1""")
lds_arrive(SY_GBAR)
A(f"s_cmp_lg_u32 {s(S_W4)}, 0\ns_cbranch_scc1 {l_nocs}")
lds_wait(SY_GBAR, 8, V_C)
A(f"v_lshlrev_b32 {v(V_A)}, 2, {v(V_LANE)}\nv_add_u32 {v(V_B)}, {L_STX}, {v(V_A)}")
for q in range(4): A(f"ds_read_b32 {v(32+q)}, {v(V_B)} offset:{256*q}")
A(f"""s_lshl_b32 {s(S_T1)}, {s(S_G)}, 8
s_add_u32 {s(S_T1)}, {s(S_T1)}, {W_CS}
s_waitcnt lgkmcnt(0)
v_add_f32 v32, v32, v33
v_add_f32 v34, v34, v35
v_add_f32 v32, v32, v34
buffer_store_dword v32, {v(V_A)}, {srd(R_WS)}, {s(S_T1)} offen sc1
s_add_u32 {s(S_T1)}, {s(S_FG)}, {F_X1 + 7*128}
v_mov_b32 {v(V_A)}, 0
s_waitcnt vmcnt(0)
s_mov_b64 exec, 1
buffer_store_dword {v(V_ONE)}, {v(V_A)}, {srd(R_WS)}, {s(S_T1)} offen sc1
s_mov_b64 exec, -1
{l_nocs}:""")
if OPT["l2pf"]:
    A(f"""s_and_b32 {s(S_T0)}, {s(S_G)}, 3
    s_lshl_b32 {s(S_T0)}, {s(S_T0)}, 2
    s_add_u32 {s(S_T0)}, {s(S_T0)}, {s(S_W4)}""")
    for r_, n_ in ((R_W4, 1605632), (R_WO, 401408))[:OPT["l2pf"]]:
        sweep(r_, n_, 16, S_T0, OPT["thr"])
stamp("kv_touched")
poll_group(F_H, 8, V_A, V_B)
decide_local()
lds_arrive(SY_X1D)
nstamp[0] = len(STAMPS_G) - 1
stamp("G_end", True)
A("s_endpgm")

nstamp[0] = 1
del STAMPS[1:]
A(f"""L_role_A:
s_cmp_eq_u32 {s(S_KV)}, 1
s_cbranch_scc1 L_a_kvcopy
""")
slice_pieces(R_W1, L_S1, range(14))
A(f"""s_branch L_a_copied
L_a_kvcopy:
s_mov_b32 {s(R_STR+2)}, 25088""")
for st in range(3):
    for q in range(4):
        A(f"""s_add_u32 {s(S_T1)}, {s(S_W4)}, {4*q}
        s_min_u32 {s(S_T1)}, {s(S_T1)}, 13
        s_cmp_ge_u32 {s(S_T1)}, 7
        s_cselect_b64 {s(R_STR,2)}, {s(R_WV,2)}, {s(R_WK,2)}
        s_cselect_b32 {s(S_T2)}, 7, 0
        s_cselect_b32 {s(S_T3)}, 25088, 0
        s_sub_u32 {s(S_T1)}, {s(S_T1)}, {s(S_T2)}
        s_lshl_b32 {s(S_T1)}, {s(S_T1)}, 10
        s_add_u32 {s(S_T1)}, {s(S_T1)}, {7168*st}
        s_add_u32 {s(S_T3)}, {s(S_T3)}, {s(S_T1)}
        s_add_u32 m0, {s(S_T3)}, {L_S1}
        s_nop 0
        buffer_load_dwordx4 {v(V_L16)}, {srd(R_STR)}, {s(S_T1)} offen lds""")
A(f"""s_lshl_b32 {s(S_T1)}, {s(S_W4)}, 10
s_add_u32 {s(S_T1)}, {s(S_T1)}, 21504
s_add_u32 m0, {s(S_T1)}, {L_S1}
s_cmp_eq_u32 {s(S_W4)}, 3
s_cselect_b32 exec_hi, 0, -1
buffer_load_dwordx4 {v(V_L16)}, {srd(R_WK)}, {s(S_T1)} offen lds
s_add_u32 m0, m0, 25088
s_nop 0
buffer_load_dwordx4 {v(V_L16)}, {srd(R_WV)}, {s(S_T1)} offen lds
s_mov_b32 exec_hi, -1
L_a_copied:
s_waitcnt vmcnt(14)
s_barrier""")
stamp("x_landed")
A(f"""v_lshl_add_u32 v25, {s(S_W4)}, 6, {v(V_LANE)}
s_mul_i32 {s(S_RING)}, {s(S_KV)}, {50176 - 8192}
s_add_u32 {s(S_RING)}, {s(S_RING)}, {L_WQ6}""")
pattern(24, 25)
A("v_add_u32 v25, 256, v25")
pattern(25, 25)
A(f"s_add_u32 {s(S_T0)}, {s(S_W4)}, 4\ns_cmp_eq_u32 {s(S_W4)}, 3\ns_cbranch_scc1 L_a_wq3")
def wq_copy(two):
    ents = [(p, u) for u in range(7) for p in range(2)]
    cuts = [0, 5, 7, 9, 11, 14]
    done = 0
    for b in range(5):
        for p, u in ents[cuts[b]:cuts[b+1]]:
            if p == 1 and not two: continue
            dma_rows(R_WQ, 24 + p, S_T0 if p else S_W4, [(u, L_S2 + 7168*u if u < 6 else s(S_RING))])
            done += 1
        if b < 4:
            A(f"s_waitcnt vmcnt({[10, 6, 2, 0][b] + done})\ns_barrier")
            if b == 0:
                common_addresses()
                A(f"""v_lshlrev_b32 {v(V_D)}, 1, {v(V_H)}
                v_lshl_add_u32 {v(V_D)}, {v(V_A)}, 2, {v(V_D)}
                v_mul_u32_u24 {v(V_WA)}, 112, {v(V_D)}
                v_add_u32 {v(V_WA)}, {v(V_WA)}, {v(V_B)}
                v_cmp_le_u32 vcc, 56, {v(V_B)}
                s_lshl_b32 {s(S_T2)}, {s(S_LO)}, 5
                v_mov_b32 {v(V_A)}, {s(S_T2)}
                v_cndmask_b32 {v(V_A)}, 0, {v(V_A)}, vcc
                v_sub_u32 {v(V_WA)}, {v(V_WA)}, {v(V_A)}
                s_mul_i32 {s(S_T1)}, {s(S_LO)}, 56
                s_add_u32 {s(S_T2)}, {s(S_T1)}, {s(S_RING)}
                v_add_u32 {v(V_WA2)}, {s(S_T2)}, {v(V_WA)}
                s_add_u32 {s(S_T2)}, {s(S_T1)}, {L_S2}
                v_add_u32 {v(V_WA)}, {s(S_T2)}, {v(V_WA)}""")
            if b == 1: stats_final()
def w2_base():
    A(f"""s_lshl_b32 {s(S_CNT)}, {s(S_W4)}, 10
    s_mul_i32 {s(S_NN)}, {s(S_W4)}, {8*896}
    s_lshl_b32 {s(S_T1)}, {s(S_J)}, 7
    s_add_u32 {s(S_NN)}, {s(S_NN)}, {s(S_T1)}""")
def w2_piece(i):
    l0 = lab("w2p")
    A(f"""s_cmp_eq_u32 {s(S_KV)}, 1
    s_cbranch_scc1 {l0}
    s_add_u32 m0, {s(S_CNT)}, {L_S1 + 4096*i}
    s_add_u32 {s(S_T1)}, {s(S_NN)}, {32*896*i}
    buffer_load_dwordx4 {v(V_B896)}, {srd(R_W2)}, {s(S_T1)} offen lds
    {l0}:""")
def w2_first(extra):
    l0, l1 = lab("w2k"), lab("w2e")
    w2_base()
    for i in (0, 1, 4, 5, 6, 7): w2_piece(i)
    nt = extra()
    A(f"""s_cmp_eq_u32 {s(S_KV)}, 1
    s_cbranch_scc1 {l0}
    s_waitcnt vmcnt({6 + nt})
    s_branch {l1}
    {l0}:
    s_waitcnt vmcnt({nt})
    {l1}:""")
wq_copy(True)
w2_first(lambda: 0)
A("s_branch L_a_wqin\nL_a_wq3:")
wq_copy(False)
w2_first(lambda: sum(touch(r_, n_, 256, 2) for r_, n_ in ((R_W3, 1605632), (R_W4, 1605632), (R_WO, 401408))) if OPT["atouch"] else 0)
A("L_a_wqin:")
for i in range(8):
    A(f"ds_read_b128 {v(BF+4*i,4)}, {v(V_XB)} offset:{32*i}")
lds_arrive(SY_ABAR)
lds_wait(SY_ABAR, 4, V_C)
stamp("A_wq")
lds_wait(SY_GBAR, 4, V_C)
tile_steps("Q", False, lambda ks: w2_piece(8 + ks // 3) if ks % 3 == 1 and ks < 18 else None)
lds_arrive(SY_ABAR)
stamp("A_qgemm")
colsum_spread(CS4, CSX, V_A)
lds_wait(SY_ABAR, 8, V_C)
A(f"v_mul_f32 {v(V_RR)}, {fh(28 ** -0.5 * LOG2E)}, {v(V_R)}")
center_scale(ACC, CSX, V_RR)
zero_pad_dims(ACC)
pack16(ACC, TMP + 16)
norm2(ACC, V_A, V_B)
A(f"""s_lshl_b32 {s(S_T1)}, {s(S_W4)}, 7
s_add_u32 {s(S_T1)}, {s(S_T1)}, {L_QN}
v_lshl_add_u32 {v(V_B)}, {v(V_T)}, 2, {s(S_T1)}
ds_write_b32 {v(V_B)}, {v(V_A)}
s_mul_i32 {s(S_T1)}, {s(S_W4)}, {RING_B}
s_add_u32 {s(S_T1)}, {s(S_T1)}, {L_RING + 4096}
v_add_u32 {v(V_B)}, {s(S_T1)}, {v(V_L16)}
ds_write_b128 {v(V_B)}, {v(TMP+16,4)}
ds_write_b128 {v(V_B)}, {v(TMP+20,4)} offset:1024""")
lds_arrive(SY_ABAR)
QF, OA, SS, EE, PP, KV = 32, 64, 128, 160, 168, 176
A(f"""v_add_u32 {v(V_A)}, {s(S_XCD)}, {v(V_LANE)}
v_and_b32 {v(V_A)}, 7, {v(V_A)}
v_lshl_add_u32 {v(V_A)}, {v(V_A)}, 2, {s(S_W4)}
v_mul_u32_u24 {v(V_A)}, {FLAG_GS}, {v(V_A)}
s_mov_b32 {s(S_T3)}, {F_KV}
s_lshl_b32 {s(S_N0)}, {s(S_W4)}, 13
s_add_u32 {s(S_N0)}, {s(S_N0)}, {W_KV}
s_waitcnt vmcnt(0)""")
lds_arrive(SY_W2)
lds_wait(SY_CH, 4, V_C)
stamp("A_w2")
poll_flags(V_A, s(S_T3), 8, V_B)
stamp("A_kvflags")
def tile_soff(dst, d, ii):
    A(f"""s_add_u32 {s(dst)}, {s(S_XCD)}, {d}
    s_and_b32 {s(dst)}, {s(dst)}, 7
    s_lshl_b32 {s(dst)}, {s(dst)}, 15
    s_add_u32 {s(dst)}, {s(dst)}, {s(S_N0)}""")
    if ii: A(f"s_add_u32 {s(dst)}, {s(dst)}, 4096")
def ldK(set_, soff):
    if OPT["ldprio"]: A("s_setprio 3")
    ldK_(set_, soff)
    if OPT["ldprio"]: A(f"s_setprio {OPT['aprio']}")
def ldV(set_, soff):
    if OPT["ldprio"]: A("s_setprio 3")
    ldV_(set_, soff)
    if OPT["ldprio"]: A(f"s_setprio {OPT['aprio']}")
def ldK_(set_, soff):
    for m in range(2): A(f"buffer_load_dwordx4 {v(KV+16*set_+4*m,4)}, {v(V_L16)}, {srd(R_WS)}, {s(soff)} offen offset:{1024*m} sc1")
def ldV_(set_, soff):
    for m in range(2): A(f"buffer_load_dwordx4 {v(KV+16*set_+8+4*m,4)}, {v(V_L16)}, {srd(R_WS)}, {s(soff)} offen offset:{2048+1024*m} sc1")
def first_tiles(ns=(0, 1)):
    for n in ns:
        tile_soff(S_T1, n >> 1, n & 1)
        ldK(n, S_T1); ldV(n, S_T1)
first_tiles()
for sh in (1, 2, 4):
    A(f"v_max_f32_dpp {v(V_B)}, {v(V_B)}, {v(V_B)} row_shr:{sh} row_mask:0xf bank_mask:0xf")
A(f"v_readlane_b32 {s(S_KMAX)}, {v(V_B)}, 7")
lds_wait(SY_ABAR, 12, V_C)
A(f"v_add_u32 {v(V_B)}, {L_RING + 4096}, {v(V_L16)}\nv_add_u32 {v(V_D)}, {L_RING + 4096 + 2*RING_B}, {v(V_L16)}")
for q in range(4):
    r_ = V_B if q < 2 else V_D
    A(f"ds_read_b128 {v(QF+8*q,4)}, {v(r_)} offset:{RING_B*(q%2)}\nds_read_b128 {v(QF+8*q+4,4)}, {v(r_)} offset:{RING_B*(q%2)+1024}")
A(f"""v_lshlrev_b32 {v(V_B)}, 3, {v(V_LANE)}
v_add_u32 {v(V_B)}, {L_QN}, {v(V_B)}
ds_read_b64 v[24:25], {v(V_B)}
s_mov_b32 {s(S_PASS)}, 20
s_waitcnt lgkmcnt(0)
v_max_f32 v24, v24, v25
v_mul_f32 v24, {s(S_KMAX)}, v24
v_cmp_nge_f32 vcc, {fh(-1.0 if OPT['force_slow'] else 1600.0)}, v24
s_cmp_lg_u64 vcc, 0
s_cselect_b32 {s(S_T1)}, 1, 0
v_mov_b32 v24, {s(S_T1)}
s_mov_b64 exec, 1
ds_add_u32 {v(V_SY)}, v24 offset:{SY_BAD}
ds_add_u32 {v(V_SY)}, {v(V_ONE)} offset:{SY_ABAR}
s_mov_b64 exec, -1
L_attn:""")
for i in range(64): A(f"v_mov_b32 {v(OA+i)}, 0")
def qk(n, m):
    t_, q = (n // 4) % 4, n % 4
    mfma(SS + 16*(n % 2), KV + 16*t_ + 4*m, QF + 8*q + 4*m, "0" if m == 0 else None)
def pv(n, m):
    t_, q = (n // 4) % 4, n % 4
    mfma(OA + 16*q, KV + 16*t_ + 8 + 4*m, PP + 4*m)
def exps(n, qq):
    for i in range(4): A(f"v_exp_f32 {v(EE + 4*(qq % 2) + i)}, {v(SS + 16*(n % 2) + 4*qq + i)}")
def cvts(qq):
    e = EE + 4*(qq % 2)
    A(f"v_cvt_pk_bf16_f32 {v(PP+2*qq)}, {v(e)}, {v(e+1)}\nv_cvt_pk_bf16_f32 {v(PP+2*qq+1)}, {v(e+2)}, {v(e+3)}")
def slot_q12(n, first=False):
    if n % 4 == 3: A("s_waitcnt vmcnt(10)")
    qk(n + 1, 0)
    if n % 4 == 3: ldK((n // 4) % 4, S_T1 + ((n // 4) % 2))
    if not first: cvts(3)
    exps(n, 0)
    if not first: pv(n - 1, 1)
    cvts(0)
    exps(n, 1)
def slot_q34(n):
    qk(n + 1, 1)
    if n % 4 == 0 and n > 0: ldV(((n // 4) - 1) % 4, S_T1 + (((n // 4) - 1) % 2))
    cvts(1)
    exps(n, 2)
    if n % 4 == 0: A(f"s_waitcnt vmcnt(12)")
    pv(n, 0)
    cvts(2)
    exps(n, 3)
if OPT["fine"] > 1: stamp("a_q")
A("s_waitcnt vmcnt(4)")
if OPT["fine"] > 1: stamp("a_k0")
qk(0, 0); qk(0, 1)
first_tiles((2,))
slot_q12(0, first=True)
A(f"s_mov_b32 {s(S_CNT)}, 2")
A(".p2align 6\nL_att_loop:")
qk(1, 1)
l0 = lab("nov")
l1 = lab("v3")
A(f"s_cmp_eq_u32 {s(S_CNT)}, 2\ns_cbranch_scc0 {l1}")
tile_soff(S_T2, 1, 1)
ldK(3, S_T2)
A(f"{l1}:")
ldV(3, S_T2)
cvts(1); exps(0, 2)
A("s_waitcnt vmcnt(12)")
pv(0, 0); cvts(2); exps(0, 3)
def next_pair():
    A(f"""s_add_u32 {s(S_T1)}, {s(S_XCD)}, {s(S_CNT)}
    s_and_b32 {s(S_T1)}, {s(S_T1)}, 7
    s_lshl_b32 {s(S_T1)}, {s(S_T1)}, 15
    s_add_u32 {s(S_T1)}, {s(S_T1)}, {s(S_N0)}
    s_cmp_ge_u32 {s(S_CNT)}, 8
    s_cselect_b32 {s(S_T1)}, {OOB}, {s(S_T1)}
    s_add_u32 {s(S_T3)}, {s(S_T1)}, 4096
    s_add_u32 {s(S_CNT)}, {s(S_CNT)}, 1""")
for n in range(1, 16):
    if n in (2, 10): next_pair()
    if n in (5, 13): A(f"s_mov_b32 {s(S_T2)}, {s(S_T3)}")
    slot_q12(n); slot_q34(n)
    if OPT["fine"] > 2 and n in (3, 7, 11):
        A(f"s_lshl_b32 {s(S_T5)}, {s(S_CNT)}, 1")
        stamp_dyn(40 - 6 + (n == 7), S_T5)
slot_q12(16)
stamp_dyn(28, S_CNT)
A(f"s_cmp_lt_u32 {s(S_CNT)}, {4 if OPT['noA'] else 10}\ns_cbranch_scc1 L_att_loop")
stamp("A_attn")
A(f"s_setprio {OPT['tailprio']}")
if OPT["notail"]:
    lds_arrive(SY_S)
    A("s_branch L_a_end")
lds_wait(SY_X1D, 4, V_C, nap=True)
if OPT["fine"] > 1: stamp("a_gok")
lbls = [lab("red") for _ in range(4)]
l_done = lab("redd")
OT = 128
for a_ in range(4):
    A(f"{lbls[a_]}:")
    if a_ < 3:
        A(f"s_cmp_lg_u32 {s(S_W4)}, {a_}\ns_cbranch_scc1 {lbls[a_+1]}")
    for q in range(4):
        if q == a_: continue
        slot = q * 3 + (a_ if a_ < q else a_ - 1)
        for k in range(4):
            A(f"ds_write_b128 {v(V_L16)}, {v(OA+16*q+4*k,4)} offset:{4096*slot + 1024*k}")
    for i in range(16): A(f"v_mov_b32 {v(OT+i)}, {v(OA+16*a_+i)}")
    if a_ < 3: A(f"s_branch {l_done}")
A(f"{l_done}:")
lds_arrive(SY_ABAR)
A(f"s_mul_i32 {s(S_T1)}, {s(S_W4)}, 12288\nv_add_u32 {v(V_A)}, {s(S_T1)}, {v(V_L16)}")
lds_wait(SY_ABAR, s(S_PASS), V_C)
A(f"ds_read_b64 v[24:25], {v(V_SY)} offset:{SY_BAD}")
for k in range(12):
    A(f"ds_read_b128 {v(OA+4*k,4)}, {v(V_A)} offset:{1024*k}")
A(f"""s_waitcnt lgkmcnt(12)
v_readfirstlane_b32 {s(S_T1)}, v24
v_readfirstlane_b32 {s(S_LOC)}, v25
s_cmp_eq_u32 {s(S_PASS)}, 20
s_cselect_b32 {s(S_T1)}, {s(S_T1)}, 0
s_cmp_lg_u32 {s(S_T1)}, 0
s_cbranch_scc1 L_slow""")
for k in range(12):
    A(f"s_waitcnt lgkmcnt({11-k})")
    for i in range(4): A(f"v_add_f32 {v(OT+4*(k%4)+i)}, {v(OT+4*(k%4)+i)}, {v(OA+4*k+i)}")
A(f"""v_mov_b32 {v(V_A)}, {v(OT+12)}
v_mov_b32 {v(V_B)}, {v(OT+12)}
v_permlane32_swap_b32 {v(V_A)}, {v(V_B)}
v_rcp_f32 {v(V_B)}, {v(V_B)}""")
for i in range(16): A(f"v_mul_f32 {v(OT+i)}, {v(OT+i)}, {v(V_B)}")
pack16(OT, OA)
A(f"""s_mul_i32 {s(S_T1)}, {s(S_LO)}, 7
v_add_u32 {v(V_A)}, {s(S_T1)}, {v(V_H)}
v_lshrrev_b32 {v(V_B)}, 1, {v(V_A)}
v_and_b32 {v(V_A)}, 1, {v(V_A)}
v_lshlrev_b32 {v(V_B)}, 10, {v(V_B)}
v_lshl_add_u32 {v(V_B)}, {v(V_A)}, 3, {v(V_B)}
v_lshl_add_u32 {v(V_B)}, {v(V_T)}, 4, {v(V_B)}
s_mul_i32 {s(S_T1)}, {s(S_J)}, 7168
s_lshl_b32 {s(S_T2)}, {s(S_HI)}, 9
s_add_u32 {s(S_T1)}, {s(S_T1)}, {s(S_T2)}
s_add_u32 {s(S_T1)}, {s(S_T1)}, {s(S_GB)}
s_add_u32 {s(S_T1)}, {s(S_T1)}, {G_O}""")
def o_stores(f):
    for jj in range(4):
        if jj == 3: exec_lo()
        A(f"buffer_store_dwordx2 {v(OA+2*jj,2)}, {v(V_B)}, {srd(R_WS)}, {s(S_T1)} offen offset:{1024*jj} {f}")
    exec_all()
if OPT["fine"] > 1: stamp("a_red")
by_mode(o_stores)
lds_arrive(SY_AB2)
signal_last(SY_CO, F_O, V_A)
stamp("A_opub")
A(f"s_cmp_eq_u32 {s(S_KV)}, 1\ns_cbranch_scc1 L_a_end")
lds_wait(SY_AB2, 4, V_C)
slice_pieces(R_WO, L_S1, range(14))
A(f"""v_bfe_u32 {v(V_A)}, {v(V_LANE)}, 2, 2
v_lshl_add_u32 {v(V_D)}, {v(V_H)}, 3, {v(V_A)}
v_and_b32 {v(V_B)}, 3, {v(V_LANE)}
v_lshlrev_b32 {v(V_B)}, 3, {v(V_B)}
v_lshl_add_u32 {v(V_TP)}, {v(V_D)}, 7, {v(V_B)}
v_lshlrev_b32 {v(V_A)}, 5, {v(V_A)}
v_and_b32 {v(V_A)}, 64, {v(V_A)}
v_lshlrev_b32 {v(V_B)}, 1, {v(V_LANE)}
v_and_b32 {v(V_B)}, 32, {v(V_B)}
v_add3_u32 {v(V_TP)}, {v(V_TP)}, {v(V_A)}, {v(V_B)}
v_lshlrev_b32 {v(V_CH)}, 4, {v(V_T)}
v_lshl_add_u32 {v(V_CH)}, {v(V_H)}, 10, {v(V_CH)}""")
poll_group(F_O, 8, V_A, V_B)
stamp("A_oflags")
lds_arrive(SY_AB2)
A(f"""s_mul_i32 {s(S_T1)}, {s(S_LO)}, {28*1024}
s_lshl_b32 {s(S_T2)}, {s(S_HI)}, 9
s_add_u32 {s(S_T1)}, {s(S_T1)}, {s(S_T2)}
s_add_u32 {s(S_T1)}, {s(S_T1)}, {s(S_GB)}
s_add_u32 {s(S_T1)}, {s(S_T1)}, {G_O}""")
ksplit_loads(V_CH, V_CH, S_T1)
lds_wait(SY_AB2, 8, V_C)
if OPT["fine"] > 1:
    stamp("o_wo"); A("s_waitcnt vmcnt(0)"); stamp("o_all")
ksplit_mm()
lds_arrive(SY_AB2)
A(f"""s_lshl_b32 {s(S_T1)}, {s(S_W4)}, 13
s_lshl_b32 {s(S_T2)}, {s(S_LO)}, 12
s_add_u32 {s(S_T1)}, {s(S_T1)}, {s(S_T2)}
v_add_u32 {v(V_A)}, {s(S_T1)}, {v(V_L16)}
v_xor_b32 {v(V_B)}, 8192, {v(V_A)}""")
lds_wait(SY_AB2, 12, V_C)
for q in range(4):
    A(f"ds_write_b128 {v(V_A)}, {v(AM+4*q,4)} offset:{1024*q}\nds_write_b128 {v(V_B)}, {v(AO+4*q,4)} offset:{1024*q}")
lds_arrive(SY_S)
A("L_a_end:")
stamp("A_end", True)
A("s_endpgm")

MXR = 24
A(f"""L_slow:
s_waitcnt vmcnt(0) lgkmcnt(0)
s_mov_b32 {s(S_CNT)}, 0""")
for q in range(4): A(f"v_mov_b32 {v(MXR+q)}, 0xff800000")
A("L_slow_loop:")
A(f"""s_lshr_b32 {s(S_T2)}, {s(S_CNT)}, 1
s_add_u32 {s(S_T1)}, {s(S_XCD)}, {s(S_T2)}
s_and_b32 {s(S_T1)}, {s(S_T1)}, 7
s_lshl_b32 {s(S_T1)}, {s(S_T1)}, 15
s_add_u32 {s(S_T1)}, {s(S_T1)}, {s(S_N0)}
s_and_b32 {s(S_T2)}, {s(S_CNT)}, 1
s_lshl_b32 {s(S_T2)}, {s(S_T2)}, 12
s_add_u32 {s(S_T1)}, {s(S_T1)}, {s(S_T2)}""")
for m in range(2): A(f"buffer_load_dwordx4 {v(OA+4*m,4)}, {v(V_L16)}, {srd(R_WS)}, {s(S_T1)} offen offset:{1024*m} sc1")
A("s_waitcnt vmcnt(0)")
for q in range(4):
    mfma(SS, OA, QF + 8*q, "0"); mfma(SS, OA + 4, QF + 8*q + 4)
    for i in range(8): A(f"v_max3_f32 {v(MXR+q)}, {v(SS+2*i)}, {v(SS+2*i+1)}, {v(MXR+q)}")
A(f"""s_add_u32 {s(S_CNT)}, {s(S_CNT)}, 1
s_cmp_lt_u32 {s(S_CNT)}, 16
s_cbranch_scc1 L_slow_loop
s_lshl_b32 {s(S_T1)}, {s(S_W4)}, 9
s_add_u32 {s(S_T1)}, {s(S_T1)}, {L_MX}
v_lshl_add_u32 {v(V_A)}, {v(V_T)}, 2, {s(S_T1)}""")
for q in range(4):
    A(f"""v_mov_b32 {v(V_B)}, {v(MXR+q)}
    v_permlane32_swap_b32 {v(MXR+q)}, {v(V_B)}
    v_max_f32 {v(MXR+q)}, {v(MXR+q)}, {v(V_B)}
    ds_write_b32 {v(V_A)}, {v(MXR+q)} offset:{128*q}""")
lds_arrive(SY_ABAR)
first_tiles()
lds_wait(SY_ABAR, 24, V_C)
A(f"v_lshlrev_b32 {v(V_A)}, 2, {v(V_T)}\nv_add_u32 {v(V_A)}, {L_MX}, {v(V_A)}")
for q in range(4):
    for w_ in range(4): A(f"ds_read_b32 {v(SS+4*q+w_)}, {v(V_A)} offset:{512*w_ + 128*q}")
    A("s_waitcnt lgkmcnt(0)")
exec_hi()
for q in range(4):
    b = SS + 4*q
    A(f"""v_max3_f32 {v(b)}, {v(b)}, {v(b+1)}, {v(b+2)}
    v_max_f32 {v(b)}, {v(b)}, {v(b+3)}
    v_sub_f32 {v(b)}, 0, {v(b)}
    v_and_b32 {v(b+1)}, 0xffff0000, {v(b)}
    v_sub_f32 {v(b)}, {v(b)}, {v(b+1)}
    v_and_b32 {v(b+2)}, 0xffff0000, {v(b)}
    v_sub_f32 {v(b)}, {v(b)}, {v(b+2)}
    v_lshrrev_b32 {v(b+1)}, 16, {v(b+1)}
    v_or_b32 {v(QF+8*q+6)}, {v(b+1)}, {v(b+2)}
    v_lshrrev_b32 {v(QF+8*q+7)}, 16, {v(b)}""")
exec_all()
A(f"s_mov_b32 {s(S_PASS)}, 28\ns_branch L_attn")
A("L_END:\ns_endpgm\nL_CODE_END:")

body = A.finalize()
hdr = open("recurrent_scan__grouped_kv_mqa__mixer_s_mlp__prompt.s.ref").read().split("; Override")[0]
LAUNCH = "; @launch grid=(256,1,1) block=(512,1,1) lds=163840"
EXTRA_CODE = EXTRA_KD = ""
if OPT["probe"] >= 0:
    LAUNCH = f"; @launch kernel={KNAME} grid=(256,1,1) block=(512,1,1) lds=163840\n; @launch kernel=probe_kernel grid=(1,1,1) block=(64,1,1) lds=0"
    lo, hi = OPT["plo"], OPT["phi"]
    ld = "\n".join(f"""v_add_u32 v2, {i*64*2048}, v1
    buffer_load_dword v{4+2*i}, v2, s[8:11], 0 offen offset:{4*lo} sc1
    buffer_load_dword v{5+2*i}, v2, s[8:11], 0 offen offset:{4*hi} sc1""" for i in range(4))
    red = "\n".join(f"""v_readlane_b32 s14, v4, {l}
    v_readlane_b32 s15, v5, {l}
    s_nop 1
    s_min_u32 s12, s12, s14
    s_max_u32 s13, s13, s15""" for l in range(64))
    EXTRA_CODE = f"""
.p2align 8
.type probe_kernel,@function
probe_kernel:
    s_cmp_ge_u32 s2, 1
    s_cbranch_scc1 P_END
    s_load_dwordx2 s[8:9], s[0:1], 96
    s_mov_b32 s10, {WS_USED}
    s_mov_b32 s11, 0x20000
    v_lshlrev_b32 v1, 11, v0
    v_add_u32 v1, {W_STAMP + 256*OPT["pwave"]}, v1
    s_waitcnt lgkmcnt(0)
    {ld}
    s_waitcnt vmcnt(0)
    v_min_u32 v4, v4, v6
    v_min_u32 v8, v8, v10
    v_min_u32 v4, v4, v8
    v_max_u32 v5, v5, v7
    v_max_u32 v9, v9, v11
    v_max_u32 v5, v5, v9
    s_mov_b32 s12, -1
    s_mov_b32 s13, 0
    s_nop 1
    {red}
    s_sub_u32 s12, s13, s12
    s_min_u32 s12, s12, 20000
    s_mul_i32 s12, s12, {OPT["probe"]}
    s_memrealtime s[16:17]
    s_waitcnt lgkmcnt(0)
P_SPIN:
    s_memrealtime s[18:19]
    s_waitcnt lgkmcnt(0)
    s_sub_u32 s14, s18, s16
    s_cmp_lt_u32 s14, s12
    s_cbranch_scc1 P_SPIN
P_END:
    s_endpgm
"""
    EXTRA_KD = """
.p2align 6
.amdhsa_kernel probe_kernel
  .amdhsa_next_free_vgpr 16
  .amdhsa_next_free_sgpr 32
  .amdhsa_accum_offset 16
  .amdhsa_group_segment_fixed_size 0
  .amdhsa_kernarg_size 104
  .amdhsa_user_sgpr_count 2
  .amdhsa_user_sgpr_kernarg_segment_ptr 1
  .amdhsa_system_sgpr_workgroup_id_x 1
.end_amdhsa_kernel
"""
out = hdr + f"""{LAUNCH}
.amdgcn_target "amdgcn-amd-amdhsa--gfx950"
.text
.globl {KNAME}
.p2align 8
.type {KNAME},@function
{KNAME}:
{body}{EXTRA_CODE}
.section .rodata,"a"
.p2align 6
.amdhsa_kernel {KNAME}
  .amdhsa_next_free_vgpr 256
  .amdhsa_next_free_sgpr 96
  .amdhsa_accum_offset 256
  .amdhsa_group_segment_fixed_size 0
  .amdhsa_kernarg_size 104
  .amdhsa_user_sgpr_count 2
  .amdhsa_user_sgpr_kernarg_segment_ptr 1
  .amdhsa_system_sgpr_workgroup_id_x 1
.end_amdhsa_kernel{EXTRA_KD}
"""
open(sys.argv[1], "w").write(out)
if OPT["stamp"]:
    import json
    json.dump({"G": STAMPS_G, "A": STAMPS}, open(sys.argv[1] + ".stamps.json", "w"))
```

```python
import sys, struct
from asmlib import Asm, v, s

OPT = dict(stamp=0, force_slow=0, noG=0, noA=0, prio=2, local=1, touch=1, codepf=1, plocal=0, fine=0, nop=0, norefill=0, l2pf=0, nap=0, ldprio=1, aprio=0, hflag=1, hpad=0, sepflag=0, dbgout=0, probe=-1, plo=62, phi=63, pwave=4, tlb=1, tailprio=3, mall=1, thr=1, rot=1, ringlate=1, g4st=0, look=7, atouch=0, chk1=12, p3=2, pg=2, p4=2, poll1=1, psleep=0, r1s=2, nb1=5, nb2=8, r1mode=1, pf3=0, notail=0, pself=0)
for a_ in sys.argv[2:]:
    k_, x_ = a_.split("="); OPT[k_] = int(x_)

KNAME = "recurrent_scan__grouped_kv_mqa__mixer_s_mlp__prompt_kernel"
def f2u(x): return struct.unpack("<I", struct.pack("<f", x))[0]
def fh(x): return hex(f2u(x))
LOG2E = 1.4426950408889634
ONES = 0x3F803F80
OOB = 0x40000000
SPIN = 400000

W_KV = 0x80000
W_GB0, W_GBS = 0x100000, 0x80000
G_H, G_X1, G_O, G_ST, G_HH = 0x0, 0xE000, 0x1C000, 0x2A000, 0x2C000
FLAG_GS = 0x3000
F_H, F_X1, F_M, F_O, F_KV = 0x0, 0x400, 0x1000 if OPT['sepflag'] else 0x800, 0xC00, 0x800 if OPT['sepflag'] else 0x1000
W_CS = 0x70000
W_STAMP = 0x1500000
WS_USED = 0x1600000

L_S1 = 0
L_X = 57344
L_S2 = L_X + 58368
L_MISC = L_S2 + 43008
L_WQ6 = L_S1 + 8192
L_RING = L_X
RING_B = 24576
L_STATP = L_MISC
L_STX = L_STATP
L_QN = L_MISC + 1024
L_VST = L_QN + 512
L_SYNC = L_VST + 512
L_CS = L_SYNC + 128
L_MX = L_MISC + 3072
assert L_MX + 2048 <= 163840 and L_RING + 4 * RING_B <= L_MISC and L_CS + 896 <= L_MX
SY_GBAR, SY_ABAR, SY_CX1, SY_CP, SY_CO, SY_CH, SY_BAD, SY_LOC, SY_PF, SY_KMAX, SY_W2, SY_S, SY_AB2, SY_X1D, SY_OK, SY_R1 = 0, 4, 8, 12, 16, 20, 24, 28, 32, 48, 52, 56, 60, 64, 68, 84

S_WAVE, S_G, S_J, S_XCD = 3, 4, 5, 6
R_X, R_WQ, R_WO, R_W1, R_W2, R_W3, R_W4, R_OUT, R_DBG, R_WS, R_WK, R_WV, R_STR = 8, 12, 16, 20, 24, 28, 32, 36, 40, 44, 48, 52, 56
S_GB = 60
S_W4 = 61
S_HI, S_LO = 62, 63
S_T0, S_T1, S_T2, S_T3, S_T4, S_T5 = 64, 65, 66, 67, 68, 69
S_SPIN = 70
S_KMAX = 71
S_SOFF, S_STRIDE, S_RING = 72, 73, 74
S_CNT, S_PASS, S_NF, S_NN, S_N0 = 75, 76, 77, 78, 79
S_FG, S_KV, S_LOC, S_RANK = 80, 81, 82, 83
S_TS = 84
S_C0, S_C1 = 86, 87
S_R1 = 90
srd = lambda r: s(r, 4)

V_LANE, V_L16, V_T, V_H = 1, 2, 3, 4
V_M, V_R, V_RR = 5, 6, 7
V_XB, V_WA, V_WA2, V_PAT, V_TRB = 8, 9, 10, 11, 12
V_A, V_B, V_C, V_D = 13, 14, 15, 16
V_ONE, V_SY = 17, 18
V_SEL = 20
V_DBG = 30
V_TCH = 31

A = Asm()
uid = [0]
def lab(p):
    uid[0] += 1
    return f"L_{p}_{uid[0]}"

nstamp = [0]
STAMPS = []
def stamp(name, last=False):
    if not OPT["stamp"]:
        return
    i = nstamp[0]; nstamp[0] += 1
    STAMPS.append(name)
    A(f"""s_memtime {s(S_TS,2)}
    s_memrealtime s[92:93]
    s_waitcnt lgkmcnt(0)
    v_writelane_b32 v0, {s(S_TS)}, {i}""")
    if not OPT["fine"]: A(f"v_writelane_b32 v0, s92, {32 + i}")
    if last:
        A(f"""s_memrealtime {s(S_TS,2)}
        s_lshl_b32 {s(S_T5)}, s2, 3
        s_add_u32 {s(S_T5)}, {s(S_T5)}, {s(S_WAVE)}
        s_lshl_b32 {s(S_T5)}, {s(S_T5)}, 8
        s_add_u32 {s(S_T5)}, {s(S_T5)}, {W_STAMP}
        s_waitcnt lgkmcnt(0)
        v_writelane_b32 v0, {s(S_TS)}, 63
        v_lshlrev_b32 v13, 2, {v(V_LANE)}
        buffer_store_dword v0, v13, {srd(R_WS)}, {s(S_T5)} offen""")
        if OPT["dbgout"]:
            l0 = lab("dbo")
            A(f"""v_readlane_b32 {s(S_T4)}, v0, 62
            s_sub_u32 {s(S_T4)}, 0, {s(S_T4)}
            v_mov_b32 v14, {s(S_TS)}
            v_mov_b32 v15, {s(S_T4)}
            v_mov_b32 v16, 0
            s_mov_b64 exec, 1
            buffer_atomic_umax v14, v16, {srd(R_DBG)}, 0 offen sc1
            buffer_atomic_umax v15, v16, {srd(R_DBG)}, 0 offen offset:4 sc1
            s_mov_b64 exec, -1
            s_lshl_b32 {s(S_T4)}, s2, 3
            s_add_u32 {s(S_T4)}, {s(S_T4)}, {s(S_WAVE)}
            s_cmp_eq_u32 {s(S_T4)}, {OPT["dbgout"]}
            s_cbranch_scc0 {l0}
            v_readlane_b32 {s(S_T4)}, v0, 0
            v_subrev_u32 v14, {s(S_T4)}, v0
            s_mov_b64 exec, 0x7ffe
            buffer_store_dword v14, v13, {srd(R_DBG)}, 0 offen offset:4 sc1
            s_mov_b64 exec, -1
            {l0}:""")
def stamp_dyn(base, sreg):
    if OPT["stamp"] and OPT["fine"]:
        A(f"""s_memtime {s(S_TS,2)}
        s_add_u32 m0, {s(sreg)}, {base}
        s_waitcnt lgkmcnt(0)
        v_writelane_b32 v0, {s(S_TS)}, m0""")
def stamp_rt0():
    if OPT["stamp"]:
        A(f"v_mov_b32 v0, 0\nv_writelane_b32 v0, s94, 61\ns_memrealtime {s(S_TS,2)}\ns_waitcnt lgkmcnt(0)\nv_writelane_b32 v0, {s(S_TS)}, 62")

def exec_lo(): A("s_mov_b32 exec_lo, -1\ns_mov_b32 exec_hi, 0")
def exec_hi(): A("s_mov_b32 exec_lo, 0\ns_mov_b32 exec_hi, -1")
def exec_all(): A("s_mov_b64 exec, -1")

def poll_flags(vaddr, soff, nlanes, vdst):
    l0 = lab("poll")
    A(f"""s_mov_b64 exec, {hex((1 << nlanes) - 1)}
    s_mov_b32 {s(S_SPIN)}, 0
    {l0}:
    buffer_load_dword {v(vdst)}, {v(vaddr)}, {srd(R_WS)}, {soff} offen sc1
    s_add_u32 {s(S_SPIN)}, {s(S_SPIN)}, 1
    s_cmp_gt_u32 {s(S_SPIN)}, {SPIN}
    s_cbranch_scc1 L_END
    s_waitcnt vmcnt(0)
    v_cmp_ne_u32 vcc, 0, {v(vdst)}
    s_cmp_eq_u64 vcc, exec
    s_cbranch_scc1 {l0}_ok
    {f's_sleep {OPT["psleep"]}' if OPT["psleep"] else ""}
    s_branch {l0}
    {l0}_ok:
    s_mov_b64 exec, -1""")

def lds_arrive(word):
    A(f"""s_mov_b64 exec, 1
    ds_add_u32 {v(V_SY)}, {v(V_ONE)} offset:{word}
    s_mov_b64 exec, -1""")

def lds_wait(word, target, vtmp, vaddr=V_SY, nap=False):
    l0 = lab("lw")
    A(f"""s_mov_b32 {s(S_SPIN)}, 0
    {l0}:
    {"s_sleep 1" if (OPT["nap"] & 1 and nap) or OPT["nap"] & 2 else ""}
    ds_read_b32 {v(vtmp)}, {v(vaddr)} offset:{word}
    s_add_u32 {s(S_SPIN)}, {s(S_SPIN)}, 1
    s_cmp_gt_u32 {s(S_SPIN)}, {SPIN*8}
    s_cbranch_scc1 L_END
    s_waitcnt lgkmcnt(0)
    v_readfirstlane_b32 {s(S_T4)}, {v(vtmp)}
    s_cmp_ge_u32 {s(S_T4)}, {target}
    s_cbranch_scc0 {l0}""")

def by_mode(emit, local_ok=True, local_flag="nt"):
    if not (OPT["local"] and local_ok):
        emit("sc1"); return
    l0, l1 = lab("far"), lab("md")
    A(f"s_cmp_eq_u32 {s(S_LOC)}, 0\ns_cbranch_scc1 {l0}")
    emit(local_flag)
    A(f"s_branch {l1}\n{l0}:")
    emit("sc1")
    A(f"{l1}:")

def signal_last(word, flagbase, vtmp, local_ok=True, younger=0, emit=None):
    l0 = lab("sig")
    A(f"""s_waitcnt vmcnt({younger})
    s_mov_b64 exec, 1
    ds_add_rtn_u32 {v(vtmp)}, {v(V_SY)}, {v(V_ONE)} offset:{word}
    s_lshl_b32 {s(S_T3)}, {s(S_J)}, 7
    s_add_u32 {s(S_T3)}, {s(S_T3)}, {s(S_FG)}
    s_add_u32 {s(S_T3)}, {s(S_T3)}, {flagbase}
    s_waitcnt lgkmcnt(0)
    v_readfirstlane_b32 {s(S_T4)}, {v(vtmp)}
    v_mov_b32 {v(vtmp)}, 0
    s_cmp_eq_u32 {s(S_T4)}, 3
    s_cbranch_scc0 {l0}""")
    if emit: emit()
    else: by_mode(lambda f: A(f"buffer_store_dword {v(V_ONE)}, {v(vtmp)}, {srd(R_WS)}, {s(S_T3)} offen {f}"), local_ok, "")
    A(f"{l0}:\ns_mov_b64 exec, -1")

def one_poller(word, emit):
    if not OPT["poll1"]:
        emit(); return
    l0, l1 = lab("np"), lab("pd")
    A(f"s_cmp_lg_u32 {s(S_W4)}, 0\ns_cbranch_scc1 {l0}")
    emit()
    lds_arrive(word)
    A(f"s_branch {l1}\n{l0}:")
    lds_wait(word, 1, V_C)
    A(f"{l1}:")

def poll_group(flagbase, n, vtmp, vtmp2):
    A(f"""s_add_u32 {s(S_T3)}, {s(S_FG)}, {flagbase}
    v_lshlrev_b32 {v(vtmp)}, 7, {v(V_LANE)}""")
    poll_flags(vtmp, s(S_T3), n, vtmp2)

def mfma(d, a, b, c=None):
    A(f"v_mfma_f32_32x32x16_bf16 {v(d,16)}, {v(a,4)}, {v(b,4)}, {v(d,16) if c is None else c}")
def mfma16(d, a, b, c=None):
    A(f"v_mfma_f32_16x16x32_bf16 {v(d,4)}, {v(a,4)}, {v(b,4)}, {v(d,4) if c is None else c}")
def trread(d, addr, off):
    A(f"ds_read_b64_tr_b16 {v(d,2)}, {v(addr)} offset:{off}")

def gelu16(src, n, t0):
    for i in range(n): A(f"v_mul_f32 {v(t0+i)}, {v(src+i)}, {v(src+i)}")
    for i in range(n): A(f"v_fma_f32 {v(t0+i)}, {v(t0+i)}, {s(S_C1)}, {v(V_D)}")
    for i in range(n): A(f"v_mul_f32 {v(t0+i)}, {v(t0+i)}, {v(src+i)}")
    for i in range(n): A(f"v_exp_f32 {v(t0+i)}, {v(t0+i)}")
    for i in range(n): A(f"v_add_f32 {v(t0+i)}, 1.0, {v(t0+i)}")
    for i in range(n): A(f"v_rcp_f32 {v(t0+i)}, {v(t0+i)}")
    for i in range(n): A(f"v_mul_f32 {v(src+i)}, {v(src+i)}, {v(t0+i)}")

def colsum_spread(cs4, dst16, vtmp):
    A(f"""s_lshl_b32 {s(S_T4)}, {s(S_WAVE)}, 7
    s_add_u32 {s(S_T4)}, {s(S_T4)}, {L_CS}
    v_and_b32 {v(vtmp)}, 15, {v(V_LANE)}
    v_cmp_gt_u32 vcc, 2, {v(vtmp)}
    v_lshlrev_b32 {v(vtmp)}, 6, {v(vtmp)}
    v_and_b32 {v(vtmp+1)}, 48, {v(V_LANE)}
    v_add3_u32 {v(vtmp)}, {v(vtmp)}, {v(vtmp+1)}, {s(S_T4)}
    s_mov_b64 exec, vcc
    ds_write_b128 {v(vtmp)}, {v(cs4,4)}
    s_mov_b64 exec, -1
    v_lshl_add_u32 {v(vtmp)}, {v(V_H)}, 4, {s(S_T4)}""")
    for jj in range(4):
        A(f"ds_read_b128 {v(dst16+4*jj,4)}, {v(vtmp)} offset:{32*jj}")
    A("s_waitcnt lgkmcnt(0)")

def swap_sum2(a, b):
    A(f"v_permlane32_swap_b32 {v(a)}, {v(b)}\nv_add_f32 {v(a)}, {v(a)}, {v(b)}")
def both_halves_sum(a, t):
    A(f"v_mov_b32 {v(t)}, {v(a)}\nv_permlane32_swap_b32 {v(a)}, {v(t)}\nv_add_f32 {v(a)}, {v(a)}, {v(t)}")

def pattern(dst, vslot):
    A(f"""v_mul_u32_u24 {v(V_A)}, 9363, {v(vslot)}
    v_lshrrev_b32 {v(V_A)}, 16, {v(V_A)}
    v_mul_u32_u24 {v(V_B)}, 7, {v(V_A)}
    v_sub_u32 {v(V_B)}, {v(vslot)}, {v(V_B)}
    v_and_b32 {v(V_C)}, 3, {v(V_A)}
    v_bfe_u32 {v(V_D)}, {v(V_A)}, 2, 2
    v_and_b32 {v(V_A)}, 48, {v(V_A)}
    v_lshl_add_u32 {v(V_A)}, {v(V_C)}, 2, {v(V_A)}
    v_add_u32 {v(V_A)}, {v(V_A)}, {v(V_D)}
    v_mul_u32_u24 {v(V_A)}, 896, {v(V_A)}
    v_lshl_add_u32 {v(dst)}, {v(V_B)}, 4, {v(V_A)}
    s_mul_i32 {s(S_T4)}, {s(S_J)}, 112
    v_add_u32 {v(dst)}, {s(S_T4)}, {v(dst)}""")

def dma_rows(rsrc, vpat, spat, chunks):
    A(f"s_lshl_b32 {s(S_T1)}, {s(spat)}, 10")
    for u, lds in chunks:
        A(f"""s_add_u32 m0, {s(S_T1)}, {lds if isinstance(lds, int) else lds}
        s_mov_b32 {s(S_T2)}, {u * 57344}
        buffer_load_dwordx4 {v(vpat)}, {srd(rsrc)}, {s(S_T2)} offen lds""")

def blk_voffset(dst, rowstride):
    A(f"""v_lshrrev_b32 {v(V_A)}, 3, {v(V_LANE)}
    v_lshlrev_b32 {v(V_B)}, 2, {v(V_LANE)}
    v_and_b32 {v(V_B)}, 64, {v(V_B)}
    v_and_b32 {v(V_C)}, 7, {v(V_LANE)}
    v_lshlrev_b32 {v(V_C)}, 4, {v(V_C)}
    v_xor_b32 {v(V_B)}, {v(V_B)}, {v(V_C)}
    v_mul_u32_u24 {v(dst)}, {rowstride}, {v(V_A)}
    v_add_u32 {v(dst)}, {v(dst)}, {v(V_B)}""")

def touch(rsrc, nbytes, shares=32, srank=S_RANK, throttle=None):
    if not OPT["touch"]:
        return 0
    per = -(-(nbytes // 128) // shares)
    n = (per + 63) // 64
    A(f"s_mul_i32 {s(S_T1)}, {s(srank)}, {per * 128}\nv_lshlrev_b32 {v(V_A)}, 7, {v(V_LANE)}")
    for i in range(n):
        rem = per - 64 * i
        if rem < 64:
            A(f"s_mov_b64 exec, {hex((1 << rem) - 1)}" if rem <= 31 else f"s_mov_b32 exec_hi, {hex((1 << (rem - 32)) - 1)}")
        A(f"buffer_load_dword {v(V_TCH)}, {v(V_A)}, {srd(rsrc)}, {s(S_T1)} offen sc1")
        if throttle is not None: A(f"s_waitcnt vmcnt({throttle})")
        if i < n - 1: A(f"s_add_u32 {s(S_T1)}, {s(S_T1)}, 8192")
    exec_all()
    return n


def sweep(rsrc, nbytes, shares, srank, throttle):
    npieces = -(-nbytes // 8192)
    trips = -(-npieces // shares)
    l0 = lab("sw")
    A(f"""v_lshlrev_b32 {v(V_A)}, 7, {v(V_LANE)}
    s_mul_i32 {s(S_T1)}, {s(S_XCD)}, {(npieces // 8) if OPT["rot"] else 0}
    s_add_u32 {s(S_T1)}, {s(S_T1)}, {s(srank)}
    s_mov_b32 {s(S_T2)}, {trips}
    {l0}:
    s_cmp_ge_u32 {s(S_T1)}, {npieces}
    s_cselect_b32 {s(S_T3)}, {npieces}, 0
    s_sub_u32 {s(S_T1)}, {s(S_T1)}, {s(S_T3)}
    s_lshl_b32 {s(S_T3)}, {s(S_T1)}, 13
    buffer_load_dword {v(V_TCH)}, {v(V_A)}, {srd(rsrc)}, {s(S_T3)} offen sc1
    s_add_u32 {s(S_T1)}, {s(S_T1)}, {shares}
    s_sub_u32 {s(S_T2)}, {s(S_T2)}, 1
    s_waitcnt vmcnt({throttle})
    s_cmp_lg_u32 {s(S_T2)}, 0
    s_cbranch_scc1 {l0}""")

class VMQ:
    def __init__(self): self.q = []
    def issue(self, tag, n=1): self.q += [tag] * n
    def wait(self, *tags, extra=""):
        last = max((i for i, t in enumerate(self.q) if t in tags), default=-1)
        if last >= 0:
            n = len(self.q) - 1 - last
            assert n < 64
            A(f"s_waitcnt vmcnt({n}) {extra}".strip())
            self.q = self.q[last + 1:]
        elif extra:
            A(f"s_waitcnt {extra}")
    def drained(self): self.q = []

if OPT["stamp"]: A("s_memrealtime s[94:95]")
A(f"""s_cmp_ge_u32 s2, 256
s_cbranch_scc1 L_END
s_load_dwordx16 s[64:79], s[0:1], 0
s_load_dwordx8 s[80:87], s[0:1], 64
s_load_dwordx2 s[88:89], s[0:1], 96
v_and_b32 {v(V_LANE)}, 63, v0
v_lshrrev_b32 {v(V_A)}, 6, v0
v_lshlrev_b32 {v(V_L16)}, 4, {v(V_LANE)}
v_readfirstlane_b32 {s(S_WAVE)}, {v(V_A)}
v_and_b32 {v(V_T)}, 31, {v(V_LANE)}
v_lshrrev_b32 {v(V_H)}, 5, {v(V_LANE)}
s_and_b32 {s(S_XCD)}, s2, 7
s_lshr_b32 s7, s2, 3
s_and_b32 {s(S_J)}, s7, 7
s_lshr_b32 s7, s7, 3
s_lshl_b32 {s(S_G)}, {s(S_XCD)}, 2
s_add_u32 {s(S_G)}, {s(S_G)}, s7
s_mul_i32 {s(S_GB)}, {s(S_G)}, {W_GBS}
s_add_u32 {s(S_GB)}, {s(S_GB)}, {W_GB0}
s_and_b32 {s(S_W4)}, {s(S_WAVE)}, 3
s_lshr_b32 {s(S_HI)}, {s(S_W4)}, 1
s_and_b32 {s(S_LO)}, {s(S_W4)}, 1
s_mov_b32 {s(R_X+2)}, 1835008
s_mov_b32 {s(R_X+3)}, 0x20000
s_lshl_b32 s7, {s(S_G)}, 3
s_add_u32 s7, s7, {s(S_WAVE)}
s_mul_i32 s7, s7, {8*896}
s_mul_i32 m0, {s(S_WAVE)}, {8*912}
s_add_u32 m0, m0, {L_X}
s_mov_b32 exec_hi, 0x00ffffff
s_waitcnt lgkmcnt(0)
s_mov_b64 {s(R_X,2)}, s[64:65]""")
for i in range(8):
    A(f"buffer_load_dwordx4 {v(V_L16)}, {srd(R_X)}, s7 offen lds")
    if i < 7:
        A(f"s_add_u32 m0, m0, 912\ns_add_u32 s7, s7, 896")
exec_all()
kmap = {R_WQ: 66, R_WK: 68, R_WV: 70, R_WO: 72, R_W1: 76, R_W2: 78, R_W3: 80, R_W4: 82, R_OUT: 84, R_DBG: 86, R_WS: 88}
sizes = {R_WQ: 401408, R_WO: 401408, R_W1: 401408, R_W2: 401408, R_W3: 1605632, R_W4: 1605632,
         R_OUT: 1835008, R_DBG: 256, R_WS: WS_USED, R_WK: 25088, R_WV: 25088}
for r_, k_ in kmap.items():
    A(f"s_mov_b64 {s(r_,2)}, {s(k_,2)}\ns_mov_b32 {s(r_+2)}, {sizes[r_]}\ns_mov_b32 {s(r_+3)}, 0x20000")
A(f"s_mov_b64 {s(R_STR,2)}, {s(R_W3,2)}\ns_mov_b32 {s(R_STR+2)}, 1605632\ns_mov_b32 {s(R_STR+3)}, 0x20000")
stamp_rt0()
stamp("start")
V_B896, V_TP = V_PAT, V_TRB
A(f"""s_mul_i32 {s(S_FG)}, {s(S_G)}, {FLAG_GS}
s_cmp_eq_u32 {s(S_J)}, 7
s_cselect_b32 {s(S_KV)}, 1, 0
v_mov_b32 {v(V_ONE)}, 1
v_mov_b32 {v(V_SY)}, {L_SYNC}""")
blk_voffset(V_B896, 896)
def common_addresses():
    A(f"""v_lshl_add_u32 {v(V_XB)}, {s(S_HI)}, 5, {v(V_T)}
    v_mul_u32_u24 {v(V_XB)}, 912, {v(V_XB)}
    v_lshl_add_u32 {v(V_XB)}, {v(V_H)}, 4, {v(V_XB)}
    v_add_u32 {v(V_XB)}, {L_X}, {v(V_XB)}
    v_bfe_u32 {v(V_A)}, {v(V_LANE)}, 2, 2
    v_and_b32 {v(V_B)}, 3, {v(V_LANE)}
    v_bfe_u32 {v(V_C)}, {v(V_LANE)}, 4, 1
    v_lshlrev_b32 {v(V_B)}, 3, {v(V_B)}
    v_lshl_add_u32 {v(V_B)}, {v(V_C)}, 5, {v(V_B)}
    v_and_b32 {v(V_D)}, 1, {v(V_LANE)}
    v_cmp_eq_u32 vcc, {v(V_D)}, {v(V_C)}
    v_mov_b32 {v(V_D)}, {ONES}""")
    for i in range(4):
        A(f"v_cndmask_b32 {v(V_SEL+i)}, 0, {v(V_D)}, vcc")
A(f"s_cmp_ge_u32 {s(S_WAVE)}, 4\ns_cbranch_scc1 L_role_A")

def dma_block(slot, rsrc, vsrc, half, advance):
    A(f"""s_add_u32 m0, {s(S_RING)}, {2048*slot}
    s_add_u32 {s(S_T5)}, {s(S_SOFF)}, {half}
    buffer_load_dwordx4 {v(vsrc)}, {srd(rsrc)}, {s(S_SOFF)} offen lds
    s_add_u32 m0, m0, 1024
    s_add_u32 {s(S_SOFF)}, {s(S_SOFF)}, {advance}
    buffer_load_dwordx4 {v(vsrc)}, {srd(rsrc)}, {s(S_T5)} offen lds""")
def dma_halves(slot, rsrc, vsrc, half, advance):
    return [f"""s_add_u32 m0, {s(S_RING)}, {2048*slot}
    s_add_u32 {s(S_T5)}, {s(S_SOFF)}, {half}
    buffer_load_dwordx4 {v(vsrc)}, {srd(rsrc)}, {s(S_SOFF)} offen lds""",
    f"""s_add_u32 m0, {s(S_RING)}, {2048*slot + 1024}
    s_add_u32 {s(S_SOFF)}, {s(S_SOFF)}, {advance}
    buffer_load_dwordx4 {v(vsrc)}, {srd(rsrc)}, {s(S_T5)} offen lds"""]
V_B3584 = V_WA2
def w3_block(slot): dma_block(slot, R_W3, V_B3584, 8*3584, 16*3584)
def ring_setup():
    A(f"""s_mul_i32 {s(S_RING)}, {s(S_W4)}, {RING_B}
    s_add_u32 {s(S_RING)}, {s(S_RING)}, {L_RING}
    s_lshl_b32 {s(S_SOFF)}, {s(S_J)}, 2
    s_add_u32 {s(S_SOFF)}, {s(S_SOFF)}, {s(S_W4)}
    s_lshl_b32 {s(S_SOFF)}, {s(S_SOFF)}, 7""")
BF, AF, ACC, CS4 = 32, 64, 96, 112
CSX = 120
TMP = 136
STAGES = [(0, 8), (8, 16), (16, 24), (24, 28)]

def stats_read():
    A(f"""v_lshl_add_u32 {v(V_A)}, {s(S_HI)}, 5, {v(V_T)}
    v_lshlrev_b32 {v(V_A)}, 3, {v(V_A)}
    v_add_u32 {v(V_A)}, {L_STATP}, {v(V_A)}
    ds_read_b64 {v(TMP,2)}, {v(V_A)}
    ds_read_b64 {v(TMP+2,2)}, {v(V_A)} offset:512""")
def stats_final(read=True):
    if read:
        stats_read(); A("s_waitcnt lgkmcnt(0)")
    A(f"""v_add_f32 {v(TMP)}, {v(TMP)}, {v(TMP+2)}
    v_add_f32 {v(TMP+1)}, {v(TMP+1)}, {v(TMP+3)}
    v_mul_f32 {v(V_M)}, {fh(1/448)}, {v(TMP)}
    v_mul_f32 {v(TMP+1)}, {fh(1/448)}, {v(TMP+1)}
    v_fma_f32 {v(TMP+1)}, -{v(V_M)}, {v(V_M)}, {v(TMP+1)}
    v_max_f32 {v(TMP+1)}, 0, {v(TMP+1)}
    v_add_f32 {v(TMP+2)}, {fh(1e-5)}, {v(TMP+1)}
    v_rsq_f32 {v(V_R)}, {v(TMP+2)}
    v_mul_f32 {v(TMP+1)}, {v(TMP+1)}, {v(V_R)}
    v_fmaak_f32 {v(TMP+1)}, {v(TMP+1)}, {v(V_R)}, {fh(1e-5)}
    v_rsq_f32 {v(TMP+1)}, {v(TMP+1)}
    v_mul_f32 {v(V_RR)}, {v(V_R)}, {v(TMP+1)}""")

def tile_steps(kind, barriers, hook=None):
    def rd(ks):
        if barriers and ks in (8, 16, 24): A("s_barrier")
        for ii in range(2):
            d = AF + 4*(ks % 8) + 2*ii
            if kind == "W": trread(d, V_WA, 2048*ks + 512*ii)
            elif kind == "Q" and ks < 24: trread(d, V_WA, (16*ks + ii) * 112)
            elif kind == "Q": trread(d, V_WA2, (16*(ks - 24) + ii) * 112)
            else: trread(d, V_WA, (16*ks + 4*ii) * 56)
        if ks >= 8: A(f"ds_read_b128 {v(BF+4*(ks % 8),4)}, {v(V_XB)} offset:{32*ks}")
    cnt = lambda ks: 2 + (ks >= 8)
    ahead = 4
    if barriers: stats_read()
    for ks in range(ahead): rd(ks)
    for ks in range(28):
        if barriers and ks == 2: stats_final(False)
        left = sum(cnt(x) for x in range(ks + 1, min(28, ks + ahead)))
        A(f"s_waitcnt lgkmcnt({left})")
        z = "0" if ks == 0 else None
        a, b = AF + 4*(ks % 8), BF + 4*(ks % 8)
        if kind == "V":
            mfma(ACC, b, a, z); mfma16(CS4, V_SEL, a, z)
        else:
            mfma(ACC, a, b, z); mfma16(CS4, a, V_SEL, z)
        if ks + ahead < 28: rd(ks + ahead)
        if hook: hook(ks)

def phaseA1(kind):
    for i in range(8):
        A(f"ds_read_b128 {v(BF+4*i,4)}, {v(V_XB)} offset:{32*i}")
    A("s_waitcnt lgkmcnt(0)\ns_barrier")
    tile_steps(kind, True)
    A(f"""v_lshlrev_b32 {v(V_A)}, 2, {v(V_T)}
    buffer_load_dword {v(V_DBG)}, {v(V_A)}, {srd(R_DBG)}, 0 offen offset:128 sc1""")

def center_scale(acc, csx, vscale):
    for i in range(16): A(f"v_fma_f32 {v(acc+i)}, -{v(V_M)}, {v(csx+i)}, {v(acc+i)}")
    for i in range(16): A(f"v_mul_f32 {v(acc+i)}, {v(acc+i)}, {v(vscale)}")
def pack16(src, dst):
    for k in range(8): A(f"v_cvt_pk_bf16_f32 {v(dst+k)}, {v(src+2*k)}, {v(src+2*k+1)}")
def zero_pad_dims(acc):
    exec_hi()
    for i in range(12, 16): A(f"v_mov_b32 {v(acc+i)}, 0")
    exec_all()
def norm2(acc, dst, t):
    A(f"v_mul_f32 {v(dst)}, {v(acc)}, {v(acc)}\nv_mul_f32 {v(t)}, {v(acc+1)}, {v(acc+1)}")
    for i in range(2, 16): A(f"v_fmac_f32 {v(dst if i % 2 == 0 else t)}, {v(acc+i)}, {v(acc+i)}")
    A(f"v_add_f32 {v(dst)}, {v(dst)}, {v(t)}")
    both_halves_sum(dst, t)
def flags_cleared(younger=0):
    l0, l1 = lab("dbg"), lab("dbgok")
    A(f"""s_getreg_b32 {s(S_LOC)}, hwreg(HW_REG_XCC_ID)
    s_and_b32 {s(S_LOC)}, {s(S_LOC)}, 15
    s_add_u32 {s(S_LOC)}, {s(S_LOC)}, 1
    v_lshlrev_b32 {v(V_A)}, 2, {v(V_T)}
    s_mov_b32 {s(S_SPIN)}, 0
    s_waitcnt vmcnt({younger})
    {l0}:
    v_cmp_eq_u32 vcc, 0, {v(V_DBG)}
    s_cbranch_vccz {l1}
    buffer_load_dword {v(V_DBG)}, {v(V_A)}, {srd(R_DBG)}, 0 offen offset:128 sc1
    s_waitcnt vmcnt(0)
    s_add_u32 {s(S_SPIN)}, {s(S_SPIN)}, 1
    s_cmp_gt_u32 {s(S_SPIN)}, {SPIN}
    s_cbranch_scc1 L_END
    s_branch {l0}
    {l1}:""")

XC = 232
X1 = 240
if OPT["sepflag"]:
    CLEAR = f"""buffer_store_dword {v(V_B)}, {v(V_A)}, {srd(R_WS)}, {s(S_FG)} offen sc1
    s_add_u32 {s(S_T1)}, {s(S_FG)}, 8192
    s_mov_b32 exec_hi, 0
    buffer_store_dword {v(V_B)}, {v(V_A)}, {srd(R_WS)}, {s(S_T1)} offen sc1
    s_mov_b32 exec_hi, -1"""
else:
    CLEAR = f"""s_mov_b32 exec_hi, 1
    buffer_store_dword {v(V_B)}, {v(V_A)}, {srd(R_WS)}, {s(S_FG)} offen sc1
    s_mov_b32 exec_hi, -1
    v_lshrrev_b32 {v(V_A)}, 3, {v(V_LANE)}
    v_lshlrev_b32 {v(V_A)}, 7, {v(V_A)}
    v_and_b32 {v(V_C)}, 7, {v(V_LANE)}
    v_lshl_add_u32 {v(V_A)}, {v(V_C)}, 2, {v(V_A)}
    buffer_store_dword {v(V_B)}, {v(V_A)}, {srd(R_WS)}, {s(S_FG)} offen offset:{F_M} sc1"""
A(f"""s_setprio {OPT['prio']}
v_mov_b32 {v(V_B)}, 0
s_cmp_eq_u32 {s(S_W4)}, 1
s_cbranch_scc0 L_g_nozero
v_lshl_add_u32 {v(V_A)}, {v(V_T)}, 2, {v(V_SY)}
ds_write_b32 {v(V_A)}, {v(V_B)}
L_g_nozero:
s_lshl_b32 {s(S_T0)}, {s(S_KV)}, 2
s_add_u32 {s(S_T0)}, {s(S_T0)}, {s(S_W4)}
s_cmp_eq_u32 {s(S_T0)}, 4
s_cbranch_scc0 L_g_noclear
v_lshlrev_b32 {v(V_A)}, 7, {v(V_LANE)}
{CLEAR}
L_g_noclear:""")
if OPT["codepf"]:
    A(f"""s_cmp_eq_u32 {s(S_W4)}, 2
    s_cbranch_scc0 L_nocode
    L_pc:
    s_getpc_b64 {s(S_T2,2)}
    s_lshr_b32 {s(S_T1)}, s2, 3
    s_lshl_b32 {s(S_T1)}, {s(S_T1)}, 3
    v_and_b32 {v(V_A)}, 7, {v(V_LANE)}
    v_add_u32 {v(V_A)}, {s(S_T1)}, {v(V_A)}
    v_lshlrev_b32 {v(V_A)}, 7, {v(V_A)}
    v_mov_b32 v25, {s(S_T3)}
    v_add_co_u32 v24, vcc, {s(S_T2)}, {v(V_A)}
    v_addc_co_u32 v25, vcc, 0, v25, vcc
    v_cmp_gt_u32 vcc, L_CODE_END-L_pc-128, {v(V_A)}
    s_and_b64 exec, vcc, 0xff
    s_cbranch_execz L_nocode
    global_load_dword {v(V_TCH)}, v[24:25], off sc1
    L_nocode:
    s_mov_b64 exec, -1""")
if OPT["tlb"]:
    l0 = lab("tlb")
    A(f"""s_cmp_eq_u32 {s(S_W4)}, 3
    s_cbranch_scc0 {l0}
    s_mov_b64 exec, 1
    v_mov_b32 {v(V_A)}, 0
    s_mov_b32 {s(S_T1)}, 0x7ff80
    buffer_load_dword {v(V_TCH)}, {v(V_A)}, {srd(R_WS)}, {s(S_T1)} offen sc1
    s_add_u32 {s(S_T1)}, {s(S_GB)}, {W_GBS - 128}
    buffer_load_dword {v(V_TCH)}, {v(V_A)}, {srd(R_WS)}, {s(S_T1)} offen sc1
    s_mul_i32 {s(S_T1)}, {s(S_G)}, {64*896}
    buffer_load_dword {v(V_TCH)}, {v(V_A)}, {srd(R_OUT)}, {s(S_T1)} offen sc1
    buffer_load_dword {v(V_TCH)}, {v(V_A)}, {srd(R_W2)}, 0 offen
    buffer_load_dword {v(V_TCH)}, {v(V_A)}, {srd(R_W3)}, 0 offen
    buffer_load_dword {v(V_TCH)}, {v(V_A)}, {srd(R_W4)}, 0 offen
    buffer_load_dword {v(V_TCH)}, {v(V_A)}, {srd(R_WO)}, 0 offen
    buffer_load_dword {v(V_TCH)}, {v(V_A)}, {srd(R_DBG)}, 0 offen sc1
    s_mov_b64 exec, -1
    {l0}:""")
common_addresses()
A(f"""v_lshl_add_u32 {v(V_D)}, {v(V_H)}, 3, {v(V_A)}
v_mul_u32_u24 {v(V_WA2)}, 56, {v(V_D)}
v_add_u32 {v(V_WA2)}, {v(V_WA2)}, {v(V_B)}
v_cmp_le_u32 vcc, 56, {v(V_B)}
v_lshl_add_u32 {v(V_TP)}, {v(V_D)}, 7, {v(V_B)}
v_lshlrev_b32 {v(V_A)}, 5, {v(V_A)}
v_and_b32 {v(V_A)}, 64, {v(V_A)}
v_add_u32 {v(V_TP)}, {v(V_TP)}, {v(V_A)}
v_cndmask_b32 {v(V_A)}, 0, 32, vcc
v_sub_u32 {v(V_WA2)}, {v(V_WA2)}, {v(V_A)}
s_lshl_b32 {s(S_T1)}, {s(S_LO)}, 6
v_xor_b32 {v(V_WA)}, {s(S_T1)}, {v(V_TP)}
v_add_u32 {v(V_WA)}, {L_S1}, {v(V_WA)}
s_mul_i32 {s(S_T1)}, {s(S_LO)}, 448
v_add_u32 {v(V_A)}, {s(S_T1)}, {v(V_XB)}
s_mov_b32 {s(S_C0)}, {fh(-2*0.7978845608028654*LOG2E)}
s_mov_b32 {s(S_C1)}, {fh(-2*0.7978845608028654*LOG2E*0.044715)}
s_mov_b32 {s(S_T3)}, {ONES}
v_mov_b32 v24, 0
v_mov_b32 v25, 0
v_mov_b32 v26, 0
v_mov_b32 v27, 0
s_cmp_eq_u32 {s(S_W4)}, 3
s_cbranch_scc0 L_g_wall
s_waitcnt vmcnt({8 if OPT["tlb"] else 0})
s_branch L_g_b1
L_g_wall:
s_waitcnt vmcnt(0) lgkmcnt(0)
s_cmp_eq_u32 {s(S_T0)}, 4
s_cbranch_scc0 L_g_b1
s_lshl_b32 {s(S_T1)}, {s(S_G)}, 2
s_mov_b64 exec, 1
buffer_store_dword {v(V_ONE)}, v24, {srd(R_DBG)}, {s(S_T1)} offen offset:128 sc1
s_mov_b64 exec, -1
L_g_b1:
s_barrier""")
stamp("x_landed")
for i in range(14):
    A(f"ds_read_b128 {v(32+4*i,4)}, {v(V_A)} offset:{32*i}")
for i in range(14):
    A(f"s_waitcnt lgkmcnt({13-i})")
    for d in range(4):
        r_ = 32 + 4*i + d
        A(f"v_dot2_f32_bf16 {v(24+(d&1))}, {v(r_)}, {s(S_T3)}, {v(24+(d&1))}")
        A(f"v_dot2_f32_bf16 {v(26+(d&1))}, {v(r_)}, {v(r_)}, {v(26+(d&1))}")
A(f"""v_lshl_add_u32 {v(V_B)}, {s(S_HI)}, 5, {v(V_T)}
v_lshlrev_b32 {v(V_B)}, 3, {v(V_B)}
v_lshl_add_u32 {v(V_B)}, {v(V_H)}, 2, {v(V_B)}
s_lshl_b32 {s(S_T2)}, {s(S_LO)}, 9
s_add_u32 {s(S_T2)}, {s(S_T2)}, {L_STATP}
v_add_u32 {v(V_B)}, {s(S_T2)}, {v(V_B)}
v_add_f32 v24, v24, v25
v_add_f32 v26, v26, v27""")
swap_sum2(24, 26)
A(f"""ds_write_b32 {v(V_B)}, v24
s_cmp_eq_u32 {s(S_KV)}, 1
s_cbranch_scc1 L_g_kv""")
phaseA1("W")
stamp("G_gemm1")
A(f"""s_lshl_b32 {s(S_T1)}, {s(S_J)}, 1
s_add_u32 {s(S_T1)}, {s(S_T1)}, {s(S_LO)}
s_lshl_b32 {s(S_T2)}, {s(S_T1)}, 6
v_lshlrev_b32 {v(V_A)}, 3, {v(V_H)}
v_sub_u32 {v(V_A)}, {v(V_XB)}, {v(V_A)}
v_add_u32 {v(V_A)}, {s(S_T2)}, {v(V_A)}""")
for jj in range(4): A(f"ds_read_b64 {v(XC+2*jj,2)}, {v(V_A)} offset:{16*jj}")
colsum_spread(CS4, CSX, V_A)
lds_arrive(SY_GBAR)
center_scale(ACC, CSX, V_RR)
A(f"v_mov_b32 {v(V_D)}, {s(S_C0)}")
gelu16(ACC, 16, TMP)
pack16(ACC, TMP)
V_CH = V_XB
A(f"""v_lshlrev_b32 {v(V_CH)}, 4, {v(V_T)}
v_lshl_add_u32 {v(V_CH)}, {v(V_H)}, 10, {v(V_CH)}
s_lshl_b32 {s(S_T1)}, {s(S_T1)}, 12
s_lshl_b32 {s(S_T2)}, {s(S_HI)}, 9
s_add_u32 {s(S_T1)}, {s(S_T1)}, {s(S_T2)}
s_add_u32 {s(S_N0)}, {s(S_T1)}, {s(S_GB)}""")
def store_chunks(src8, region, flag):
    A(f"""s_add_u32 {s(S_T1)}, {s(S_N0)}, {region}
    buffer_store_dwordx4 {v(src8,4)}, {v(V_CH)}, {srd(R_WS)}, {s(S_T1)} offen {flag}
    buffer_store_dwordx4 {v(src8+4,4)}, {v(V_CH)}, {srd(R_WS)}, {s(S_T1)} offen offset:2048 {flag}""")
def packed_to_chunks(p8):
    for a_ in range(2):
        for d in range(2):
            A(f"v_permlane32_swap_b32 {v(p8+4*a_+d)}, {v(p8+4*a_+2+d)}")
packed_to_chunks(TMP)
store_chunks(TMP, G_H, "sc1")
def slice_pieces(rsrc, lds, idx):
    A(f"""s_lshl_b32 {s(S_T0)}, {s(S_W4)}, 10
    s_mul_i32 {s(S_T2)}, {s(S_W4)}, {8*896}
    s_lshl_b32 {s(S_T1)}, {s(S_J)}, 7
    s_add_u32 {s(S_T2)}, {s(S_T2)}, {s(S_T1)}""")
    for i in idx:
        A(f"""s_add_u32 m0, {s(S_T0)}, {lds + 4096*i}
        s_add_u32 {s(S_T1)}, {s(S_T2)}, {32*896*i}
        buffer_load_dwordx4 {v(V_B896)}, {srd(rsrc)}, {s(S_T1)} offen lds""")
HA, HB_, HFL = 24, 25, 26
A(f"""s_lshl_b32 {s(S_T1)}, {s(S_G)}, 6
s_lshl_b32 {s(S_T2)}, {s(S_HI)}, 5
s_add_u32 {s(S_T1)}, {s(S_T1)}, {s(S_T2)}
s_add_u32 {s(S_T2)}, {s(S_LO)}, 1
s_sub_u32 {s(S_T3)}, {s(S_T1)}, {s(S_T2)}
s_add_u32 {s(S_T1)}, {s(S_T1)}, {s(S_T2)}
s_mov_b32 {s(S_T2)}, {W_GBS}""")
for dst, sb in ((HA, S_T3), (HB_, S_T1)):
    A(f"""v_add_u32 {v(V_B)}, {s(sb)}, {v(V_T)}
    v_cmp_gt_u32 vcc, 2048, {v(V_B)}
    v_lshrrev_b32 {v(V_C)}, 6, {v(V_B)}
    v_and_b32 {v(V_B)}, 63, {v(V_B)}
    v_mul_lo_u32 {v(V_C)}, {v(V_C)}, {s(S_T2)}
    v_lshl_add_u32 {v(V_C)}, {v(V_B)}, 4, {v(V_C)}
    v_lshl_add_u32 {v(V_C)}, {v(V_H)}, 10, {v(V_C)}
    v_mov_b32 {v(V_B)}, {OOB}
    v_cndmask_b32 {v(dst)}, {v(V_B)}, {v(V_C)}, vcc""")
A(f"""v_lshrrev_b32 {v(V_A)}, 3, {v(V_LANE)}
v_mul_u32_u24 {v(V_B)}, 3, {v(V_A)}
v_lshrrev_b32 {v(V_B)}, 1, {v(V_B)}
v_add_u32 {v(V_B)}, -2, {v(V_B)}
v_cmp_eq_u32 vcc, 0, {v(V_A)}
v_cndmask_b32 {v(V_B)}, {v(V_B)}, 0, vcc
v_add_u32 {v(V_B)}, {s(S_G)}, {v(V_B)}
v_mov_b32 {v(V_C)}, {s(S_G)}
v_cmp_gt_u32 vcc, 32, {v(V_B)}
v_cndmask_b32 {v(V_B)}, {v(V_C)}, {v(V_B)}, vcc
v_mul_u32_u24 {v(V_B)}, {FLAG_GS}, {v(V_B)}
v_and_b32 {v(V_A)}, 7, {v(V_LANE)}
v_lshl_add_u32 {v(HFL)}, {v(V_A)}, 7, {v(V_B)}""")
blk_voffset(V_B3584, 3584)
def h_flag():
    A(f"""v_mov_b32 {v(V_B)}, {s(S_LOC)}
    buffer_store_dword {v(V_B)}, {v(V_A)}, {srd(R_WS)}, {s(S_T3)} offen sc1""")
flags_cleared()
signal_last(SY_CH, F_H, V_A, emit=h_flag)
stamp("G_hpub")
if OPT["noG"]:
    A(f"v_mov_b32 {v(V_B)}, 0\nds_write_b32 {v(V_SY)}, {v(V_B)} offset:{SY_LOC}")
    lds_arrive(SY_X1D)
    stamp("G_end", True)
    A("s_endpgm")
ring_setup()
A(f"s_add_u32 {s(S_SOFF)}, {s(S_SOFF)}, {8*16*3584}")
def decide_local():
    A(f"""s_mov_b64 exec, 0xff
    v_cmp_ne_u32 vcc, {s(S_LOC)}, {v(V_B)}
    s_mov_b64 exec, -1
    s_cmp_eq_u64 vcc, 0
    s_cselect_b32 {s(S_LOC)}, 1, 0
    v_mov_b32 {v(V_B)}, {s(S_LOC)}
    ds_write_b32 {v(V_SY)}, {v(V_B)} offset:{SY_LOC}""")

def h_poll():
    poll_flags(HFL, "0", 24, V_B)
    decide_local()
one_poller(SY_OK, h_poll)
stamp("G_hflags")
KB = 32
AM, AO, KA = 88, 104, 120
def ksplit_loads(addr_lo, addr_hi, sbase):
    for i in range(14):
        if i % 2 == 0:
            A(f"s_add_u32 {s(S_T2)}, {s(sbase)}, {2048*i}")
        A(f"buffer_load_dwordx4 {v(KB+4*i,4)}, {v(addr_lo if i < 7 else addr_hi)}, {srd(R_WS)}, {s(S_T2)} offen offset:{2048*(i%2)} sc1")
KA3 = 200
def ksplit_mm():
    A(f"""s_mul_i32 {s(S_T1)}, {s(S_LO)}, {14*2048}
    s_lshl_b32 {s(S_T2)}, {s(S_LO)}, 6
    v_xor_b32 {v(V_A)}, {s(S_T2)}, {v(V_TP)}
    v_xor_b32 {v(V_B)}, 64, {v(V_A)}
    v_add_u32 {v(V_A)}, {s(S_T1)}, {v(V_A)}
    v_add_u32 {v(V_B)}, {s(S_T1)}, {v(V_B)}""")
    kset = lambda i: (KA, KA + 8, KA3)[i % 3]
    def rd(i):
        b = kset(i)
        trread(b, V_A, 2048*i); trread(b + 2, V_A, 2048*i + 512)
        trread(b + 4, V_B, 2048*i); trread(b + 6, V_B, 2048*i + 512)
    rd(0); rd(1)
    for i in range(14):
        if i < 12: rd(i + 2)
        A(f"s_waitcnt vmcnt({13 - i}) lgkmcnt({4 * min(2, 13 - i)})")
        z = "0" if i == 0 else None
        b = kset(i)
        mfma(AO, b + 4, KB + 4*i, z); mfma(AM, b, KB + 4*i, z)
def pair_reduce():
    A(f"""v_add_u32 {v(V_A)}, {s(S_RING)}, {v(V_L16)}
    s_xor_b32 {s(S_T1)}, {s(S_W4)}, 1
    s_mul_i32 {s(S_T2)}, {s(S_T1)}, {RING_B}
    s_add_u32 {s(S_T2)}, {s(S_T2)}, {L_RING}
    v_add_u32 {v(V_B)}, {s(S_T2)}, {v(V_L16)}
    v_lshl_add_u32 {v(V_C)}, {s(S_W4)}, 2, {v(V_SY)}
    v_lshl_add_u32 {v(V_D)}, {s(S_T1)}, 2, {v(V_SY)}""")
    for q in range(4):
        A(f"ds_write_b128 {v(V_A)}, {v(AO+4*q,4)} offset:{1024*q}")
    A(f"""s_mov_b64 exec, 1
    ds_add_u32 {v(V_C)}, {v(V_ONE)} offset:{SY_PF}
    s_mov_b64 exec, -1""")
    lds_wait(SY_PF, 1, V_C, V_D)
    for q in range(4):
        A(f"ds_read_b128 {v(AO+4*q,4)}, {v(V_B)} offset:{1024*q}")
    for q in range(4):
        A(f"s_waitcnt lgkmcnt({3-q})")
        for i in range(4): A(f"v_add_f32 {v(AM+4*q+i)}, {v(AM+4*q+i)}, {v(AO+4*q+i)}")
A(f"s_mul_i32 {s(S_T1)}, {s(S_LO)}, {28*1024}\ns_add_u32 {s(S_T1)}, {s(S_T1)}, {W_GB0 + G_H}")
ksplit_loads(HA, HB_, S_T1)
if OPT["fine"] > 1: stamp("g2_issued")
A(f"ds_read_b32 {v(V_B)}, {v(V_SY)} offset:{SY_LOC}\ns_waitcnt lgkmcnt(0)\nv_readfirstlane_b32 {s(S_LOC)}, {v(V_B)}")
RW, GA, GBf, GACC = 136, 32, 48, 64
V_TR0, V_TR1 = 27, 28
A(f"""v_add_u32 {v(V_TR0)}, {s(S_RING)}, {v(V_TP)}
v_xor_b32 {v(V_TR1)}, 64, {v(V_TR0)}""")
def blk_reads(dst, slot, second):
    trread(dst, V_TR0, 2048*slot); trread(dst + 2, V_TR0, 2048*slot + second)
    trread(dst + 4, V_TR1, 2048*slot); trread(dst + 6, V_TR1, 2048*slot + second)
def to_regs(slots, second):
    for i, sl in enumerate(slots):
        blk_reads(RW + 8*i, sl, second)
        if i % 2 == 1: A("s_waitcnt lgkmcnt(4)")
    A("s_waitcnt lgkmcnt(0)")
lds_wait(SY_W2, 4, V_C)
if OPT["fine"] > 1: stamp("g2_w2ok")
if OPT["r1mode"] == 0: to_regs(range(4, 12), 512)
ksplit_mm()
if OPT["fine"] > 1: stamp("g2_mm")
pair_reduce()
stamp("G_gemm2")
TX = 200
A(f"v_mul_f32 {v(V_A)}, {v(V_M)}, {v(V_R)}")
for i in range(16): A(f"v_sub_f32 {v(AM+i)}, {v(AM+i)}, {v(V_A)}")
for k in range(8):
    A(f"v_lshlrev_b32 {v(TX+2*k)}, 16, {v(XC+k)}\nv_and_b32 {v(TX+2*k+1)}, 0xffff0000, {v(XC+k)}")
for i in range(16): A(f"v_fma_f32 {v(X1+i)}, {v(TX+i)}, {v(V_R)}, {v(AM+i)}")
pack16(X1, TX)
packed_to_chunks(TX)
by_mode(lambda f: store_chunks(TX, G_X1, f))
A(f"v_add_f32 {v(V_A)}, {v(X1)}, {v(X1+1)}\nv_mul_f32 {v(V_B)}, {v(X1)}, {v(X1)}\nv_mul_f32 {v(V_C)}, {v(X1+1)}, {v(X1+1)}\nv_add_f32 {v(V_D)}, {v(X1+2)}, {v(X1+3)}")
for i in range(2, 16):
    if i >= 4:
        A(f"v_add_f32 {v(V_A if i % 2 == 0 else V_D)}, {v(V_A if i % 2 == 0 else V_D)}, {v(X1+i)}")
    A(f"v_fmac_f32 {v(V_B if i % 2 == 0 else V_C)}, {v(X1+i)}, {v(X1+i)}")
A(f"v_add_f32 {v(V_A)}, {v(V_A)}, {v(V_D)}\nv_add_f32 {v(V_B)}, {v(V_B)}, {v(V_C)}")
V_STA = 26
A(f"""v_lshlrev_b32 {v(V_STA)}, 4, {v(V_T)}
v_lshl_add_u32 {v(V_STA)}, {v(V_H)}, 11, {v(V_STA)}
s_lshr_b32 {s(S_T1)}, {s(S_J)}, 1
s_lshl_b32 {s(S_T1)}, {s(S_T1)}, 9
s_and_b32 {s(S_T2)}, {s(S_J)}, 1
s_lshl_b32 {s(S_T2)}, {s(S_T2)}, 1
s_add_u32 {s(S_T2)}, {s(S_T2)}, {s(S_LO)}
s_lshl_b32 {s(S_T2)}, {s(S_T2)}, 2
s_add_u32 {s(S_T1)}, {s(S_T1)}, {s(S_T2)}
s_lshl_b32 {s(S_T2)}, {s(S_HI)}, 12
s_add_u32 {s(S_T1)}, {s(S_T1)}, {s(S_T2)}
s_add_u32 {s(S_T1)}, {s(S_T1)}, {s(S_GB)}
s_add_u32 {s(S_T1)}, {s(S_T1)}, {G_ST}""")
swap_sum2(V_A, V_B)
by_mode(lambda f: A(f"buffer_store_dword {v(V_A)}, {v(V_STA)}, {srd(R_WS)}, {s(S_T1)} offen {f}"))
vq = VMQ()
slot3 = lambda b: (b - 8) % 12
def w3_next(b):
    w3_block(slot3(b)); vq.issue(("w3", b), 2)
signal_last(SY_CX1, F_X1, V_A)
stamp("G_x1pub")
one_poller(SY_OK + 4, lambda: poll_group(F_X1, 7, V_A, V_B))
stamp("G_x1flags")
STL = 32
A(f"""s_lshl_b32 {s(S_T1)}, {s(S_HI)}, 12
s_lshl_b32 {s(S_T2)}, {s(S_LO)}, 10
s_add_u32 {s(S_T1)}, {s(S_T1)}, {s(S_T2)}
s_add_u32 {s(S_T1)}, {s(S_T1)}, {s(S_GB)}
s_add_u32 {s(S_T1)}, {s(S_T1)}, {G_ST}
buffer_load_dwordx4 {v(STL,4)}, {v(V_STA)}, {srd(R_WS)}, {s(S_T1)} offen sc1
buffer_load_dwordx4 {v(STL+4,4)}, {v(V_STA)}, {srd(R_WS)}, {s(S_T1)} offen offset:512 sc1
s_mul_i32 {s(S_T2)}, {s(S_W4)}, 7168
s_add_u32 {s(S_T3)}, {s(S_T2)}, {s(S_GB)}""")
vq.issue("st", 2)
for hf in range(2):
    for i in range(7):
        if i % 4 == 0:
            A(f"s_add_u32 m0, {s(S_T2)}, {28672*hf + 1024*i}\ns_add_u32 {s(S_T1)}, {s(S_T3)}, {G_X1 + 28672*hf + 1024*i}")
        A(f"buffer_load_dwordx4 {v(V_L16)}, {srd(R_WS)}, {s(S_T1)} offen offset:{1024*(i%4)} sc1 lds")
    vq.issue(("x1", hf), 7)
l0 = lab("pq")
A(f"""s_lshl_b32 {s(S_T1)}, {s(S_W4)}, 8
s_add_u32 {s(S_T1)}, {s(S_T1)}, {L_STX}
v_lshl_add_u32 {v(V_A)}, {v(V_LANE)}, 2, {s(S_T1)}""")
vq.wait("st")
A(f"""s_cmp_eq_u32 {s(S_LO)}, 0
s_cbranch_scc1 {l0}
v_mov_b32 {v(STL+6)}, 0
v_mov_b32 {v(STL+7)}, 0
{l0}:""")
for w_ in (4, 2, 1):
    for i in range(w_): A(f"v_add_f32 {v(STL+i)}, {v(STL+i)}, {v(STL+w_+i)}")
A(f"ds_write_b32 {v(V_A)}, {v(STL)}")
vq.wait(("x1", 0))
lds_arrive(SY_GBAR)
S_CS = S_RANK
A(f"""s_lshl_b32 {s(S_CS)}, {s(S_J)}, 2
s_add_u32 {s(S_CS)}, {s(S_CS)}, {s(S_W4)}
s_mul_i32 {s(S_NN)}, {s(S_CS)}, {FLAG_GS}
s_add_u32 {s(S_NN)}, {s(S_NN)}, {F_X1 + 7*128}
s_lshl_b32 {s(S_CS)}, {s(S_CS)}, 8
s_add_u32 {s(S_CS)}, {s(S_CS)}, {W_CS}
v_mov_b32 v29, 0
buffer_load_dword v19, v29, {srd(R_WS)}, {s(S_NN)} offen sc1""")
vq.issue("cschk")
lds_wait(SY_ABAR, 20, V_C)
for b in range(8, 12): w3_next(b)
lds_wait(SY_R1, 4, V_C)
to_regs(range(4, 12), 512)
M1, R1, C0R, C1R = (24, 25), (30, 31), (5, 6), (7, 9)
S_HB, S_P = S_PASS, S_NF
A(f"""v_lshlrev_b32 {v(V_A)}, 2, {v(V_LANE)}
v_add_u32 {v(V_A)}, {L_STX}, {v(V_A)}""")
lds_wait(SY_GBAR, 8, V_C)
stamp("G_x1landed")
ST2 = 128
for q in range(4): A(f"ds_read_b32 {v(ST2+q)}, {v(V_A)} offset:{256*q}")
def x1_reads(ks):
    b = GBf + 8*(ks % 2)
    A(f"ds_read_b128 {v(b,4)}, {v(V_CH)} offset:{2048*ks}\nds_read_b128 {v(b+4,4)}, {v(V_CH)} offset:{2048*ks + 512}")
def row_constants():
    for tt in range(2):
        b = ST2 + 2*tt
        A(f"""v_add_f32 {v(b)}, {v(b)}, {v(b+1)}
        v_mul_f32 {v(b)}, {fh(1/448)}, {v(b)}
        v_mov_b32 {v(b+1)}, {v(b)}
        v_permlane32_swap_b32 {v(b)}, {v(b+1)}
        v_mov_b32 {v(M1[tt])}, {v(b)}
        v_fma_f32 {v(b+1)}, -{v(b)}, {v(b)}, {v(b+1)}
        v_max_f32 {v(b+1)}, 0, {v(b+1)}
        v_add_f32 {v(b+1)}, {fh(1e-5)}, {v(b+1)}
        v_rsq_f32 {v(R1[tt])}, {v(b+1)}
        v_mul_f32 {v(C0R[tt])}, {s(S_C0)}, {v(R1[tt])}
        v_mul_f32 {v(b)}, {v(R1[tt])}, {v(R1[tt])}
        v_mul_f32 {v(b)}, {v(b)}, {v(R1[tt])}
        v_mul_f32 {v(C1R[tt])}, {s(S_C1)}, {v(b)}""")
def step_of(c):
    return (c // 2, 0, c % 2) if c < 4 else ((c - 4) // 12, 1 + ((c - 4) % 12) // 2, c % 2)
def producer(d, dst):
    A(f"""s_add_u32 {s(dst)}, {s(S_J)}, {d}
    s_cmp_ge_u32 {s(dst)}, 7
    s_cselect_b32 {s(S_T4)}, 7, 0
    s_sub_u32 {s(dst)}, {s(dst)}, {s(S_T4)}""")
slot4 = lambda c: (c + 8) % 12
def w4_parts(c):
    be, d, mm = step_of(c)
    hv = dma_halves(slot4(c), R_W4, V_B896, 8*896, 16*896)
    def first():
        if mm == 0:
            producer(d, S_SOFF)
            A(f"s_mul_i32 {s(S_SOFF)}, {s(S_SOFF)}, {256*896}\ns_add_u32 {s(S_SOFF)}, {s(S_SOFF)}, {s(S_CNT)}")
            if be: A(f"s_add_u32 {s(S_SOFF)}, {s(S_SOFF)}, {32*896}")
        A(hv[0]); vq.issue(("w4", c))
    def second():
        A(hv[1]); vq.issue(("w4", c))
    return [first, second]
def w3_parts(b):
    hv = dma_halves(slot3(b), R_W3, V_B3584, 8*3584, 16*3584)
    return [lambda: (A(hv[0]), vq.issue(("w3", b))), lambda: (A(hv[1]), vq.issue(("w3", b)))]
def blk_read_list(dst, slot, second):
    return [f"ds_read_b64_tr_b16 {v(dst + 4*u + 2*ii, 2)}, {v(V_TR1 if u else V_TR0)} offset:{2048*slot + second*ii}" for u in range(2) for ii in range(2)]
def check_flags(tag, vreg, vaddr, soff_plus, nlanes):
    l0 = lab("ok")
    vq.wait(tag)
    A(f"""s_mov_b64 exec, {hex((1 << nlanes) - 1)}
    v_cmp_eq_u32 vcc, 0, {v(vreg)}
    s_mov_b64 exec, -1
    s_add_u32 {s(S_T3)}, {s(S_NN)}, {soff_plus}
    s_cbranch_vccz {l0}""")
    poll_flags(vaddr, s(S_T3), nlanes, vreg)
    A(f"{l0}:")
A(f"""s_mul_i32 {s(S_CNT)}, {s(S_W4)}, {64*896}
s_lshl_b32 {s(S_T1)}, {s(S_J)}, 7
s_add_u32 {s(S_CNT)}, {s(S_CNT)}, {s(S_T1)}""")
CSV = HP = 200
A(f"s_setprio {OPT['p3']}")
x1_reads(0)
for ks in range(28):
    nxt = ks + 1
    reads = []
    if nxt < 28:
        bn = GBf + 8*(nxt % 2)
        reads = [f"ds_read_b128 {v(bn,4)}, {v(V_CH)} offset:{2048*nxt}", f"ds_read_b128 {v(bn+4,4)}, {v(V_CH)} offset:{2048*nxt + 512}"]
        if nxt >= 8: reads = blk_read_list(GA + 8*(nxt % 2), slot3(nxt), 512) + reads
    parts = w3_parts(ks + 12) if ks + 12 < 28 else w4_parts(ks - 16)
    if ks == 12: lds_wait(SY_GBAR, 12, V_C)
    if 8 <= nxt < 28: vq.wait(("w3", nxt), extra="lgkmcnt(0)")
    else: A("s_waitcnt lgkmcnt(0)")
    a = RW + 8*ks if ks < 8 else GA + 8*(ks % 2)
    b = GBf + 8*(ks % 2)
    z = "0" if ks == 0 else None
    mfma(GACC, a, b, z)
    for r_ in reads[:3]: A(r_)
    mfma(GACC + 16, a, b + 4, z)
    for r_ in reads[3:]: A(r_)
    if ks == 0:
        vq.wait(("x1", 1)); lds_arrive(SY_GBAR)
    mfma(GACC + 32, a + 4, b, z)
    parts[0]()
    mfma(GACC + 48, a + 4, b + 4, z)
    parts[1]()
    if ks == 5:
        check_flags("cschk", 19, 29, 0, 1)
        A(f"v_lshlrev_b32 {v(V_A)}, 4, {v(V_H)}")
    if 5 <= ks < 13:
        q = ks - 5
        A(f"buffer_load_dwordx4 {v(CSV+4*q,4)}, {v(V_A)}, {srd(R_WS)}, {s(S_CS)} offen offset:{32*q} sc1")
        vq.issue("cs")
    if ks == 1: row_constants()
    if OPT["g4st"] and ks in (4, 7, 15): stamp(f"k{ks}")
lds_arrive(SY_X1D)
A(f"s_setprio {OPT['pg']}")
stamp("G_g3mm")
GT = 32
HBLK = 4096 + OPT["hpad"]
FSH, FBE = (7, 1024) if OPT["sepflag"] else (2, 128)
A(f"""v_lshlrev_b32 {v(V_A)}, 9, {v(V_H)}
v_sub_u32 {v(V_TR0)}, {v(V_TR0)}, {v(V_A)}
v_xor_b32 {v(V_TR1)}, 64, {v(V_TR0)}
s_mul_i32 {s(S_HB)}, {s(S_W4)}, {2*HBLK}
s_add_u32 {s(S_HB)}, {s(S_HB)}, {s(S_GB)}
s_add_u32 {s(S_HB)}, {s(S_HB)}, {G_HH}
s_mul_i32 {s(S_NN)}, {s(S_W4)}, {2*FBE}
s_add_u32 {s(S_NN)}, {s(S_NN)}, {s(S_FG)}
s_add_u32 {s(S_NN)}, {s(S_NN)}, {F_M}
v_lshlrev_b32 v29, {FSH}, {v(V_LANE)}""")
hp = lambda be, mm: HP + 16*be + 8*mm
def center(be):
    for tt in range(2):
        for i in range(16): A(f"v_fma_f32 {v(GACC+32*be+16*tt+i)}, -{v(M1[tt])}, {v(CSV+16*be+i)}, {v(GACC+32*be+16*tt+i)}")
def gelu_tile(be, tt, fill=()):
    acc = GACC + 32*be + 16*tt
    ops = []
    ops += [f"v_mul_f32 {v(GT+i)}, {v(acc+i)}, {v(acc+i)}" for i in range(16)]
    ops += [f"v_fma_f32 {v(GT+i)}, {v(GT+i)}, {v(C1R[tt])}, {v(C0R[tt])}" for i in range(16)]
    ops += [f"v_mul_f32 {v(GT+i)}, {v(GT+i)}, {v(acc+i)}" for i in range(16)]
    ops += [f"v_exp_f32 {v(GT+i)}, {v(GT+i)}" for i in range(16)]
    ops += [f"v_add_f32 {v(GT+i)}, 1.0, {v(GT+i)}" for i in range(16)]
    ops += [f"v_rcp_f32 {v(GT+i)}, {v(GT+i)}" for i in range(16)]
    ops += [f"v_mul_f32 {v(acc+i)}, {v(acc+i)}, {v(GT+i)}" for i in range(16)]
    ops += [f"v_cvt_pk_bf16_f32 {v(hp(be, k // 4) + 4*tt + k % 4)}, {v(acc+2*k)}, {v(acc+2*k+1)}" for k in range(8)]
    fill = list(fill)
    every = len(ops) // (len(fill) + 1)
    for i, o in enumerate(ops):
        A(o)
        if fill and (i + 1) % every == 0: fill.pop(0)()
    assert not fill
def h_stores(be):
    A(f"s_mul_i32 {s(S_T1)}, {s(S_J)}, {8*HBLK}\ns_add_u32 {s(S_T1)}, {s(S_T1)}, {s(S_HB)}")
    if be: A(f"s_add_u32 {s(S_T1)}, {s(S_T1)}, {HBLK}")
    def em(f):
        for mm in range(2):
            for tt in range(2):
                A(f"buffer_store_dwordx4 {v(hp(be, mm) + 4*tt,4)}, {v(V_L16)}, {srd(R_WS)}, {s(S_T1)} offen offset:{2048*mm + 1024*tt} {f}")
    by_mode(em, OPT["hflag"] > 0, "nt" if OPT["hflag"] == 1 else "")
    vq.issue(("st", be), 4)
def m_flag(be):
    vq.wait(("st", be))
    A(f"s_lshl_b32 {s(S_T1)}, {s(S_J)}, {FSH}\nv_mov_b32 {v(V_A)}, {s(S_T1)}\ns_mov_b64 exec, 1")
    by_mode(lambda f: A(f"buffer_store_dword {v(V_ONE)}, {v(V_A)}, {srd(R_WS)}, {s(S_NN)} offen offset:{FBE*be} {f}"), OPT["hflag"] > 0, "")
    exec_all()
    vq.issue(("fl", be))
def m_probe(be):
    A(f"s_mov_b64 exec, 0x7f\nbuffer_load_dword v19, v29, {srd(R_WS)}, {s(S_NN)} offen offset:{FBE*be} sc1\ns_mov_b64 exec, -1")
    vq.issue(("chk", be))
free_sets = [48, 56, 128]
pending = list(range(4, 28))
bset = {c: hp(c // 2, c % 2) for c in range(4)}
allow = [16]
done_b = set()
def b_parts(limit):
    out = []
    while pending and free_sets and pending[0] <= limit and pending[0] < allow[0]:
        c = pending.pop(0); r_ = free_sets.pop(0); bset[c] = r_
        def one(c, r_, tt):
            be, d, mm = step_of(c)
            if mm == 0 and tt == 0:
                producer(d, S_P)
                A(f"s_mul_i32 {s(S_P)}, {s(S_P)}, {8*HBLK}\ns_add_u32 {s(S_P)}, {s(S_P)}, {s(S_HB)}")
                if be: A(f"s_add_u32 {s(S_P)}, {s(S_P)}, {HBLK}")
            A(f"buffer_load_dwordx4 {v(r_+4*tt,4)}, {v(V_L16)}, {srd(R_WS)}, {s(S_P)} offen offset:{2048*mm + 1024*tt} sc1")
            vq.issue(("B", c))
        out += [lambda c=c, r_=r_, tt=tt: one(c, r_, tt) for tt in range(2)]
    return out
def regs_parts(slots):
    def one(i, sl):
        blk_reads(RW + 8*i, sl, 1024)
    return [lambda i=i, sl=sl: one(i, sl) for i, sl in enumerate(slots)]
vq.wait("cs")
center(0)
gelu_tile(0, 0)
gelu_tile(0, 1, [lambda: vq.wait(("w4", 7))] + regs_parts([slot4(c) for c in range(8)]))
h_stores(0)
A("s_waitcnt lgkmcnt(0)")
center(1)
w4q = [p_ for c in range(12, 20) for p_ in w4_parts(c)]
gelu_tile(1, 0, w4q[:3] + [lambda: m_flag(0)] + w4q[3:8] + [lambda: m_probe(0)])
def chk0():
    check_flags(("chk", 0), 19, 29, 0, 7)
bq = b_parts(6)
gelu_tile(1, 1, w4q[8:10] + [chk0] + [x for pair in zip(bq, w4q[10:]) for x in pair])
stamp("G_gemm3")
A(f"s_setprio {OPT['p4']}")
h_stores(1)
LOOK = OPT['look']
queue = []
for c in range(28):
    nxt = c + 1
    reads = blk_read_list(GA + 8*(nxt % 2), slot4(nxt), 1024) if 8 <= nxt < 28 else []
    tags = [("B", c)] + ([("w4", nxt)] if reads else [])
    vq.wait(*tags, extra="lgkmcnt(0)" if c >= 8 else "")
    a = RW + 8*c if c < 8 else GA + 8*(c % 2)
    b = bset[c]
    z = "0" if c == 0 else None
    if c == 2: queue.insert(0, lambda: m_flag(1))
    if c == OPT["chk1"] - 2: queue.insert(0, lambda: m_probe(1))
    if 8 <= c < 16: queue += w4_parts(c + 12)
    slots_ = [(GACC, a, b), (GACC + 16, a, b + 4), (GACC + 32, a + 4, b), (GACC + 48, a + 4, b + 4)]
    for i, (d_, a_, b_) in enumerate(slots_):
        mfma(d_, a_, b_, z)
        if i < 2:
            for r_ in reads[2*i:2*i+2]: A(r_)
        if i == 0 and c == OPT["chk1"]:
            check_flags(("chk", 1), 19, 29, FBE, 7)
            allow[0] = 28
            queue += b_parts(c + LOOK)
        for _ in range(2 if len(queue) > 8 - 2*i else 1):
            if queue: queue.pop(0)()
    while queue and any(("B", x) not in vq.q and x not in done_b and x >= 4 and x in bset for x in (nxt, nxt + 1)): queue.pop(0)()
    done_b.add(c)
    if c < 8: free_sets.append(a)
    if c != 2 and c != 3: free_sets.append(b)
    if c == 3: free_sets.extend([bset[2], bset[3]])
    queue += b_parts(c + LOOK)
    if OPT["g4st"] and c in (1, 4, 7, 10, 12, 15, 19, 23): stamp(f"c{c}")
assert not queue and not pending
stamp("G_gemm4")
lbls = [lab("gr") for _ in range(4)]
l_done = lab("grd")
OT4 = 136
A(f"v_add_u32 {v(V_A)}, {s(S_RING)}, {v(V_L16)}\ns_nop 9")
for w_ in range(4):
    A(f"{lbls[w_]}:")
    if w_ < 3:
        A(f"s_cmp_lg_u32 {s(S_W4)}, {w_}\ns_cbranch_scc1 {lbls[w_+1]}")
    tile = lambda u: GACC + 32*(u & 1) + 16*(u >> 1)
    for u in range(4):
        if u == w_: continue
        for k in range(4):
            A(f"ds_write_b128 {v(V_A)}, {v(tile(u)+4*k,4)} offset:{4096*u + 1024*k}")
    for i in range(16): A(f"v_mov_b32 {v(OT4+i)}, {v(tile(w_)+i)}")
    A(f"v_mov_b32 {v(V_D)}, {v(R1[w_ >> 1])}")
    if w_ < 3: A(f"s_branch {l_done}")
A(f"{l_done}:")
lds_arrive(SY_GBAR)
for u in range(1, 4):
    A(f"""s_add_u32 {s(S_T1)}, {s(S_W4)}, {u}
    s_and_b32 {s(S_T1)}, {s(S_T1)}, 3
    s_mul_i32 {s(S_T1)}, {s(S_T1)}, {RING_B}
    s_lshl_b32 {s(S_T2)}, {s(S_W4)}, 12
    s_add_u32 {s(S_T1)}, {s(S_T1)}, {s(S_T2)}
    s_add_u32 {s(S_T1)}, {s(S_T1)}, {L_RING}
    v_add_u32 {v(23+u)}, {s(S_T1)}, {v(V_L16)}""")
XU = 152
for k in range(8):
    A(f"v_lshlrev_b32 {v(XU+2*k)}, 16, {v(XC+k)}\nv_and_b32 {v(XU+2*k+1)}, 0xffff0000, {v(XC+k)}")
lds_wait(SY_GBAR, 16, V_C)
for u in range(3):
    for k in range(4):
        A(f"ds_read_b128 {v(168+16*u+4*k,4)}, {v(24+u)} offset:{1024*k}")
for u in range(3):
    for k in range(4):
        A(f"s_waitcnt lgkmcnt({11 - 4*u - k})")
        for i in range(4): A(f"v_add_f32 {v(OT4+4*k+i)}, {v(OT4+4*k+i)}, {v(168+16*u+4*k+i)}")
GT2 = 64
for i in range(16): A(f"v_fma_f32 {v(X1+i)}, {v(OT4+i)}, {v(V_D)}, {v(X1+i)}")
for i in range(16): A(f"v_mul_f32 {v(GT2+i)}, {fh(-LOG2E)}, {v(X1+i)}")
for i in range(16): A(f"v_exp_f32 {v(GT2+i)}, {v(GT2+i)}")
for i in range(16): A(f"v_add_f32 {v(GT2+i)}, 1.0, {v(GT2+i)}")
for i in range(16): A(f"v_rcp_f32 {v(GT2+i)}, {v(GT2+i)}")
for i in range(16): A(f"v_mul_f32 {v(X1+i)}, {v(X1+i)}, {v(GT2+i)}")
stamp("G_gate")
A(f"""s_lshl_b32 {s(S_T1)}, {s(S_W4)}, 13
v_add_u32 {v(V_A)}, {s(S_T1)}, {v(V_L16)}
v_mul_u32_u24 {v(V_B)}, 896, {v(V_T)}
v_lshl_add_u32 {v(V_B)}, {v(V_H)}, 4, {v(V_B)}
s_lshl_b32 {s(S_T1)}, {s(S_G)}, 1
s_add_u32 {s(S_T1)}, {s(S_T1)}, {s(S_HI)}
s_mul_i32 {s(S_T1)}, {s(S_T1)}, {32*896}
s_lshl_b32 {s(S_T2)}, {s(S_J)}, 1
s_add_u32 {s(S_T2)}, {s(S_T2)}, {s(S_LO)}
s_lshl_b32 {s(S_T2)}, {s(S_T2)}, 6
s_add_u32 {s(S_T1)}, {s(S_T1)}, {s(S_T2)}""")
lds_wait(SY_S, 4, V_C)
stamp("G_sready")
for q in range(4):
    A(f"ds_read_b128 {v(32+4*q,4)}, {v(V_A)} offset:{1024*q}\nds_read_b128 {v(48+4*q,4)}, {v(V_A)} offset:{4096 + 1024*q}")
for q in range(4):
    A(f"s_waitcnt lgkmcnt({6 - 2*q})")
    for i in range(4): A(f"v_add_f32 {v(32+4*q+i)}, {v(32+4*q+i)}, {v(48+4*q+i)}")
    for i in range(4): A(f"v_fma_f32 {v(X1+4*q+i)}, {v(X1+4*q+i)}, {v(32+4*q+i)}, {v(XU+4*q+i)}")
pack16(X1, GT2)
packed_to_chunks(GT2)
A(f"""buffer_store_dwordx4 {v(GT2,4)}, {v(V_B)}, {srd(R_OUT)}, {s(S_T1)} offen nt
buffer_store_dwordx4 {v(GT2+4,4)}, {v(V_B)}, {srd(R_OUT)}, {s(S_T1)} offen offset:32 nt""")
stamp("G_end", True)
A("s_endpgm")
STAMPS_G = list(STAMPS)

A(f"""L_g_kv:
s_mul_i32 {s(S_T1)}, {s(S_LO)}, 25088
s_add_u32 {s(S_T1)}, {s(S_T1)}, {L_S1}
v_add_u32 {v(V_WA)}, {s(S_T1)}, {v(V_WA2)}
s_lshl_b32 {s(S_N0)}, {s(S_G)}, 1
s_add_u32 {s(S_N0)}, {s(S_N0)}, {s(S_HI)}
s_lshl_b32 {s(S_N0)}, {s(S_N0)}, 12
s_add_u32 {s(S_N0)}, {s(S_N0)}, {W_KV}
s_cmp_eq_u32 {s(S_LO)}, 1
s_cbranch_scc1 L_g_v""")
phaseA1("K")
colsum_spread(CS4, CSX, V_A)
center_scale(ACC, CSX, V_R)
zero_pad_dims(ACC)
pack16(ACC, TMP)
exec_hi()
A(f"v_mov_b32 {v(TMP+6)}, {ONES}\nv_mov_b32 {v(TMP+7)}, 0x3f80")
exec_all()
A(f"""buffer_store_dwordx4 {v(TMP,4)}, {v(V_L16)}, {srd(R_WS)}, {s(S_N0)} offen sc1
buffer_store_dwordx4 {v(TMP+4,4)}, {v(V_L16)}, {srd(R_WS)}, {s(S_N0)} offen offset:1024 sc1""")
norm2(ACC, V_A, V_B)
for sh in (1, 2, 4, 8):
    A(f"v_max_f32_dpp {v(V_A)}, {v(V_A)}, {v(V_A)} row_shr:{sh} row_mask:0xf bank_mask:0xf")
A(f"""s_mov_b64 exec, 0x80008000
ds_max_u32 {v(V_SY)}, {v(V_A)} offset:{SY_KMAX}
s_mov_b64 exec, -1
s_branch L_g_kvpub
L_g_v:""")
phaseA1("V")
A(f"""v_mul_f32 {v(V_A)}, {v(V_M)}, {v(V_R)}
v_cmp_eq_u32 vcc, 0, {v(V_H)}
s_lshl_b32 {s(S_T1)}, {s(S_HI)}, 8
s_add_u32 {s(S_T1)}, {s(S_T1)}, {L_VST}
v_lshl_add_u32 {v(V_B)}, {v(V_LANE)}, 2, {s(S_T1)}
v_cndmask_b32 {v(V_A)}, {v(V_A)}, {v(V_R)}, vcc
ds_write_b32 {v(V_B)}, {v(V_A)}
v_lshl_add_u32 {v(V_B)}, {v(V_H)}, 4, {s(S_T1)}""")
for jj in range(4):
    A(f"ds_read_b128 {v(CSX+4*jj,4)}, {v(V_B)} offset:{32*jj}")
    A(f"ds_read_b128 {v(TMP+4*jj,4)}, {v(V_B)} offset:{128 + 32*jj}")
A(f"""v_and_b32 {v(V_A)}, 16, {v(V_LANE)}
v_cmp_eq_u32 vcc, 0, {v(V_A)}
v_cndmask_b32 {v(V_A)}, {v(CS4+1)}, {v(CS4)}, vcc
s_waitcnt lgkmcnt(0)""")
for i in range(16): A(f"v_mul_f32 {v(TMP+i)}, {v(TMP+i)}, {v(V_A)}")
for i in range(16): A(f"v_fma_f32 {v(ACC+i)}, {v(ACC+i)}, {v(CSX+i)}, -{v(TMP+i)}")
pack16(ACC, TMP)
A(f"v_cmp_eq_u32 vcc, 28, {v(V_T)}\nv_mov_b32 {v(V_A)}, {ONES}")
for k in range(8): A(f"v_cndmask_b32 {v(TMP+k)}, {v(TMP+k)}, {v(V_A)}, vcc")
A(f"""buffer_store_dwordx4 {v(TMP,4)}, {v(V_L16)}, {srd(R_WS)}, {s(S_N0)} offen offset:2048 sc1
buffer_store_dwordx4 {v(TMP+4,4)}, {v(V_L16)}, {srd(R_WS)}, {s(S_N0)} offen offset:3072 sc1
L_g_kvpub:""")
nstamp[0] = 2; stamp("kv_stored")
lds_arrive(SY_GBAR)
flags_cleared()
def kv_flags():
    A(f"""ds_read_b32 {v(V_C)}, {v(V_SY)} offset:{SY_KMAX}
    s_waitcnt lgkmcnt(0)
    v_or_b32 {v(V_C)}, 1, {v(V_C)}
    buffer_store_dword {v(V_C)}, {v(V_A)}, {srd(R_WS)}, {s(S_T3)} offen offset:{F_KV - F_H - 7*128} sc1""")
    h_flag()
signal_last(SY_CH, F_H, V_A, emit=kv_flags)
stamp("kv_pub")
def k7_poll():
    poll_group(F_H, 8, V_A, V_B)
    decide_local()
one_poller(SY_OK, k7_poll)
lds_wait(SY_ABAR, 20, V_C)
l_nocs = lab("nocs")
A(f"s_cmp_ge_u32 {s(S_G)}, 28\ns_cbranch_scc1 {l_nocs}")
blk_voffset(V_B3584, 3584)
A(f"""s_mul_i32 {s(S_RING)}, {s(S_W4)}, 14336
s_mul_i32 {s(S_SOFF)}, {s(S_W4)}, {112*3584}
s_lshl_b32 {s(S_T1)}, {s(S_G)}, 7
s_add_u32 {s(S_SOFF)}, {s(S_SOFF)}, {s(S_T1)}
v_add_u32 {v(V_TR0)}, {s(S_RING)}, {v(V_TP)}
v_xor_b32 {v(V_TR1)}, 64, {v(V_TR0)}""")
for i in range(7): w3_block(i)
for i in range(7):
    A(f"s_waitcnt vmcnt({12 - 2*i})")
    blk_reads(32 + 8*i, i, 512)
    A("s_waitcnt lgkmcnt(0)")
    mfma16(96, 32 + 8*i, V_SEL, "0" if i == 0 else None)
    mfma16(100, 36 + 8*i, V_SEL, "0" if i == 0 else None)
A(f"""s_lshl_b32 {s(S_T4)}, {s(S_W4)}, 8
s_add_u32 {s(S_T4)}, {s(S_T4)}, {L_STX}
v_and_b32 {v(V_A)}, 15, {v(V_LANE)}
v_cmp_gt_u32 vcc, 2, {v(V_A)}
v_lshlrev_b32 {v(V_A)}, 6, {v(V_A)}
v_and_b32 {v(V_B)}, 48, {v(V_LANE)}
v_add3_u32 {v(V_A)}, {v(V_A)}, {v(V_B)}, {s(S_T4)}
s_mov_b64 exec, vcc
ds_write_b128 {v(V_A)}, v[96:99]
ds_write_b128 {v(V_A)}, v[100:103] offset:128
s_mov_b64 exec, -1""")
lds_arrive(SY_GBAR)
A(f"s_cmp_lg_u32 {s(S_W4)}, 0\ns_cbranch_scc1 {l_nocs}")
lds_wait(SY_GBAR, 8, V_C)
A(f"v_lshlrev_b32 {v(V_A)}, 2, {v(V_LANE)}\nv_add_u32 {v(V_B)}, {L_STX}, {v(V_A)}")
for q in range(4): A(f"ds_read_b32 {v(32+q)}, {v(V_B)} offset:{256*q}")
A(f"""s_lshl_b32 {s(S_T1)}, {s(S_G)}, 8
s_add_u32 {s(S_T1)}, {s(S_T1)}, {W_CS}
s_waitcnt lgkmcnt(0)
v_add_f32 v32, v32, v33
v_add_f32 v34, v34, v35
v_add_f32 v32, v32, v34
buffer_store_dword v32, {v(V_A)}, {srd(R_WS)}, {s(S_T1)} offen sc1
s_add_u32 {s(S_T1)}, {s(S_FG)}, {F_X1 + 7*128}
v_mov_b32 {v(V_A)}, 0
s_waitcnt vmcnt(0)
s_mov_b64 exec, 1
buffer_store_dword {v(V_ONE)}, {v(V_A)}, {srd(R_WS)}, {s(S_T1)} offen sc1
s_mov_b64 exec, -1
{l_nocs}:""")
if OPT["l2pf"]:
    A(f"""s_and_b32 {s(S_T0)}, {s(S_G)}, 3
    s_lshl_b32 {s(S_T0)}, {s(S_T0)}, 2
    s_add_u32 {s(S_T0)}, {s(S_T0)}, {s(S_W4)}""")
    for r_, n_ in ((R_W4, 1605632), (R_WO, 401408))[:OPT["l2pf"]]:
        sweep(r_, n_, 16, S_T0, OPT["thr"])
if OPT["mall"]:
    A(f"s_lshl_b32 {s(S_T0)}, {s(S_G)}, 2\ns_add_u32 {s(S_T0)}, {s(S_T0)}, {s(S_W4)}")
    for r_, n_ in ((R_W4, 1605632), (R_WO, 401408)):
        touch(r_, n_, 128, S_T0)
stamp("kv_touched")
lds_arrive(SY_X1D)
nstamp[0] = len(STAMPS_G) - 1
stamp("G_end", True)
A("s_endpgm")

nstamp[0] = 1
del STAMPS[1:]
A(f"""L_role_A:
s_cmp_eq_u32 {s(S_KV)}, 1
s_cbranch_scc1 L_a_kvcopy
""")
slice_pieces(R_W1, L_S1, range(14))
A(f"""s_branch L_a_copied
L_a_kvcopy:
s_mov_b32 {s(R_STR+2)}, 25088""")
for st in range(3):
    for q in range(4):
        A(f"""s_add_u32 {s(S_T1)}, {s(S_W4)}, {4*q}
        s_min_u32 {s(S_T1)}, {s(S_T1)}, 13
        s_cmp_ge_u32 {s(S_T1)}, 7
        s_cselect_b64 {s(R_STR,2)}, {s(R_WV,2)}, {s(R_WK,2)}
        s_cselect_b32 {s(S_T2)}, 7, 0
        s_cselect_b32 {s(S_T3)}, 25088, 0
        s_sub_u32 {s(S_T1)}, {s(S_T1)}, {s(S_T2)}
        s_lshl_b32 {s(S_T1)}, {s(S_T1)}, 10
        s_add_u32 {s(S_T1)}, {s(S_T1)}, {7168*st}
        s_add_u32 {s(S_T3)}, {s(S_T3)}, {s(S_T1)}
        s_add_u32 m0, {s(S_T3)}, {L_S1}
        s_nop 0
        buffer_load_dwordx4 {v(V_L16)}, {srd(R_STR)}, {s(S_T1)} offen lds""")
A(f"""s_lshl_b32 {s(S_T1)}, {s(S_W4)}, 10
s_add_u32 {s(S_T1)}, {s(S_T1)}, 21504
s_add_u32 m0, {s(S_T1)}, {L_S1}
s_cmp_eq_u32 {s(S_W4)}, 3
s_cselect_b32 exec_hi, 0, -1
buffer_load_dwordx4 {v(V_L16)}, {srd(R_WK)}, {s(S_T1)} offen lds
s_add_u32 m0, m0, 25088
s_nop 0
buffer_load_dwordx4 {v(V_L16)}, {srd(R_WV)}, {s(S_T1)} offen lds
s_mov_b32 exec_hi, -1
L_a_copied:
s_waitcnt vmcnt(14)
s_barrier""")
stamp("x_landed")
A(f"""v_lshl_add_u32 v25, {s(S_W4)}, 6, {v(V_LANE)}
s_mul_i32 {s(S_RING)}, {s(S_KV)}, {50176 - 8192}
s_add_u32 {s(S_RING)}, {s(S_RING)}, {L_WQ6}""")
pattern(24, 25)
A("v_add_u32 v25, 256, v25")
pattern(25, 25)
A(f"s_add_u32 {s(S_T0)}, {s(S_W4)}, 4\ns_cmp_eq_u32 {s(S_W4)}, 3\ns_cbranch_scc1 L_a_wq3")
def wq_copy(two):
    ents = [(p, u) for u in range(7) for p in range(2)]
    cuts = [0, 6, 9, 12, 14, 14]
    done = 0
    for b in range(5):
        for p, u in ents[cuts[b]:cuts[b+1]]:
            if p == 1 and not two: continue
            dma_rows(R_WQ, 24 + p, S_T0 if p else S_W4, [(u, L_S2 + 7168*u if u < 6 else s(S_RING))])
            done += 1
        if b < 4:
            A(f"s_waitcnt vmcnt({[10, 6, 2, 0][b] + done})\ns_barrier")
            if b == 0:
                common_addresses()
                A(f"""v_lshlrev_b32 {v(V_D)}, 1, {v(V_H)}
                v_lshl_add_u32 {v(V_D)}, {v(V_A)}, 2, {v(V_D)}
                v_mul_u32_u24 {v(V_WA)}, 112, {v(V_D)}
                v_add_u32 {v(V_WA)}, {v(V_WA)}, {v(V_B)}
                v_cmp_le_u32 vcc, 56, {v(V_B)}
                s_lshl_b32 {s(S_T2)}, {s(S_LO)}, 5
                v_mov_b32 {v(V_A)}, {s(S_T2)}
                v_cndmask_b32 {v(V_A)}, 0, {v(V_A)}, vcc
                v_sub_u32 {v(V_WA)}, {v(V_WA)}, {v(V_A)}
                s_mul_i32 {s(S_T1)}, {s(S_LO)}, 56
                s_add_u32 {s(S_T2)}, {s(S_T1)}, {s(S_RING)}
                v_add_u32 {v(V_WA2)}, {s(S_T2)}, {v(V_WA)}
                s_add_u32 {s(S_T2)}, {s(S_T1)}, {L_S2}
                v_add_u32 {v(V_WA)}, {s(S_T2)}, {v(V_WA)}""")
            if b == 1: stats_final()
def w2_base():
    A(f"""s_lshl_b32 {s(S_CNT)}, {s(S_W4)}, 10
    s_mul_i32 {s(S_NN)}, {s(S_W4)}, {8*896}
    s_lshl_b32 {s(S_T1)}, {s(S_J)}, 7
    s_add_u32 {s(S_NN)}, {s(S_NN)}, {s(S_T1)}""")
def w2_piece(i):
    l0 = lab("w2p")
    A(f"""s_cmp_eq_u32 {s(S_KV)}, 1
    s_cbranch_scc1 {l0}
    s_add_u32 m0, {s(S_CNT)}, {L_S1 + 4096*i}
    s_add_u32 {s(S_T1)}, {s(S_NN)}, {32*896*i}
    buffer_load_dwordx4 {v(V_B896)}, {srd(R_W2)}, {s(S_T1)} offen lds
    {l0}:""")
def q_product(two):
    later = 4 if two else 2
    w2_base()
    for i in range(8):
        A(f"ds_read_b128 {v(BF+4*i,4)}, {v(V_XB)} offset:{32*i}")
    A(f"s_waitcnt vmcnt({later})")
    lds_arrive(SY_ABAR)
    nt = 0
    if not two and OPT["atouch"]:
        nt = sum(touch(r_, n_, 256, 2) for r_, n_ in ((R_W3, 1605632), (R_W4, 1605632), (R_WO, 401408)))
    if OPT["pf3"]:
        l0 = lab("pf3")
        A(f"""s_cmp_eq_u32 {s(S_KV)}, 0
        s_cbranch_scc1 {l0}
        s_and_b32 {s(S_T0)}, {s(S_G)}, 3
        s_lshl_b32 {s(S_T0)}, {s(S_T0)}, 2
        s_add_u32 {s(S_T0)}, {s(S_T0)}, {s(S_W4)}""")
        touch(R_W3, 128*3584, 16, S_T0)
        A(f"{l0}:")
    A(f"s_mov_b32 {s(S_PASS)}, {nt}")
A("s_nop 0")
wq_copy(True)
q_product(True)
A("s_branch L_a_wqin\nL_a_wq3:")
wq_copy(False)
q_product(False)
A("L_a_wqin:")
lds_wait(SY_ABAR, 4, V_C)
stamp("A_wq")
NT = 3 if OPT["atouch"] and OPT["touch"] else 0
def q_hook(ks):
    if ks < 12 and ks % 2 == 0: w2_piece((0, 1, 4, 5, 6, 7)[ks // 2])
    if ks == 14:
        l0, l1 = lab("qa"), lab("qb")
        A(f"""s_lshl_b32 {s(S_T1)}, {s(S_KV)}, 1
        s_cmp_lg_u32 {s(S_PASS)}, 0
        s_addc_u32 {s(S_T1)}, {s(S_T1)}, 0
        s_cmp_eq_u32 {s(S_T1)}, 1
        s_cbranch_scc1 {l0}
        s_cmp_eq_u32 {s(S_T1)}, 0
        s_cbranch_scc0 {l1}_z
        s_waitcnt vmcnt(6)
        s_branch {l1}
        {l1}_z:
        s_waitcnt vmcnt(0)
        s_branch {l1}
        {l0}:
        s_waitcnt vmcnt({6 + NT})
        {l1}:""")
        lds_arrive(SY_ABAR)
    if ks == 15:
        lds_wait(SY_ABAR, 8, V_C)
        lds_wait(SY_GBAR, 4, V_C)
    if ks >= 16 and ks % 2 == 0: w2_piece(8 + (ks - 16) // 2)
tile_steps("Q", False, q_hook)
lds_arrive(SY_ABAR)
stamp("A_qgemm")
colsum_spread(CS4, CSX, V_A)
blk_voffset(V_B3584, 3584)
lds_wait(SY_ABAR, 12, V_C)
l0 = lab("nofill")
A(f"s_cmp_eq_u32 {s(S_KV)}, 1\ns_cbranch_scc1 {l0}")
w2_piece(2); w2_piece(3)
ring_setup()
if OPT["r1mode"] == 0:
    for i in range(8): w3_block(4 + i)
A(f"{l0}:")
A(f"s_xor_b32 {s(S_R1)}, {s(S_KV)}, 1" if OPT["r1mode"] else f"s_mov_b32 {s(S_R1)}, 0")
A(f"v_mul_f32 {v(V_RR)}, {fh(28 ** -0.5 * LOG2E)}, {v(V_R)}")
center_scale(ACC, CSX, V_RR)
zero_pad_dims(ACC)
pack16(ACC, TMP + 16)
norm2(ACC, V_A, V_B)
A(f"""s_lshl_b32 {s(S_T1)}, {s(S_W4)}, 7
s_add_u32 {s(S_T1)}, {s(S_T1)}, {L_QN}
v_lshl_add_u32 {v(V_B)}, {v(V_T)}, 2, {s(S_T1)}
ds_write_b32 {v(V_B)}, {v(V_A)}
s_mul_i32 {s(S_T1)}, {s(S_W4)}, {RING_B}
s_add_u32 {s(S_T1)}, {s(S_T1)}, {L_RING + 4096}
v_add_u32 {v(V_B)}, {s(S_T1)}, {v(V_L16)}
ds_write_b128 {v(V_B)}, {v(TMP+16,4)}
ds_write_b128 {v(V_B)}, {v(TMP+20,4)} offset:1024""")
lds_arrive(SY_ABAR)
QF, OA, SS, EE, PP, KV = 32, 64, 128, 160, 168, 176
A(f"""v_add_u32 {v(V_A)}, {s(S_XCD)}, {v(V_LANE)}
v_and_b32 {v(V_A)}, 7, {v(V_A)}
v_lshl_add_u32 {v(V_A)}, {v(V_A)}, 2, {s(S_W4)}
v_mul_u32_u24 {v(V_A)}, {FLAG_GS}, {v(V_A)}
s_mov_b32 {s(S_T3)}, {F_KV}
s_lshl_b32 {s(S_N0)}, {s(S_W4)}, 13
s_add_u32 {s(S_N0)}, {s(S_N0)}, {W_KV}
s_waitcnt vmcnt(0)""")
lds_arrive(SY_W2)
lds_wait(SY_CH, 4, V_C)
stamp("A_w2")
poll_flags(V_A, s(S_T3), 8, V_B)
stamp("A_kvflags")
def tile_soff(dst, d, ii):
    A(f"""s_add_u32 {s(dst)}, {s(S_XCD)}, {d}
    s_and_b32 {s(dst)}, {s(dst)}, 7
    s_lshl_b32 {s(dst)}, {s(dst)}, 15
    s_add_u32 {s(dst)}, {s(dst)}, {s(S_N0)}""")
    if ii: A(f"s_add_u32 {s(dst)}, {s(dst)}, 4096")
def ldK(set_, soff):
    if OPT["ldprio"]: A("s_setprio 3")
    ldK_(set_, soff)
    if OPT["ldprio"]: A(f"s_setprio {OPT['aprio']}")
def ldV(set_, soff):
    if OPT["ldprio"]: A("s_setprio 3")
    ldV_(set_, soff)
    if OPT["ldprio"]: A(f"s_setprio {OPT['aprio']}")
def ldK_(set_, soff):
    for m in range(2): A(f"buffer_load_dwordx4 {v(KV+16*set_+4*m,4)}, {v(V_L16)}, {srd(R_WS)}, {s(soff)} offen offset:{1024*m} sc1")
def ldV_(set_, soff):
    for m in range(2): A(f"buffer_load_dwordx4 {v(KV+16*set_+8+4*m,4)}, {v(V_L16)}, {srd(R_WS)}, {s(soff)} offen offset:{2048+1024*m} sc1")
def first_tiles(ns=(0, 1)):
    for n in ns:
        tile_soff(S_T1, n >> 1, n & 1)
        ldK(n, S_T1); ldV(n, S_T1)
first_tiles()
for sh in (1, 2, 4):
    A(f"v_max_f32_dpp {v(V_B)}, {v(V_B)}, {v(V_B)} row_shr:{sh} row_mask:0xf bank_mask:0xf")
A(f"v_readlane_b32 {s(S_KMAX)}, {v(V_B)}, 7")
lds_wait(SY_ABAR, 16, V_C)
A(f"v_add_u32 {v(V_B)}, {L_RING + 4096}, {v(V_L16)}\nv_add_u32 {v(V_D)}, {L_RING + 4096 + 2*RING_B}, {v(V_L16)}")
for q in range(4):
    r_ = V_B if q < 2 else V_D
    A(f"ds_read_b128 {v(QF+8*q,4)}, {v(r_)} offset:{RING_B*(q%2)}\nds_read_b128 {v(QF+8*q+4,4)}, {v(r_)} offset:{RING_B*(q%2)+1024}")
A(f"""v_lshlrev_b32 {v(V_B)}, 3, {v(V_LANE)}
v_add_u32 {v(V_B)}, {L_QN}, {v(V_B)}
ds_read_b64 v[24:25], {v(V_B)}
s_mov_b32 {s(S_PASS)}, 24
s_waitcnt lgkmcnt(0)
v_max_f32 v24, v24, v25
v_mul_f32 v24, {s(S_KMAX)}, v24
v_cmp_nge_f32 vcc, {fh(-1.0 if OPT['force_slow'] else 1600.0)}, v24
s_cmp_lg_u64 vcc, 0
s_cselect_b32 {s(S_T1)}, 1, 0
v_mov_b32 v24, {s(S_T1)}
s_mov_b64 exec, 1
ds_add_u32 {v(V_SY)}, v24 offset:{SY_BAD}
ds_add_u32 {v(V_SY)}, {v(V_ONE)} offset:{SY_ABAR}
s_mov_b64 exec, -1
L_attn:""")
for i in range(64): A(f"v_mov_b32 {v(OA+i)}, 0")
def qk(n, m):
    t_, q = (n // 4) % 4, n % 4
    mfma(SS + 16*(n % 2), KV + 16*t_ + 4*m, QF + 8*q + 4*m, "0" if m == 0 else None)
def pv(n, m):
    t_, q = (n // 4) % 4, n % 4
    mfma(OA + 16*q, KV + 16*t_ + 8 + 4*m, PP + 4*m)
def exps(n, qq):
    for i in range(4): A(f"v_exp_f32 {v(EE + 4*(qq % 2) + i)}, {v(SS + 16*(n % 2) + 4*qq + i)}")
def cvts(qq):
    e = EE + 4*(qq % 2)
    A(f"v_cvt_pk_bf16_f32 {v(PP+2*qq)}, {v(e)}, {v(e+1)}\nv_cvt_pk_bf16_f32 {v(PP+2*qq+1)}, {v(e+2)}, {v(e+3)}")
def slot_q12(n, first=False):
    if n % 4 == 3: A("s_waitcnt vmcnt(10)")
    qk(n + 1, 0)
    if n % 4 == 3: ldK((n // 4) % 4, S_T1 + ((n // 4) % 2))
    if not first: cvts(3)
    exps(n, 0)
    if not first: pv(n - 1, 1)
    cvts(0)
    exps(n, 1)
def slot_q34(n):
    qk(n + 1, 1)
    if n % 4 == 0 and n > 0: ldV(((n // 4) - 1) % 4, S_T1 + (((n // 4) - 1) % 2))
    cvts(1)
    exps(n, 2)
    if n % 4 == 0: A(f"s_waitcnt vmcnt(12)")
    pv(n, 0)
    cvts(2)
    exps(n, 3)
if OPT["fine"] > 1: stamp("a_q")
A("s_waitcnt vmcnt(4)")
if OPT["fine"] > 1: stamp("a_k0")
qk(0, 0); qk(0, 1)
first_tiles((2,))
slot_q12(0, first=True)
A(f"s_mov_b32 {s(S_CNT)}, 2")
A(".p2align 6\nL_att_loop:")
qk(1, 1)
l0 = lab("nov")
l1 = lab("v3")
A(f"s_cmp_eq_u32 {s(S_CNT)}, 2\ns_cbranch_scc0 {l1}")
tile_soff(S_T2, 1, 1)
ldK(3, S_T2)
A(f"{l1}:")
ldV(3, S_T2)
cvts(1); exps(0, 2)
A("s_waitcnt vmcnt(12)")
pv(0, 0); cvts(2); exps(0, 3)
def next_pair():
    A(f"""s_add_u32 {s(S_T1)}, {s(S_XCD)}, {s(S_CNT)}
    s_and_b32 {s(S_T1)}, {s(S_T1)}, 7
    s_lshl_b32 {s(S_T1)}, {s(S_T1)}, 15
    s_add_u32 {s(S_T1)}, {s(S_T1)}, {s(S_N0)}
    s_cmp_ge_u32 {s(S_CNT)}, 8
    s_cselect_b32 {s(S_T1)}, {OOB}, {s(S_T1)}
    s_add_u32 {s(S_T3)}, {s(S_T1)}, 4096
    s_add_u32 {s(S_CNT)}, {s(S_CNT)}, 1""")
for n in range(1, 16):
    if n in (2, 10): next_pair()
    if n in (5, 13): A(f"s_mov_b32 {s(S_T2)}, {s(S_T3)}")
    slot_q12(n)
    if OPT["r1s"] <= n < OPT["r1s"] + 8:
        l0 = lab("r1")
        A(f"s_cmp_eq_u32 {s(S_R1)}, 0\ns_cbranch_scc1 {l0}")
        w3_block(4 + n - OPT["r1s"])
        A(f"{l0}:")
    if n == 14:
        l0 = lab("r1d")
        A(f"s_cmp_eq_u32 {s(S_R1)}, 0\ns_cbranch_scc1 {l0}\ns_waitcnt vmcnt(2)\ns_mov_b32 {s(S_R1)}, 0")
        lds_arrive(SY_R1)
        A(f"{l0}:")
    slot_q34(n)
    if OPT["fine"] > 2 and n in (3, 7, 11):
        A(f"s_lshl_b32 {s(S_T5)}, {s(S_CNT)}, 1")
        stamp_dyn(40 - 6 + (n == 7), S_T5)
slot_q12(16)
stamp_dyn(28, S_CNT)
A(f"s_cmp_lt_u32 {s(S_CNT)}, {4 if OPT['noA'] else 10}\ns_cbranch_scc1 L_att_loop")
stamp("A_attn")
A(f"s_setprio {OPT['tailprio']}")
if OPT["notail"]:
    lds_arrive(SY_S)
    A("s_branch L_a_end")
lds_wait(SY_X1D, 4, V_C, nap=True)
if OPT["fine"] > 1: stamp("a_gok")
lbls = [lab("red") for _ in range(4)]
l_done = lab("redd")
OT = 128
for a_ in range(4):
    A(f"{lbls[a_]}:")
    if a_ < 3:
        A(f"s_cmp_lg_u32 {s(S_W4)}, {a_}\ns_cbranch_scc1 {lbls[a_+1]}")
    for q in range(4):
        if q == a_: continue
        slot = q * 3 + (a_ if a_ < q else a_ - 1)
        for k in range(4):
            A(f"ds_write_b128 {v(V_L16)}, {v(OA+16*q+4*k,4)} offset:{4096*slot + 1024*k}")
    for i in range(16): A(f"v_mov_b32 {v(OT+i)}, {v(OA+16*a_+i)}")
    if a_ < 3: A(f"s_branch {l_done}")
A(f"{l_done}:")
lds_arrive(SY_ABAR)
A(f"s_mul_i32 {s(S_T1)}, {s(S_W4)}, 12288\nv_add_u32 {v(V_A)}, {s(S_T1)}, {v(V_L16)}")
lds_wait(SY_ABAR, s(S_PASS), V_C)
A(f"ds_read_b64 v[24:25], {v(V_SY)} offset:{SY_BAD}")
for k in range(12):
    A(f"ds_read_b128 {v(OA+4*k,4)}, {v(V_A)} offset:{1024*k}")
A(f"""s_waitcnt lgkmcnt(12)
v_readfirstlane_b32 {s(S_T1)}, v24
v_readfirstlane_b32 {s(S_LOC)}, v25
s_cmp_eq_u32 {s(S_PASS)}, 24
s_cselect_b32 {s(S_T1)}, {s(S_T1)}, 0
s_cmp_lg_u32 {s(S_T1)}, 0
s_cbranch_scc1 L_slow""")
for k in range(12):
    A(f"s_waitcnt lgkmcnt({11-k})")
    for i in range(4): A(f"v_add_f32 {v(OT+4*(k%4)+i)}, {v(OT+4*(k%4)+i)}, {v(OA+4*k+i)}")
A(f"""v_mov_b32 {v(V_A)}, {v(OT+12)}
v_mov_b32 {v(V_B)}, {v(OT+12)}
v_permlane32_swap_b32 {v(V_A)}, {v(V_B)}
v_rcp_f32 {v(V_B)}, {v(V_B)}""")
for i in range(16): A(f"v_mul_f32 {v(OT+i)}, {v(OT+i)}, {v(V_B)}")
pack16(OT, OA)
A(f"""s_mul_i32 {s(S_T1)}, {s(S_LO)}, 7
v_add_u32 {v(V_A)}, {s(S_T1)}, {v(V_H)}
v_lshrrev_b32 {v(V_B)}, 1, {v(V_A)}
v_and_b32 {v(V_A)}, 1, {v(V_A)}
v_lshlrev_b32 {v(V_B)}, 10, {v(V_B)}
v_lshl_add_u32 {v(V_B)}, {v(V_A)}, 3, {v(V_B)}
v_lshl_add_u32 {v(V_B)}, {v(V_T)}, 4, {v(V_B)}
s_mul_i32 {s(S_T1)}, {s(S_J)}, 7168
s_lshl_b32 {s(S_T2)}, {s(S_HI)}, 9
s_add_u32 {s(S_T1)}, {s(S_T1)}, {s(S_T2)}
s_add_u32 {s(S_T1)}, {s(S_T1)}, {s(S_GB)}
s_add_u32 {s(S_T1)}, {s(S_T1)}, {G_O}""")
def o_stores(f):
    for jj in range(4):
        if jj == 3: exec_lo()
        A(f"buffer_store_dwordx2 {v(OA+2*jj,2)}, {v(V_B)}, {srd(R_WS)}, {s(S_T1)} offen offset:{1024*jj} {f}")
    exec_all()
if OPT["fine"] > 1: stamp("a_red")
by_mode(o_stores)
lds_arrive(SY_AB2)
signal_last(SY_CO, F_O, V_A)
stamp("A_opub")
A(f"s_cmp_eq_u32 {s(S_KV)}, 1\ns_cbranch_scc1 L_a_end")
lds_wait(SY_AB2, 4, V_C)
slice_pieces(R_WO, L_S1, range(14))
A(f"""v_bfe_u32 {v(V_A)}, {v(V_LANE)}, 2, 2
v_lshl_add_u32 {v(V_D)}, {v(V_H)}, 3, {v(V_A)}
v_and_b32 {v(V_B)}, 3, {v(V_LANE)}
v_lshlrev_b32 {v(V_B)}, 3, {v(V_B)}
v_lshl_add_u32 {v(V_TP)}, {v(V_D)}, 7, {v(V_B)}
v_lshlrev_b32 {v(V_A)}, 5, {v(V_A)}
v_and_b32 {v(V_A)}, 64, {v(V_A)}
v_lshlrev_b32 {v(V_B)}, 1, {v(V_LANE)}
v_and_b32 {v(V_B)}, 32, {v(V_B)}
v_add3_u32 {v(V_TP)}, {v(V_TP)}, {v(V_A)}, {v(V_B)}
v_lshlrev_b32 {v(V_CH)}, 4, {v(V_T)}
v_lshl_add_u32 {v(V_CH)}, {v(V_H)}, 10, {v(V_CH)}""")
one_poller(SY_OK + 8, lambda: poll_group(F_O, 8, V_A, V_B))
stamp("A_oflags")
A(f"""s_mul_i32 {s(S_T1)}, {s(S_LO)}, {28*1024}
s_lshl_b32 {s(S_T2)}, {s(S_HI)}, 9
s_add_u32 {s(S_T1)}, {s(S_T1)}, {s(S_T2)}
s_add_u32 {s(S_T1)}, {s(S_T1)}, {s(S_GB)}
s_add_u32 {s(S_T1)}, {s(S_T1)}, {G_O}""")
ksplit_loads(V_CH, V_CH, S_T1)
A("s_waitcnt vmcnt(14)")
lds_arrive(SY_AB2)
lds_wait(SY_AB2, 8, V_C)
if OPT["fine"] > 1:
    stamp("o_wo"); A("s_waitcnt vmcnt(0)"); stamp("o_all")
ksplit_mm()
lds_arrive(SY_AB2)
A(f"""s_lshl_b32 {s(S_T1)}, {s(S_W4)}, 13
s_lshl_b32 {s(S_T2)}, {s(S_LO)}, 12
s_add_u32 {s(S_T1)}, {s(S_T1)}, {s(S_T2)}
v_add_u32 {v(V_A)}, {s(S_T1)}, {v(V_L16)}
v_xor_b32 {v(V_B)}, 8192, {v(V_A)}""")
lds_wait(SY_AB2, 12, V_C)
for q in range(4):
    A(f"ds_write_b128 {v(V_A)}, {v(AM+4*q,4)} offset:{1024*q}\nds_write_b128 {v(V_B)}, {v(AO+4*q,4)} offset:{1024*q}")
lds_arrive(SY_S)
A("L_a_end:")
stamp("A_end", True)
A("s_endpgm")

MXR = 24
A(f"""L_slow:
s_waitcnt vmcnt(0) lgkmcnt(0)
s_mov_b32 {s(S_CNT)}, 0""")
for q in range(4): A(f"v_mov_b32 {v(MXR+q)}, 0xff800000")
A("L_slow_loop:")
A(f"""s_lshr_b32 {s(S_T2)}, {s(S_CNT)}, 1
s_add_u32 {s(S_T1)}, {s(S_XCD)}, {s(S_T2)}
s_and_b32 {s(S_T1)}, {s(S_T1)}, 7
s_lshl_b32 {s(S_T1)}, {s(S_T1)}, 15
s_add_u32 {s(S_T1)}, {s(S_T1)}, {s(S_N0)}
s_and_b32 {s(S_T2)}, {s(S_CNT)}, 1
s_lshl_b32 {s(S_T2)}, {s(S_T2)}, 12
s_add_u32 {s(S_T1)}, {s(S_T1)}, {s(S_T2)}""")
for m in range(2): A(f"buffer_load_dwordx4 {v(OA+4*m,4)}, {v(V_L16)}, {srd(R_WS)}, {s(S_T1)} offen offset:{1024*m} sc1")
A("s_waitcnt vmcnt(0)")
for q in range(4):
    mfma(SS, OA, QF + 8*q, "0"); mfma(SS, OA + 4, QF + 8*q + 4)
    for i in range(8): A(f"v_max3_f32 {v(MXR+q)}, {v(SS+2*i)}, {v(SS+2*i+1)}, {v(MXR+q)}")
A(f"""s_add_u32 {s(S_CNT)}, {s(S_CNT)}, 1
s_cmp_lt_u32 {s(S_CNT)}, 16
s_cbranch_scc1 L_slow_loop
s_lshl_b32 {s(S_T1)}, {s(S_W4)}, 9
s_add_u32 {s(S_T1)}, {s(S_T1)}, {L_MX}
v_lshl_add_u32 {v(V_A)}, {v(V_T)}, 2, {s(S_T1)}""")
for q in range(4):
    A(f"""v_mov_b32 {v(V_B)}, {v(MXR+q)}
    v_permlane32_swap_b32 {v(MXR+q)}, {v(V_B)}
    v_max_f32 {v(MXR+q)}, {v(MXR+q)}, {v(V_B)}
    ds_write_b32 {v(V_A)}, {v(MXR+q)} offset:{128*q}""")
lds_arrive(SY_ABAR)
first_tiles()
lds_wait(SY_ABAR, 28, V_C)
A(f"v_lshlrev_b32 {v(V_A)}, 2, {v(V_T)}\nv_add_u32 {v(V_A)}, {L_MX}, {v(V_A)}")
for q in range(4):
    for w_ in range(4): A(f"ds_read_b32 {v(SS+4*q+w_)}, {v(V_A)} offset:{512*w_ + 128*q}")
    A("s_waitcnt lgkmcnt(0)")
exec_hi()
for q in range(4):
    b = SS + 4*q
    A(f"""v_max3_f32 {v(b)}, {v(b)}, {v(b+1)}, {v(b+2)}
    v_max_f32 {v(b)}, {v(b)}, {v(b+3)}
    v_sub_f32 {v(b)}, 0, {v(b)}
    v_and_b32 {v(b+1)}, 0xffff0000, {v(b)}
    v_sub_f32 {v(b)}, {v(b)}, {v(b+1)}
    v_and_b32 {v(b+2)}, 0xffff0000, {v(b)}
    v_sub_f32 {v(b)}, {v(b)}, {v(b+2)}
    v_lshrrev_b32 {v(b+1)}, 16, {v(b+1)}
    v_or_b32 {v(QF+8*q+6)}, {v(b+1)}, {v(b+2)}
    v_lshrrev_b32 {v(QF+8*q+7)}, 16, {v(b)}""")
exec_all()
A(f"s_mov_b32 {s(S_PASS)}, 32\ns_branch L_attn")
A("L_END:\ns_endpgm\nL_CODE_END:")

body = A.finalize()
hdr = open("recurrent_scan__grouped_kv_mqa__mixer_s_mlp__prompt.s.ref").read().split("; Override")[0]
LAUNCH = "; @launch grid=(256,1,1) block=(512,1,1) lds=163840"
EXTRA_CODE = EXTRA_KD = ""
if OPT["probe"] >= 0:
    LAUNCH = f"; @launch kernel={KNAME} grid=(256,1,1) block=(512,1,1) lds=163840\n; @launch kernel=probe_kernel grid=(1,1,1) block=(64,1,1) lds=0"
    lo, hi = OPT["plo"], OPT["phi"]
    ld = "\n".join(f"""v_add_u32 v2, {i*64*2048}, v1
    buffer_load_dword v{4+2*i}, v2, s[8:11], 0 offen offset:{4*lo} sc1
    buffer_load_dword v{5+2*i}, v2, s[8:11], 0 offen offset:{4*hi} sc1""" for i in range(4))
    red = "\n".join(f"""v_readlane_b32 s14, v4, {l}
    v_readlane_b32 s15, v5, {l}
    s_nop 1
    s_min_u32 s12, s12, s14
    s_max_u32 s13, s13, s15""" for l in range(64))
    EXTRA_CODE = f"""
.p2align 8
.type probe_kernel,@function
probe_kernel:
    s_memrealtime s[20:21]
    s_cmp_ge_u32 s2, 1
    s_cbranch_scc1 P_END
    s_load_dwordx2 s[8:9], s[0:1], 96
    s_mov_b32 s10, {WS_USED}
    s_mov_b32 s11, 0x20000
    v_lshlrev_b32 v1, 11, v0
    v_add_u32 v1, {W_STAMP + 256*OPT["pwave"]}, v1
    s_waitcnt lgkmcnt(0)
    {ld}
    s_waitcnt vmcnt(0)
    v_min_u32 v4, v4, v6
    v_min_u32 v8, v8, v10
    v_min_u32 v4, v4, v8
    v_max_u32 v5, v5, v7
    v_max_u32 v9, v9, v11
    v_max_u32 v5, v5, v9
    s_mov_b32 s12, -1
    s_mov_b32 s13, 0
    s_nop 1
    {red}
    {"s_sub_u32 s12, s20, s13" if OPT["pself"] else "s_sub_u32 s12, s13, s12"}
    s_min_u32 s12, s12, 20000
    s_mul_i32 s12, s12, {OPT["probe"]}
    s_memrealtime s[16:17]
    s_waitcnt lgkmcnt(0)
P_SPIN:
    s_memrealtime s[18:19]
    s_waitcnt lgkmcnt(0)
    s_sub_u32 s14, s18, s16
    s_cmp_lt_u32 s14, s12
    s_cbranch_scc1 P_SPIN
P_END:
    s_endpgm
"""
    EXTRA_KD = """
.p2align 6
.amdhsa_kernel probe_kernel
  .amdhsa_next_free_vgpr 16
  .amdhsa_next_free_sgpr 32
  .amdhsa_accum_offset 16
  .amdhsa_group_segment_fixed_size 0
  .amdhsa_kernarg_size 104
  .amdhsa_user_sgpr_count 2
  .amdhsa_user_sgpr_kernarg_segment_ptr 1
  .amdhsa_system_sgpr_workgroup_id_x 1
.end_amdhsa_kernel
"""
out = hdr + f"""{LAUNCH}
.amdgcn_target "amdgcn-amd-amdhsa--gfx950"
.text
.globl {KNAME}
.p2align 8
.type {KNAME},@function
{KNAME}:
{body}{EXTRA_CODE}
.section .rodata,"a"
.p2align 6
.amdhsa_kernel {KNAME}
  .amdhsa_next_free_vgpr 256
  .amdhsa_next_free_sgpr 100
  .amdhsa_accum_offset 256
  .amdhsa_group_segment_fixed_size 0
  .amdhsa_kernarg_size 104
  .amdhsa_user_sgpr_count 2
  .amdhsa_user_sgpr_kernarg_segment_ptr 1
  .amdhsa_system_sgpr_workgroup_id_x 1
.end_amdhsa_kernel{EXTRA_KD}
"""
open(sys.argv[1], "w").write(out)
if OPT["stamp"]:
    import json
    json.dump({"G": STAMPS_G, "A": STAMPS}, open(sys.argv[1] + ".stamps.json", "w"))
```
